```python
import torch

def _softmax(x, axis=-1):
    return torch.softmax(x, dim=axis)
def _gelu(x):
    return torch.nn.functional.gelu(x, approximate="tanh")
def _silu(x):
    return torch.nn.functional.silu(x)
def _sigmoid(x):
    return torch.sigmoid(x)
def _layernorm(x, axis=-1, eps=1e-5):
    m = x.mean(dim=axis, keepdim=True)
    v = x.var(dim=axis, keepdim=True, unbiased=False)
    return (x - m) / torch.sqrt(v + eps)
def _scatter_add(tgt, idx, src, axis=0):
    return tgt.clone().index_add_(axis, idx, src)
def _segment_sum(src, seg, n):
    out = torch.zeros((n,) + src.shape[1:], dtype=src.dtype)
    return out.index_add_(0, seg, src)
def _pad(x, pw):
    flat = tuple(v for pair in reversed(pw) for v in pair)
    return torch.nn.functional.pad(x, flat)

kernel_name = 'standalone__mha_block_cached__near_ridge'

def setup_inputs():

    _w = (lambda a: (lambda t: t.to(torch.bfloat16) if t.is_floating_point() else t)(torch.as_tensor(a)))
    B, Sq, D = 8, 128, 448
    H, Sk, Dh = 16, 512, 256
    return {
        "x": _w((lambda *s: torch.randn(*s, dtype=torch.bfloat16) * 0.8)(B, Sq, D)),
        "k_cache": _w((lambda *s: torch.randn(*s, dtype=torch.bfloat16) * 0.8)(B, H, Sk, Dh)),
        "v_cache": _w((lambda *s: torch.randn(*s, dtype=torch.bfloat16) * 0.05)(B, H, Sk, Dh)),
        "wq": _w((lambda *s: torch.randn(*s, dtype=torch.bfloat16) * 0.8)(D, H * Dh) * (D ** -0.5)),
        "wo": _w((lambda *s: torch.randn(*s, dtype=torch.bfloat16) * 0.05)(H * Dh, D) * ((H * Dh) ** -0.5)),
    }

def reference(x, k_cache, v_cache, wq, wo):
    B, Sq, D = x.shape
    H, Dh = 16, 256
    q = (lambda x, *d: x.permute(*d))((x @ wq).reshape(B, Sq, H, Dh), 0, 2, 1, 3)
    scores = torch.einsum("bhqd,bhkd->bhqk", q, k_cache) * (Dh ** -0.5)
    p = _softmax(scores, axis=-1)
    o = torch.einsum("bhqk,bhkd->bhqd", p, v_cache)
    return (lambda x, *d: x.permute(*d))(o, 0, 2, 1, 3).reshape(B, Sq, H * Dh) @ wo
```

```python
import sys

HEADER = """; Kernarg layout for this problem (64 bytes, ptrs only, base s[0:1]):
"""

KV_BASE = 0
KV_SLOT = 32768
NKV = 3
W_BASE = 98304
W_SLOT = 16384
NW = 3
MISC = 147456
LDS_TOTAL = 163840

DEBUG = {}

class G:
    def __init__(self):
        self.L = []
        self.roles = {"A": [], "B": []}
        self.cur = ("A", "B")
        self.lds = []
    def e(self, s):
        self.L.append("    " + s)
    def lab(self, s):
        self.L.append(s + ":")
    def c(self, s):
        self.L.append("    ; " + s)
    def vm(self, tag):
        for r in self.cur:
            self.roles[r].append(tag)
    def wait_vm(self, tag):
        n = None
        for r in self.cur:
            lst = self.roles[r]
            idx = [i for i, t in enumerate(lst) if t == tag]
            if idx:
                k = len(lst) - 1 - idx[-1]
                n = k if n is None else min(n, k)
        if n is None:
            return
        n = min(n, 63)
        self.e(f"s_waitcnt vmcnt({n})")
        for r in self.cur:
            lst = self.roles[r]
            if len(lst) > n:
                self.roles[r] = lst[len(lst) - n:] if n > 0 else []
    def wait_vm_all(self):
        self.e("s_waitcnt vmcnt(0)")
        for r in self.cur:
            self.roles[r] = []
    def ldsop(self, tag):
        self.lds.append(tag)
    def wait_lds(self, tag):
        idx = [i for i, t in enumerate(self.lds) if t == tag]
        if not idx:
            return
        n = len(self.lds) - 1 - idx[-1]
        assert n <= 15, n
        self.e(f"s_waitcnt lgkmcnt({n})")
        self.lds = self.lds[len(self.lds) - n:] if n > 0 else []
    def wait_lds_all(self, force=False):
        if self.lds or force:
            self.e("s_waitcnt lgkmcnt(0)")
        self.lds = []

def vr(a, n=4):
    return f"v[{a}:{a+n-1}]"

V_TID, V_LANE = 0, 1
V_KA = 2
V_VA = 10
V_WA = 18
V_OA = 22
V_KD = 24
V_VD = 26
V_WD = 27
V_OD = 28
V_DT = 29
V_XA = 30
V_T = 31
FB = 40
NB = 6
DEPTH = 5
BIGA = 64
QACC = 176
BIGC = 128

S_X, S_K, S_V, S_WQ, S_WO, S_WS = 4, 8, 12, 16, 20, 24
S_W, S_QI, S_J, S_H, S_B, S_QH, S_W1K, S_WL = 28, 29, 30, 31, 32, 33, 34, 35
S_T = 36
S_WQOFF = 51
S_C = 50

def gen_attn(g):
    e = g.e
    g.lab("attn_kernel")
    e("s_cmp_ge_u32 s2, 256")
    e("s_cbranch_scc1 attn_end")
    e("s_load_dwordx8 s[36:43], s[0:1], 0")
    e("s_load_dwordx2 s[44:45], s[0:1], 32")
    e("s_load_dwordx2 s[46:47], s[0:1], 56")
    e(f"v_and_b32 v{V_LANE}, 63, v0")
    e(f"v_lshrrev_b32 v{V_T}, 6, v0")
    e("s_nop 0")
    e(f"v_readfirstlane_b32 s{S_W}, v{V_T}")
    e("s_and_b32 s3, s2, 7")
    e(f"s_lshr_b32 s{S_QH}, s2, 3")
    e(f"s_lshr_b32 s{S_B}, s{S_QH}, 2")
    e(f"s_lshr_b32 s{S_H}, s{S_QH}, 1")
    e(f"s_and_b32 s{S_H}, s{S_H}, 1")
    e(f"s_and_b32 s{S_QH}, s{S_QH}, 1")
    e("s_lshl_b32 s3, s3, 1")
    e(f"s_add_u32 s{S_H}, s{S_H}, s3")
    e(f"s_lshr_b32 s{S_QI}, s{S_W}, 1")
    e(f"s_and_b32 s{S_J}, s{S_W}, 1")
    e(f"s_lshl_b32 s{S_W1K}, s{S_W}, 10")
    e(f"s_mov_b32 s{S_WL}, s{S_J}")
    e("s_waitcnt lgkmcnt(0)")
    e(f"s_lshl_b32 s3, s{S_B}, 2")
    e(f"s_lshl_b32 s48, s{S_QH}, 1")
    e("s_add_u32 s3, s3, s48")
    e(f"s_add_u32 s3, s3, s{S_QI}")
    e("s_mul_i32 s3, s3, 28672")
    e(f"s_add_u32 s{S_X}, s36, s3")
    e(f"s_addc_u32 s{S_X+1}, s37, 0")
    e(f"s_and_b32 s{S_X+1}, s{S_X+1}, 0xffff")
    e(f"s_mov_b32 s{S_X+2}, 28672")
    e(f"s_mov_b32 s{S_X+3}, 0x20000")
    e(f"s_lshl_b32 s3, s{S_B}, 4")
    e(f"s_add_u32 s3, s3, s{S_H}")
    e("s_lshl_b32 s3, s3, 18")
    e(f"s_add_u32 s{S_K}, s38, s3")
    e(f"s_addc_u32 s{S_K+1}, s39, 0")
    e(f"s_and_b32 s{S_K+1}, s{S_K+1}, 0xffff")
    e(f"s_mov_b32 s{S_K+2}, 262144")
    e(f"s_mov_b32 s{S_K+3}, 0x20000")
    e(f"s_add_u32 s{S_V}, s40, s3")
    e(f"s_addc_u32 s{S_V+1}, s41, 0")
    e(f"s_and_b32 s{S_V+1}, s{S_V+1}, 0xffff")
    e(f"s_mov_b32 s{S_V+2}, 262144")
    e(f"s_mov_b32 s{S_V+3}, 0x20000")
    e(f"s_mov_b32 s{S_WQ}, s42")
    e(f"s_and_b32 s{S_WQ+1}, s43, 0xffff")
    e(f"s_mov_b32 s{S_WQ+2}, {448*8192}")
    e(f"s_mov_b32 s{S_WQ+3}, 0x20000")
    e(f"s_mul_i32 s3, s{S_H}, {256*896}")
    e(f"s_add_u32 s{S_WO}, s44, s3")
    e(f"s_addc_u32 s{S_WO+1}, s45, 0")
    e(f"s_and_b32 s{S_WO+1}, s{S_WO+1}, 0xffff")
    e(f"s_mov_b32 s{S_WO+2}, {256*896}")
    e(f"s_mov_b32 s{S_WO+3}, 0x20000")
    e(f"s_lshl_b32 s3, s{S_H}, 4")
    e(f"s_lshl_b32 s48, s{S_B}, 1")
    e("s_add_u32 s3, s3, s48")
    e(f"s_add_u32 s3, s3, s{S_QH}")
    e("s_lshl_b32 s3, s3, 2")
    e(f"s_add_u32 s3, s3, s{S_W}")
    e("s_mul_i32 s3, s3, 28672")
    if DEBUG:
        e("s_mov_b32 s52, s46")
        e("s_and_b32 s53, s47, 0xffff")
        e("s_mov_b32 s54, 0x10000000")
        e("s_mov_b32 s55, 0x20000")
    e(f"s_add_u32 s{S_WS}, s46, s3")
    e(f"s_addc_u32 s{S_WS+1}, s47, 0")
    e(f"s_and_b32 s{S_WS+1}, s{S_WS+1}, 0xffff")
    e(f"s_mov_b32 s{S_WS+2}, 28672")
    e(f"s_mov_b32 s{S_WS+3}, 0x20000")
    e(f"s_lshl_b32 s{S_WQOFF}, s{S_H}, 9")
    e(f"s_lshl_b32 s3, s{S_WL}, 14")
    e(f"s_add_u32 s{S_WQOFF}, s{S_WQOFF}, s3")
    e(f"s_mov_b32 s{S_C}, 0x3db8aa3b")
    T = V_T
    hi, p = T, T + 1
    e(f"v_lshrrev_b32 v{hi}, 5, v{V_LANE}")
    e(f"v_and_b32 v{p}, 31, v{V_LANE}")
    e(f"v_lshlrev_b32 v{V_XA}, 4, v{V_LANE}")
    e(f"v_xor_b32 v{T+2}, v{p}, v{hi}")
    e(f"v_lshlrev_b32 v{T+2}, 4, v{T+2}")
    e(f"v_lshl_add_u32 v{T+3}, v{hi}, 9, v{T+2}")
    e(f"s_lshl_b32 s3, s{S_W}, 5")
    e(f"v_xor_b32 v{V_KD}, s3, v{T+3}")
    e(f"v_xor_b32 v{V_KD+1}, 0x80, v{V_KD}")
    e(f"s_lshl_b32 s3, s{S_WL}, 5")
    e(f"v_xor_b32 v{V_DT}, s3, v{T+3}")
    e(f"v_mov_b32 v{T+8}, v{V_DT}")
    e(f"s_lshl_b32 s3, s{S_WL}, 1")
    e(f"v_add_u32 v{T+2}, s3, v{hi}")
    e(f"v_lshlrev_b32 v{T+2}, 2, v{T+2}")
    e(f"v_xor_b32 v{T+2}, v{p}, v{T+2}")
    e(f"v_lshlrev_b32 v{T+2}, 4, v{T+2}")
    e(f"v_lshl_add_u32 v{V_VD}, v{hi}, 9, v{T+2}")
    e(f"v_lshl_add_u32 v{V_WD}, v{hi}, 13, v{T+2}")
    e(f"v_lshrrev_b32 v{T+2}, 2, v{V_LANE}")
    e(f"v_xor_b32 v{T+2}, s{S_W}, v{T+2}")
    e(f"v_and_b32 v{T+3}, 3, v{V_LANE}")
    e(f"v_lshlrev_b32 v{T+3}, 4, v{T+3}")
    e(f"v_lshl_add_u32 v{T+3}, v{T+2}, 6, v{T+3}")
    e(f"v_mov_b32 v{T+4}, 0x40000000")
    e(f"v_cmp_gt_u32 vcc, 14, v{T+2}")
    e("s_nop 1")
    e(f"v_cndmask_b32 v{V_OD}, v{T+4}, v{T+3}, vcc")
    e(f"v_and_b32 v{T+2}, 0x13, v{p}")
    e(f"v_and_b32 v{T+3}, 8, v{p}")
    e(f"v_lshrrev_b32 v{T+3}, 1, v{T+3}")
    e(f"v_and_b32 v{T+4}, 4, v{p}")
    e(f"v_lshlrev_b32 v{T+4}, 1, v{T+4}")
    e(f"v_or3_b32 v{T+2}, v{T+2}, v{T+3}, v{T+4}")
    e(f"v_and_b32 v{T+3}, 15, v{T+2}")
    e(f"v_xor_b32 v{T+3}, v{T+3}, v{hi}")
    e(f"v_lshlrev_b32 v{T+3}, 4, v{T+3}")
    e(f"s_lshl_b32 s3, s{S_J}, 14")
    e(f"v_lshl_add_u32 v{T+2}, v{T+2}, 9, s3")
    e(f"v_add_u32 v{T+2}, v{T+2}, v{T+3}")
    for k in range(8):
        e(f"v_xor_b32 v{V_KA+k}, {k<<5}, v{T+2}")
    rr, dck = T + 2, T + 3
    e(f"v_bfe_u32 v{rr}, v{V_LANE}, 2, 2")
    e(f"v_bfe_u32 v{T+4}, v{V_LANE}, 4, 1")
    e(f"v_and_b32 v{T+5}, 1, v{V_LANE}")
    e(f"v_bfe_u32 v{T+6}, v{V_LANE}, 1, 1")
    e(f"v_lshlrev_b32 v{T+4}, 2, v{T+4}")
    e(f"v_lshlrev_b32 v{T+5}, 1, v{T+5}")
    e(f"v_or3_b32 v{dck}, v{T+4}, v{T+5}, v{T+6}")
    e(f"v_lshlrev_b32 v{dck}, 3, v{dck}")
    e(f"v_lshl_add_u32 v{T+4}, v{hi}, 3, v{rr}")
    e(f"v_lshl_add_u32 v{T+5}, v{T+4}, 9, v{dck}")
    e(f"v_lshl_add_u32 v{T+5}, v{rr}, 6, v{T+5}")
    e(f"s_lshl_b32 s3, s{S_J}, 14")
    e(f"s_lshl_b32 s48, s{S_J}, 8")
    e("s_add_u32 s49, s3, s48")
    e(f"v_add_u32 v{T+6}, s49, v{T+5}")
    e("s_xor_b32 s48, s48, 256")
    e("s_add_u32 s49, s3, s48")
    e(f"v_add_u32 v{T+7}, s49, v{T+5}")
    for t in range(4):
        e(f"v_xor_b32 v{V_VA+t}, {t<<6}, v{T+6}")
        e(f"v_xor_b32 v{V_VA+4+t}, {t<<6}, v{T+7}")
    e(f"s_lshl_b32 s3, s{S_J}, 8")
    e(f"s_add_u32 s3, s3, {W_BASE}")
    e(f"v_add_u32 v{T+6}, s3, v{T+5}")
    for t in range(4):
        e(f"v_xor_b32 v{V_WA+t}, {t<<6}, v{T+6}")
    e(f"v_lshl_add_u32 v{T+5}, v{T+4}, 10, v{dck}")
    e(f"v_xor_b32 v{T+6}, s{S_J}, v{rr}")
    e(f"v_lshl_add_u32 v{T+5}, v{T+6}, 6, v{T+5}")
    e(f"v_add_u32 v{V_OA}, {W_BASE}, v{T+5}")
    e(f"v_xor_b32 v{V_OA+1}, 0x80, v{V_OA}")
    e(f"v_mul_u32_u24 v{T+7}, 896, v{p}")
    e(f"v_lshl_add_u32 v{T+7}, v{hi}, 4, v{T+7}")
    XV = T + 7
    KB2 = T + 8

    def dma(srd, vaddr, lds_const, soff_const, tag, sdyn=None, ldsdyn=None):
        out = []
        if ldsdyn is not None:
            out.append(f"s_add_u32 m0, s{ldsdyn}, {lds_const}")
        else:
            out.append(f"s_mov_b32 m0, {lds_const}")
        if sdyn is not None:
            out.append(f"s_add_u32 s3, s{sdyn}, {soff_const}")
        else:
            out.append(f"s_mov_b32 s3, {soff_const}")
        out.append(f"buffer_load_dwordx4 v{vaddr}, s[{srd}:{srd+3}], s3 offen lds")
        return (out, tag)
    def kv_stage_dmas4(gs):
        slot = gs % NKV
        res = []
        for k in range(8):
            lds = KV_BASE + slot * KV_SLOT + k * 4096
            go = (gs % 8) * 32768 + k * 4096
            if gs < 8:
                res.append(dma(S_K, V_KD + (k & 1), lds, go, f"kv{gs}", S_W1K, S_W1K))
            else:
                res.append(dma(S_V, V_VD, lds, go, f"kv{gs}", S_W1K, S_W1K))
        return res
    def k_stage_dmas2(gs):
        slot = gs % NKV
        res = []
        for k in range(16):
            lds = KV_BASE + slot * KV_SLOT + k * 2048
            go = gs * 32768 + k * 2048
            o, tag = dma(S_K, V_DT, lds, go, f"kv{gs}", S_T, S_T)
            o = [f"v_xor_b32 v{V_DT}, {(k & 3) << 6}, v{KB2}"] + o
            res.append((o, tag))
        return res
    def wq_chunk_dmas(c):
        slot = c % NW
        res = []
        for k in range(8):
            lds = W_BASE + slot * W_SLOT + k * 2048
            go = c * 262144 + k * 32768
            res.append(dma(S_WQ, V_WD, lds, go, f"wq{c}", S_WQOFF, S_T))
        return res
    def wo_chunk_dmas(c):
        slot = c % NW
        res = []
        for k in range(4):
            lds = W_BASE + slot * W_SLOT + k * 4096
            go = (16 * c + 4 * k) * 896
            res.append(dma(S_WO, V_OD, lds, go, f"wo{c}", S_T + 1, S_W1K))
        return res
    def issue(d):
        o, tag = d
        for s in o:
            e(s)
        g.vm(tag)

    e(f"s_lshl_b32 s{S_T}, s{S_WL}, 10")
    e(f"s_mul_i32 s{S_T+1}, s{S_W}, 896")

    class Step:
        __slots__ = ("reads", "mfma", "sync", "buf")
    fbstate = {"n": 0}
    def run_steps(steps, pend_dma=None, final_drain=True):
        n = len(steps)
        queue = list(pend_dma or [])
        base = fbstate["n"]
        def do_reads(i):
            st = steps[i]
            if st.get("sync"):
                while queue:
                    issue(queue.pop(0))
                r = st["sync"]()
                if r:
                    queue.extend(r)
            buf = FB + 4 * ((base + i) % NB)
            for s in st["reads"](buf):
                e(s)
                g.ldsop(f"r{base+i}")
        for i in range(min(DEPTH, n)):
            do_reads(i)
        for i in range(n):
            if i + DEPTH < n:
                do_reads(i + DEPTH)
            g.wait_lds(f"r{base+i}")
            buf = FB + 4 * ((base + i) % NB)
            e(steps[i]["mfma"](buf))
            if queue:
                issue(queue.pop(0))
        while queue:
            issue(queue.pop(0))
        fbstate["n"] = base + n

    def mfma(acc, a, b):
        return f"v_mfma_f32_32x32x16_bf16 {vr(acc,16)}, {vr(a)}, {vr(b)}, {vr(acc,16)}"

    e(f"s_cmp_ge_u32 s{S_W}, 2")
    e("s_cbranch_scc1 p1_roleB")
    saved_fb = None
    for role in ("A", "B"):
        g.cur = (role,)
        g.lds = []
        if role == "B":
            g.lab("p1_roleB")
            fbstate["n"] = saved_fb
        else:
            saved_fb = fbstate["n"]
        def xloads():
            for kk in range(28):
                e(f"buffer_load_dwordx4 {vr(BIGA+4*kk)}, v{XV}, s[{S_X}:{S_X+3}], 0 offen offset:{kk*32}")
                g.vm("x")
        if role == "A":
            for d in wq_chunk_dmas(0): issue(d)
            for d in wq_chunk_dmas(1): issue(d)
            xloads()
            for d in wq_chunk_dmas(2): issue(d)
        else:
            xloads()
            for gs in range(3):
                for d in k_stage_dmas2(gs): issue(d)
        for r in range(64):
            e(f"v_mov_b32 v{QACC+r}, 0")
        if role == "A":
            g.wait_vm_all()
        else:
            g.wait_vm("x")
        steps = []
        for c in range(14):
            for kk2 in range(2):
                for t in range(4):
                    kk = 2 * c + kk2
                    st = {}
                    def reads(buf, c=c, kk2=kk2, t=t):
                        off = (c % NW) * W_SLOT + kk2 * 8192
                        return [f"ds_read_b64_tr_b16 v[{buf}:{buf+1}], v{V_WA+t} offset:{off}",
                                f"ds_read_b64_tr_b16 v[{buf+2}:{buf+3}], v{V_WA+t} offset:{off+2048}"]
                    st["reads"] = reads
                    st["mfma"] = (lambda buf, t=t, kk=kk: mfma(QACC + 16 * t, buf, BIGA + 4 * kk))
                    if kk2 == 0 and t == 0:
                        def sync(c=c, role=role):
                            g.wait_lds_all()
                            g.wait_vm(f"wq{c}")
                            e("s_barrier")
                            if role == "A" and c >= 1 and c + 2 < 14:
                                return wq_chunk_dmas(c + 2)
                            return None
                        st["sync"] = sync
                    steps.append(st)
        run_steps(steps)
        if role == "A":
            e("s_branch p1_join")
    g.lab("p1_join")
    g.cur = ("A", "B")
    g.lds = []
    e("s_nop 15")
    e("s_nop 3")
    for t in range(4):
        for a in range(2):
            for q in range(4):
                src = QACC + 16 * t + 8 * a + 2 * q
                e(f"v_cvt_pk_bf16_f32 v{BIGA + (2*t+a)*4 + q}, v{src}, v{src+1}")
    e("s_waitcnt lgkmcnt(0)")
    e("s_barrier")
    e(f"s_lshl_b32 s3, s{S_QI}, 14")
    e(f"s_lshl_b32 s48, s{S_J}, 13")
    e("s_add_u32 s48, s48, s3")
    e(f"s_add_u32 s48, s48, {W_BASE}")
    e(f"s_add_u32 s3, s3, {W_BASE}")
    e(f"v_add_u32 v{T}, s48, v{V_XA}")
    e(f"v_add_u32 v{T+1}, s3, v{V_XA}")
    for f in range(8):
        e(f"ds_write_b128 v{T}, {vr(BIGA+4*f)} offset:{f*1024}")
    e("s_waitcnt lgkmcnt(0)")
    e("s_barrier")
    for kk in range(16):
        e(f"ds_read_b128 {vr(BIGA+4*kk)}, v{T+1} offset:{kk*1024}")
    for r in range(128):
        e(f"v_mov_b32 v{BIGC+r}, 0")
    e("s_waitcnt lgkmcnt(0)")
    if DEBUG.get("q"):
        dbg_dump(g, BIGA, 64, 0)
    kbias = {"b": 0}
    def rebias(regs, st, want_lo, want_hi):
        if want_lo - st["b"] < 0 or want_hi - st["b"] > 65535:
            nb = want_lo
            d = nb - st["b"]
            for r in regs:
                if d > 0:
                    e(f"v_add_u32 v{r}, {d}, v{r}")
                else:
                    e(f"v_subrev_u32 v{r}, {-d}, v{r}")
            st["b"] = nb
    steps = []
    for gs in range(8):
        for kk in range(16):
            st = {}
            def reads(buf, gs=gs, kk=kk):
                off = KV_BASE + (gs % NKV) * KV_SLOT + (kk >> 3) * 256 - kbias["b"]
                return [f"ds_read_b128 {vr(buf)}, v{V_KA+(kk&7)} offset:{off}"]
            st["reads"] = reads
            st["mfma"] = (lambda buf, gs=gs, kk=kk: mfma(BIGC + 16 * gs, buf, BIGA + 4 * kk))
            if kk == 0:
                def sync(gs=gs):
                    g.wait_lds_all()
                    g.wait_vm(f"kv{gs}")
                    e("s_barrier")
                    sb = KV_BASE + (gs % NKV) * KV_SLOT
                    rebias(range(V_KA, V_KA + 8), kbias, sb, sb + 256)
                    r = []
                    if gs == 0:
                        for c in range(3):
                            r += wo_chunk_dmas(c)
                    if gs >= 1:
                        r += kv_stage_dmas4(gs + 2)
                    return r
                st["sync"] = sync
            steps.append(st)
    run_steps(steps)
    g.wait_lds_all()
    e("s_barrier")
    for d in kv_stage_dmas4(10):
        issue(d)
    e("s_nop 7")
    S = BIGC
    if DEBUG.get("s"):
        dbg_dump(g, S, 128, 1 << 20)
    for i in range(64):
        a = S + 2 * i
        e(f"v_cvt_pk_bf16_f32 v{T + (i & 3)}, v{a}, v{a+1}")
        e(f"v_lshlrev_b32 v{a}, 16, v{T + (i & 3)}")
        e(f"v_and_b32 v{a+1}, 0xffff0000, v{T + (i & 3)}")
    for c4 in range(4):
        e(f"v_max_f32 v{T+c4}, v{S+32*c4}, v{S+32*c4+1}")
    for i in range(15):
        for c4 in range(4):
            a = S + 32 * c4 + 2 + 2 * i
            e(f"v_max3_f32 v{T+c4}, v{T+c4}, v{a}, v{a+1}")
    e(f"v_max3_f32 v{T}, v{T}, v{T+1}, v{T+2}")
    e(f"v_max_f32 v{T}, v{T}, v{T+3}")
    e(f"v_mov_b32 v{T+1}, v{T}")
    e("s_nop 1")
    e(f"v_permlane32_swap_b32 v{T}, v{T+1}")
    e("s_nop 1")
    e(f"v_max_f32 v{T}, v{T}, v{T+1}")
    MLOC = T
    e(f"v_mul_f32 v{T+1}, s{S_C}, v{MLOC}")
    e(f"v_sub_f32 v{T+1}, 0, v{T+1}")
    NMC = T + 1
    for c4 in range(4):
        e(f"v_mov_b32 v{T+2+c4}, 0")
    for i in range(0, 128, 4):
        for k in range(4):
            e(f"v_fma_f32 v{S+i+k}, v{S+i+k}, s{S_C}, v{NMC}")
        for k in range(4):
            e(f"v_exp_f32 v{S+i+k}, v{S+i+k}")
        if i >= 4:
            for k in range(4):
                e(f"v_add_f32 v{T+2+k}, v{T+2+k}, v{S+i-4+k}")
    e("s_nop 0")
    for k in range(4):
        e(f"v_add_f32 v{T+2+k}, v{T+2+k}, v{S+124+k}")
    e(f"v_add_f32 v{T+2}, v{T+2}, v{T+3}")
    e(f"v_add_f32 v{T+4}, v{T+4}, v{T+5}")
    e(f"v_add_f32 v{T+2}, v{T+2}, v{T+4}")
    e(f"v_mov_b32 v{T+3}, v{T+2}")
    e("s_nop 1")
    e(f"v_permlane32_swap_b32 v{T+2}, v{T+3}")
    e("s_nop 1")
    e(f"v_add_f32 v{T+2}, v{T+2}, v{T+3}")
    LLOC = T + 2
    e(f"v_and_b32 v{T+3}, 31, v{V_LANE}")
    e(f"v_lshlrev_b32 v{T+3}, 3, v{T+3}")
    e(f"s_lshl_b32 s3, s{S_W}, 8")
    e(f"s_add_u32 s48, s3, {MISC}")
    e("s_xor_b32 s3, s3, 256")
    e(f"s_add_u32 s3, s3, {MISC}")
    e(f"v_add_u32 v{T+4}, s48, v{T+3}")
    e(f"v_add_u32 v{T+5}, s3, v{T+3}")
    e(f"ds_write_b32 v{T+4}, v{MLOC}")
    e(f"ds_write_b32 v{T+4}, v{LLOC} offset:4")
    e("s_waitcnt lgkmcnt(0)")
    e("s_barrier")
    e(f"ds_read_b64 v[{T+7}:{T+8}], v{T+5}")
    e("s_waitcnt lgkmcnt(0)")
    e(f"v_max_f32 v{T+3}, v{MLOC}, v{T+7}")
    e(f"v_sub_f32 v{T+4}, v{MLOC}, v{T+3}")
    e(f"v_sub_f32 v{T+5}, v{T+7}, v{T+3}")
    e(f"v_mul_f32 v{T+4}, s{S_C}, v{T+4}")
    e(f"v_mul_f32 v{T+5}, s{S_C}, v{T+5}")
    e(f"v_exp_f32 v{T+4}, v{T+4}")
    e(f"v_exp_f32 v{T+5}, v{T+5}")
    e("s_nop 0")
    e(f"v_mul_f32 v{T+3}, v{LLOC}, v{T+4}")
    e(f"v_fma_f32 v{T+3}, v{T+8}, v{T+5}, v{T+3}")
    e(f"v_rcp_f32 v{T+3}, v{T+3}")
    e("s_nop 0")
    e(f"v_mul_f32 v{T+3}, v{T+3}, v{T+4}")
    SC = T + 3
    for i in range(64):
        a = S + 2 * i
        e(f"v_mul_f32 v{a}, v{SC}, v{a}")
        e(f"v_mul_f32 v{a+1}, v{SC}, v{a+1}")
        e(f"v_cvt_pk_bf16_f32 v{BIGA+i}, v{a}, v{a+1}")
    if DEBUG.get("p"):
        dbg_dump(g, BIGA, 64, 2 << 20)
    for r in range(128):
        e(f"v_mov_b32 v{BIGC+r}, 0")
    vbias = {"b": 0}
    steps = []
    for gs in range(8, 16):
        s8 = gs - 8
        for kk2 in range(2):
            for t in range(8):
                st = {}
                def reads(buf, gs=gs, kk2=kk2, t=t):
                    off = KV_BASE + (gs % NKV) * KV_SLOT + kk2 * 8192 - vbias["b"]
                    return [f"ds_read_b64_tr_b16 v[{buf}:{buf+1}], v{V_VA+t} offset:{off}",
                            f"ds_read_b64_tr_b16 v[{buf+2}:{buf+3}], v{V_VA+t} offset:{off+2048}"]
                st["reads"] = reads
                st["mfma"] = (lambda buf, t=t, s8=s8, kk2=kk2: mfma(BIGC + 16 * t, buf, BIGA + 8 * s8 + 4 * kk2))
                if kk2 == 0 and t == 0:
                    def sync(gs=gs):
                        g.wait_lds_all()
                        g.wait_vm(f"kv{gs}")
                        e("s_barrier")
                        sb = KV_BASE + (gs % NKV) * KV_SLOT
                        rebias(range(V_VA, V_VA + 8), vbias, sb, sb + 8192 + 2048)
                        if 9 <= gs <= 13:
                            return kv_stage_dmas4(gs + 2)
                        return None
                    st["sync"] = sync
                steps.append(st)
    run_steps(steps)
    g.wait_lds_all()
    e("s_nop 15")
    e("s_barrier")
    e(f"s_lshl_b32 s3, s{S_W}, 14")
    e(f"v_add_u32 v{T}, s3, v{V_XA}")
    e("s_xor_b32 s3, s3, 16384")
    e(f"v_add_u32 v{T+1}, s3, v{V_XA}")
    for i in range(16):
        e(f"ds_write_b128 v{T}, {vr(BIGC+64+4*i)} offset:{i*1024}")
    e("s_waitcnt lgkmcnt(0)")
    e("s_barrier")
    for i in range(16):
        e(f"ds_read_b128 {vr(BIGC+64+4*i)}, v{T+1} offset:{i*1024}")
    e("s_waitcnt lgkmcnt(0)")
    for r in range(64):
        e(f"v_add_f32 v{BIGC+r}, v{BIGC+r}, v{BIGC+64+r}")
    for t in range(4):
        for a in range(2):
            for q in range(4):
                src = BIGC + 16 * t + 8 * a + 2 * q
                e(f"v_cvt_pk_bf16_f32 v{BIGA + (2*t+a)*4 + q}, v{src}, v{src+1}")
    e(f"s_lshl_b32 s3, s{S_QI}, 14")
    e(f"s_lshl_b32 s48, s{S_J}, 13")
    e("s_add_u32 s48, s48, s3")
    e("s_add_u32 s48, s48, 65536")
    e("s_add_u32 s3, s3, 65536")
    e(f"v_add_u32 v{T}, s48, v{V_XA}")
    e(f"v_add_u32 v{T+1}, s3, v{V_XA}")
    for f in range(8):
        e(f"ds_write_b128 v{T}, {vr(BIGA+4*f)} offset:{f*1024}")
    e("s_waitcnt lgkmcnt(0)")
    e("s_barrier")
    for kk in range(16):
        e(f"ds_read_b128 {vr(BIGA+4*kk)}, v{T+1} offset:{kk*1024}")
    for r in range(112):
        e(f"v_mov_b32 v{BIGC+r}, 0")
    e("s_waitcnt lgkmcnt(0)")
    if DEBUG.get("o"):
        dbg_dump(g, BIGA, 64, 3 << 20)
    steps = []
    for c in range(16):
        for tp in range(7):
            st = {}
            def reads(buf, c=c, tp=tp):
                off = (c % NW) * W_SLOT + (tp >> 1) * 256
                return [f"ds_read_b64_tr_b16 v[{buf}:{buf+1}], v{V_OA+(tp&1)} offset:{off}",
                        f"ds_read_b64_tr_b16 v[{buf+2}:{buf+3}], v{V_OA+(tp&1)} offset:{off+4096}"]
            st["reads"] = reads
            st["mfma"] = (lambda buf, tp=tp, c=c: mfma(BIGC + 16 * tp, buf, BIGA + 4 * c))
            if tp == 0:
                def sync(c=c):
                    g.wait_lds_all()
                    g.wait_vm(f"wo{c}")
                    e("s_barrier")
                    if c >= 1 and c + 2 < 16:
                        return wo_chunk_dmas(c + 2)
                    return None
                st["sync"] = sync
            steps.append(st)
    run_steps(steps)
    e("s_nop 15")
    e("s_nop 3")
    for i in range(28):
        e(f"buffer_store_dwordx4 {vr(BIGC+4*i)}, v{V_XA}, s[{S_WS}:{S_WS+3}], 0 offen offset:{(i&3)*1024}" if False else
          f"#ST {i}")
    g.L = [l for l in g.L if not l.strip().startswith("#ST")]
    for i in range(28):
        if i % 4 == 0:
            e(f"s_mov_b32 s3, {i*1024}")
        e(f"buffer_store_dwordx4 {vr(BIGC+4*i)}, v{V_XA}, s[{S_WS}:{S_WS+3}], s3 offen offset:{(i&3)*1024}")
    g.lab("attn_end")
    e("s_endpgm")

def dbg_dump(g, reg0, n, wsoff):
    e = g.e
    e("s_lshl_b32 s3, s2, 2")
    e(f"s_add_u32 s3, s3, s{S_W}")
    e(f"s_mul_i32 s3, s3, {n*256}")
    e(f"s_add_u32 s3, s3, {(64<<20) + wsoff*32}")
    for i in range(n // 4):
        e(f"buffer_store_dwordx4 {vr(reg0+4*i)}, v{V_XA}, s[52:55], s3 offen")
        e("s_add_u32 s3, s3, 1024")
    e("s_waitcnt vmcnt(0)")
    for r in g.cur:
        g.roles[r] = []

def gen_reduce(g):
    e = g.e
    g.lab("reduce_kernel")
    e("s_cmp_ge_u32 s2, 224")
    e("s_cbranch_scc1 reduce_end")
    e("s_load_dwordx2 s[4:5], s[0:1], 40")
    e("s_load_dwordx2 s[6:7], s[0:1], 56")
    e("v_and_b32 v1, 63, v0")
    e("v_lshrrev_b32 v2, 6, v0")
    e("s_nop 0")
    e("v_readfirstlane_b32 s3, v2")
    e("s_lshl_b32 s8, s2, 2")
    e("s_add_u32 s8, s8, s3")
    e("s_and_b32 s9, s8, 1")
    e("s_lshr_b32 s10, s8, 1")
    e("s_mul_i32 s11, s10, 9363")
    e("s_lshr_b32 s11, s11, 16")
    e("s_mul_i32 s12, s11, 7")
    e("s_sub_u32 s12, s10, s12")
    e("s_waitcnt lgkmcnt(0)")
    e("s_mov_b32 s16, s6")
    e("s_and_b32 s17, s7, 0xffff")
    e(f"s_mov_b32 s18, {16*16*4*28672}")
    e("s_mov_b32 s19, 0x20000")
    e("s_mov_b32 s20, s4")
    e("s_and_b32 s21, s5, 0xffff")
    e(f"s_mov_b32 s22, {8*128*448*2}")
    e("s_mov_b32 s23, 0x20000")
    e("s_mul_i32 s13, s11, 28672")
    e("s_lshl_b32 s14, s12, 2")
    e("s_lshl_b32 s15, s9, 1")
    e("s_add_u32 s14, s14, s15")
    e("s_lshl_b32 s14, s14, 10")
    e("s_add_u32 s13, s13, s14")
    e("v_lshlrev_b32 v3, 4, v1")
    for h in range(16):
        e(f"buffer_load_dwordx4 v[{8+8*h}:{11+8*h}], v3, s[16:19], s13 offen")
        e(f"buffer_load_dwordx4 v[{12+8*h}:{15+8*h}], v3, s[16:19], s13 offen offset:1024")
        if h < 15:
            e(f"s_add_u32 s13, s13, {64*28672}")
    e("s_lshr_b32 s24, s11, 1")
    e("s_lshl_b32 s24, s24, 5")
    e("s_and_b32 s25, s11, 1")
    e("s_lshl_b32 s26, s12, 1")
    e("s_add_u32 s26, s26, s25")
    e("s_lshl_b32 s26, s26, 5")
    e("s_lshl_b32 s27, s9, 4")
    e("s_add_u32 s26, s26, s27")
    e("s_mul_i32 s24, s24, 896")
    e("s_lshl_b32 s26, s26, 1")
    e("s_add_u32 s24, s24, s26")
    e("v_and_b32 v4, 31, v1")
    e("v_mul_u32_u24 v4, 896, v4")
    e("v_lshrrev_b32 v5, 5, v1")
    e("v_lshl_add_u32 v4, v5, 4, v4")
    for h in range(1, 16):
        e(f"s_waitcnt vmcnt({2*(15-h)})")
        for k in range(8):
            e(f"v_add_f32 v{8+k}, v{8+k}, v{8+8*h+k}")
    for k in range(4):
        e(f"v_cvt_pk_bf16_f32 v{8+k}, v{8+2*k}, v{9+2*k}")
    e("buffer_store_dwordx4 v[8:11], v4, s[20:23], s24 offen")
    g.lab("reduce_end")
    e("s_endpgm")

def kd(name, vgpr, sgpr):
    return f""".p2align 6
.amdhsa_kernel {name}
  .amdhsa_next_free_vgpr {vgpr}
  .amdhsa_next_free_sgpr {sgpr}
  .amdhsa_accum_offset {vgpr}
  .amdhsa_group_segment_fixed_size 0
  .amdhsa_kernarg_size 64
  .amdhsa_user_sgpr_count 2
  .amdhsa_user_sgpr_kernarg_segment_ptr 1
  .amdhsa_system_sgpr_workgroup_id_x 1
.end_amdhsa_kernel
"""

def main():
    out = sys.argv[1]
    for a in sys.argv[2:]:
        DEBUG[a] = 1
    g = G()
    gen_attn(g)
    a = "\n".join(g.L)
    g2 = G()
    gen_reduce(g2)
    r = "\n".join(g2.L)
    txt = HEADER
    txt += f"; @launch kernel=attn_kernel grid=(256,1,1) block=(256,1,1) lds={LDS_TOTAL}\n"
    txt += "; @launch kernel=reduce_kernel grid=(224,1,1) block=(256,1,1) lds=0\n"
    txt += '.amdgcn_target "amdgcn-amd-amdhsa--gfx950"\n.text\n'
    txt += ".globl attn_kernel\n.p2align 8\n.type attn_kernel,@function\n" + a + "\n"
    txt += ".globl reduce_kernel\n.p2align 8\n.type reduce_kernel,@function\n" + r + "\n"
    txt += '.section .rodata,"a"\n' + kd("attn_kernel", 256, 64) + kd("reduce_kernel", 136, 32)
    open(out, "w").write(txt)

main()
```

```python
import sys

HEADER = """; Kernarg layout for this problem (64 bytes, ptrs only, base s[0:1]):
;   offset   0: d_in[0] x  shape=(8, 128, 448) dtype=bfloat16 strides=(114688, 896, 2) contiguous=True
;   offset   8: d_in[1] k_cache  shape=(8, 16, 512, 256) dtype=bfloat16 strides=(4194304, 262144, 512, 2) contiguous=True
;   offset  16: d_in[2] v_cache  shape=(8, 16, 512, 256) dtype=bfloat16 strides=(4194304, 262144, 512, 2) contiguous=True
;   offset  24: d_in[3] wq  shape=(448, 4096) dtype=bfloat16 strides=(8192, 2) contiguous=True
;   offset  32: d_in[4] wo  shape=(4096, 448) dtype=bfloat16 strides=(896, 2) contiguous=True
;   offset  56: d_ws      268435456 bytes workspace
"""
SLOT = 16384
NSLOT = 10
LDS_TOTAL = SLOT * NSLOT
DEBUG = {}
OPT = {"pol_kv": "nt ", "pol_w": "", "pol_x": "", "pol_st": "", "pol_rd": "", "depth": 5, "early_k": 1, "wq_first": 4, "tm": 6, "prio": 0, "pbf16": 1, "maxb": 2, "rot_o": 1, "rot_q": 1}

class G:
    def __init__(self):
        self.L = []
        self.vml = []
        self.lds = []
    def e(self, s): self.L.append("    " + s)
    def lab(self, s): self.L.append(s + ":")
    def vm(self, tag): self.vml.append(tag)
    def wait_vm(self, tags):
        idx = [i for i, t in enumerate(self.vml) if t in tags]
        if not idx: return
        n = len(self.vml) - 1 - idx[-1]
        assert n <= 63
        self.e(f"s_waitcnt vmcnt({n})")
        self.vml = self.vml[len(self.vml) - n:] if n > 0 else []
    def ldsop(self, tag): self.lds.append(tag)
    def wait_lds(self, tag):
        idx = [i for i, t in enumerate(self.lds) if t == tag]
        if not idx: return
        n = len(self.lds) - 1 - idx[-1]
        assert n <= 15, n
        self.e(f"s_waitcnt lgkmcnt({n})")
        self.lds = self.lds[len(self.lds) - n:] if n > 0 else []
    def wait_lds_all(self):
        if self.lds: self.e("s_waitcnt lgkmcnt(0)")
        self.lds = []

def vr(a, n=4): return f"v[{a}:{a+n-1}]"

V_LANE = 1
V_KA = 2
V_VA = 10
V_WA = 18
V_OA = 22
V_XA = 30
V_T = 32
FB = 40
NB = 6
BIGA = 64
QACC = 176
BIGC = 128
L_KD = 2
L_VD = 4
L_WD = 5
L_OD = 6
L_XD = 8
S_X, S_K, S_V, S_WQ, S_WO, S_WS = 4, 8, 12, 16, 20, 24
S_W, S_QI, S_J, S_H, S_B, S_QH, S_W1K, S_WL = 28, 29, 30, 31, 32, 33, 34, 35
S_W896 = 36
S_WQOFF = 51
S_W7168 = 37
S_T0 = 97
S_C0 = 98
S_C = 50

STAMPS = []
def stamp(g, name):
    if not DEBUG.get("t"): return
    if len(STAMPS) >= 20: return
    if DEBUG.get("t4") and name in ("p1end", "qx_end", "p2end", "sm_end"): return
    i = len(STAMPS); STAMPS.append(name)
    g.e(f"s_memtime s[{56+2*i}:{57+2*i}]")
def stamp_dump(g):
    if not DEBUG.get("t"): return
    e = g.e
    e("s_waitcnt lgkmcnt(0)")
    n = len(STAMPS)
    for i in range(n): e(f"v_mov_b32 v{64+i}, s{56+2*i}")
    e("s_lshl_b32 s3, s2, 2")
    e(f"s_add_u32 s3, s3, s{S_W}")
    e("s_lshl_b32 s3, s3, 7")
    e(f"s_add_u32 s3, s3, {200<<20}")
    e("v_mov_b32 v100, 0")
    for i in range(n): e(f"buffer_store_dword v{64+i}, v100, s[52:55], s3 offen offset:{4*i}")
    print("stamps:", len(STAMPS), STAMPS)

def gen_attn():
    g = G()
    gl = G()
    e = g.e
    el = gl.e
    DEPTH = OPT["depth"]
    g.lab("attn_kernel")
    e("s_cmp_ge_u32 s2, 256")
    e("s_cbranch_scc1 attn_end")
    e("s_load_dwordx8 s[36:43], s[0:1], 0")
    e("s_load_dwordx2 s[44:45], s[0:1], 32")
    e("s_load_dwordx2 s[46:47], s[0:1], 56")
    e(f"v_and_b32 v{V_LANE}, 63, v0")
    e(f"v_lshrrev_b32 v{V_T}, 6, v0")
    e("s_nop 0")
    e(f"v_readfirstlane_b32 s49, v{V_T}")
    e("s_and_b32 s3, s2, 7")
    e(f"s_lshr_b32 s{S_QH}, s2, 3")
    e(f"s_lshr_b32 s{S_B}, s{S_QH}, 2")
    e(f"s_lshr_b32 s{S_H}, s{S_QH}, 1")
    e(f"s_and_b32 s{S_H}, s{S_H}, 1")
    e(f"s_and_b32 s{S_QH}, s{S_QH}, 1")
    e("s_lshl_b32 s3, s3, 1")
    e(f"s_add_u32 s{S_H}, s{S_H}, s3")
    e(f"s_and_b32 s{S_W}, s49, 3")
    e(f"s_lshr_b32 s{S_QI}, s{S_W}, 1")
    e(f"s_and_b32 s{S_J}, s{S_W}, 1")
    e(f"s_lshl_b32 s{S_W1K}, s{S_W}, 10")
    e(f"s_mov_b32 s{S_WL}, s{S_J}")
    e(f"s_lshl_b32 s3, s{S_B}, 1")
    e(f"s_add_u32 s3, s3, s{S_QH}")
    e("s_mul_i32 s48, s3, 37")
    e("s_lshr_b32 s48, s48, 8")
    e("s_mul_i32 s48, s48, 7")
    e(f"s_sub_u32 s{S_T0}, s3, s48")
    if not OPT["rot_o"]: e(f"s_mov_b32 s{S_T0}, 0")
    e("s_sub_u32 s48, s3, 14")
    e("s_cmp_ge_u32 s3, 14")
    e(f"s_cselect_b32 s{S_C0}, s48, s3")
    if not OPT["rot_q"]: e(f"s_mov_b32 s{S_C0}, 0")
    e("s_cmp_ge_u32 s49, 4")
    e("s_waitcnt lgkmcnt(0)")
    e("s_cbranch_scc1 attn_loader")
    e(f"s_lshl_b32 s3, s{S_H}, 4")
    e(f"s_lshl_b32 s48, s{S_B}, 1")
    e("s_add_u32 s3, s3, s48")
    e(f"s_add_u32 s3, s3, s{S_QH}")
    e("s_lshl_b32 s3, s3, 2")
    e(f"s_add_u32 s3, s3, s{S_W}")
    WB = 14336 if OPT["pbf16"] else 28672
    e(f"s_mul_i32 s3, s3, {WB}")
    if DEBUG:
        e("s_mov_b32 s52, s46")
        e("s_and_b32 s53, s47, 0xffff")
        e("s_mov_b32 s54, 0x10000000")
        e("s_mov_b32 s55, 0x20000")
    e(f"s_add_u32 s{S_WS}, s46, s3")
    e(f"s_addc_u32 s{S_WS+1}, s47, 0")
    e(f"s_and_b32 s{S_WS+1}, s{S_WS+1}, 0xffff")
    e(f"s_mov_b32 s{S_WS+2}, {WB}")
    e(f"s_mov_b32 s{S_WS+3}, 0x20000")
    e(f"s_mov_b32 s{S_C}, 0x3db8aa3b")
    gl.lab("attn_loader")
    if DEBUG.get("tl"):
        el("s_memtime s[60:61]")
        el("s_mov_b32 s52, s46")
        el("s_and_b32 s53, s47, 0xffff")
        el("s_mov_b32 s54, 0x10000000")
        el("s_mov_b32 s55, 0x20000")
    if OPT["prio"]: el(f"s_setprio {OPT['prio']}")
    el(f"s_lshl_b32 s3, s{S_B}, 1")
    el(f"s_add_u32 s3, s3, s{S_QH}")
    el("s_mul_i32 s3, s3, 57344")
    el(f"s_add_u32 s{S_X}, s36, s3")
    el(f"s_addc_u32 s{S_X+1}, s37, 0")
    el(f"s_and_b32 s{S_X+1}, s{S_X+1}, 0xffff")
    el(f"s_mov_b32 s{S_X+2}, 57344")
    el(f"s_mov_b32 s{S_X+3}, 0x20000")
    el(f"s_mov_b32 s{S_WQ}, s42")
    el(f"s_and_b32 s{S_WQ+1}, s43, 0xffff")
    el(f"s_mov_b32 s{S_WQ+2}, {448*8192}")
    el(f"s_mov_b32 s{S_WQ+3}, 0x20000")
    el(f"s_lshl_b32 s3, s{S_B}, 4")
    el(f"s_add_u32 s3, s3, s{S_H}")
    el("s_lshl_b32 s3, s3, 18")
    el(f"s_add_u32 s{S_K}, s38, s3")
    el(f"s_addc_u32 s{S_K+1}, s39, 0")
    el(f"s_and_b32 s{S_K+1}, s{S_K+1}, 0xffff")
    el(f"s_mov_b32 s{S_K+2}, 262144")
    el(f"s_mov_b32 s{S_K+3}, 0x20000")
    el(f"s_add_u32 s{S_V}, s40, s3")
    el(f"s_addc_u32 s{S_V+1}, s41, 0")
    el(f"s_and_b32 s{S_V+1}, s{S_V+1}, 0xffff")
    el(f"s_mov_b32 s{S_V+2}, 262144")
    el(f"s_mov_b32 s{S_V+3}, 0x20000")
    el(f"s_mul_i32 s3, s{S_H}, {256*896}")
    el(f"s_add_u32 s{S_WO}, s44, s3")
    el(f"s_addc_u32 s{S_WO+1}, s45, 0")
    el(f"s_and_b32 s{S_WO+1}, s{S_WO+1}, 0xffff")
    el(f"s_mov_b32 s{S_WO+2}, {256*896}")
    el(f"s_mov_b32 s{S_WO+3}, 0x20000")
    el(f"s_lshl_b32 s{S_WQOFF}, s{S_H}, 9")
    el(f"s_lshl_b32 s3, s{S_W}, 14")
    el(f"s_add_u32 s{S_WQOFF}, s{S_WQOFF}, s3")
    el(f"s_mul_i32 s{S_W896}, s{S_W}, 896")
    T = 16
    hi, p = T, T + 1
    el(f"v_lshrrev_b32 v{hi}, 5, v{V_LANE}")
    el(f"v_and_b32 v{p}, 31, v{V_LANE}")
    el(f"v_mov_b32 v{T+4}, 0x40000000")
    for k in range(4):
        el(f"s_add_u32 s3, s{S_W}, {4*k}")
        el(f"v_xor_b32 v{T+2}, s3, v{V_LANE}")
        el(f"v_lshlrev_b32 v{T+3}, 4, v{T+2}")
        el(f"v_cmp_gt_u32 vcc, 56, v{T+2}")
        el("s_nop 1")
        el(f"v_cndmask_b32 v{L_XD+k}, v{T+4}, v{T+3}, vcc")
    el(f"s_lshl_b32 s3, s{S_WL}, 1")
    el(f"v_add_u32 v{T+2}, s3, v{hi}")
    el(f"v_lshlrev_b32 v{T+2}, 2, v{T+2}")
    el(f"v_xor_b32 v{T+2}, v{p}, v{T+2}")
    el(f"v_lshlrev_b32 v{T+2}, 4, v{T+2}")
    el(f"v_lshl_add_u32 v{L_VD}, v{hi}, 9, v{T+2}")
    el(f"v_lshl_add_u32 v{L_WD}, v{hi}, 13, v{T+2}")
    el(f"v_xor_b32 v{T+2}, v{p}, v{hi}")
    el(f"v_lshlrev_b32 v{T+2}, 4, v{T+2}")
    el(f"v_lshl_add_u32 v{T+3}, v{hi}, 9, v{T+2}")
    el(f"s_lshl_b32 s3, s{S_W}, 5")
    el(f"v_xor_b32 v{L_KD}, s3, v{T+3}")
    el(f"v_xor_b32 v{L_KD+1}, 0x80, v{L_KD}")
    el(f"v_lshrrev_b32 v{T+2}, 3, v{V_LANE}")
    el(f"v_mul_u32_u24 v{T+2}, 896, v{T+2}")
    el(f"v_lshrrev_b32 v{T+3}, 2, v{V_LANE}")
    el(f"v_lshrrev_b32 v{T+5}, 4, v{V_LANE}")
    el(f"v_xor_b32 v{T+3}, v{T+3}, v{T+5}")
    el(f"v_and_b32 v{T+3}, 1, v{T+3}")
    el(f"v_lshl_add_u32 v{T+2}, v{T+3}, 6, v{T+2}")
    el(f"v_and_b32 v{T+3}, 3, v{V_LANE}")
    el(f"v_lshl_add_u32 v{L_OD}, v{T+3}, 4, v{T+2}")
    el(f"s_mul_i32 s{S_W7168}, s{S_W}, 7168")

    order = [("x", i) for i in range(4)]
    nwf = OPT["wq_first"]; ek = OPT["early_k"]
    for c in range(nwf): order.append(("wq", c))
    for s in range(ek): order += [("k", 2*s), ("k", 2*s+1)]
    for c in range(nwf, 14): order.append(("wq", c))
    order += [("qx", 0), ("qx", 1)]
    for s in range(ek, 8): order += [("k", 2*s), ("k", 2*s+1)]
    order.append(("st", 0))
    for s in range(8): order += [("v", 2*s), ("v", 2*s+1)]
    order += [("ox", 0), ("ox", 1)]
    for c in range(14): order.append(("wo", c))
    sched = {"next": 0, "free": list(range(NSLOT)), "slot": {}}
    def issue_unit(u, slot):
        kind, i = u
        tag = f"{kind}{i}"
        if kind in ("qx", "st", "ox"): return
        for k in range(4):
            lds = slot * SLOT + k * 4096
            el(f"s_add_u32 m0, s{S_W1K}, {lds}")
            if kind == "k":
                el(f"s_add_u32 s3, s{S_W1K}, {i*16384 + k*4096}")
                el(f"buffer_load_dwordx4 v{L_KD+(k&1)}, s[{S_K}:{S_K+3}], s3 offen {OPT['pol_kv']}lds")
            elif kind == "v":
                el(f"s_add_u32 s3, s{S_W1K}, {i*16384 + k*4096}")
                el(f"buffer_load_dwordx4 v{L_VD}, s[{S_V}:{S_V+3}], s3 offen {OPT['pol_kv']}lds")
            elif kind == "wq":
                if k == 0:
                    el(f"s_add_u32 s39, s{S_C0}, {i}")
                    el("s_sub_u32 s40, s39, 14")
                    el("s_cmp_ge_u32 s39, 14")
                    el("s_cselect_b32 s39, s40, s39")
                    el("s_lshl_b32 s39, s39, 18")
                    el(f"s_add_u32 s38, s39, s{S_WQOFF}")
                    el(f"s_add_u32 m0, s{S_W1K}, {lds}")
                el(f"s_add_u32 s3, s38, {k*65536}")
                el(f"buffer_load_dwordx4 v{L_WD}, s[{S_WQ}:{S_WQ+3}], s3 offen {OPT['pol_w']}lds")
            elif kind == "wo":
                if k == 0:
                    el(f"s_add_u32 s39, s{S_T0}, {i>>1}")
                    el("s_sub_u32 s40, s39, 7")
                    el("s_cmp_ge_u32 s39, 7")
                    el("s_cselect_b32 s39, s40, s39")
                    el("s_lshl_b32 s39, s39, 7")
                    el(f"s_add_u32 s38, s39, s{S_W7168}")
                    el(f"s_add_u32 m0, s{S_W1K}, {lds}")
                el(f"s_add_u32 s3, s38, {(128*(i&1) + 32*k)*896}")
                el(f"buffer_load_dwordx4 v{L_OD}, s[{S_WO}:{S_WO+3}], s3 offen {OPT['pol_w']}lds")
            elif kind == "x":
                el(f"s_add_u32 s3, s{S_W896}, {(16*i + 4*k)*896}")
                el(f"buffer_load_dwordx4 v{L_XD+k}, s[{S_X}:{S_X+3}], s3 offen {OPT['pol_x']}lds")
            gl.vm(tag)
    pending = []
    def alloc():
        while sched["free"] and sched["next"] < len(order):
            u = order[sched["next"]]; sched["next"] += 1
            s = sched["free"].pop(0)
            sched["slot"][u] = s
            if u[0] not in ("qx", "st", "ox"): pending.append(u)
    def flush(n=None, upto=None):
        k = 0
        while pending and (n is None or k < n):
            if upto is not None and not any(u in pending for u in upto): break
            u = pending.pop(0); issue_unit(u, sched["slot"][u]); k += 1
    def slot_of(u): return sched["slot"][u] * SLOT
    def barrier(needs=(), frees=(), maxb=None):
        flush(upto=list(needs)) if needs else None
        gl.wait_vm([f"{k}{i}" for (k, i) in needs])
        el("s_barrier")
        e("s_barrier")
        for u in frees: sched["free"].append(sched["slot"][u])
        alloc()
        flush(n=OPT["maxb"] if maxb is None else maxb)
    if DEBUG.get("tl"): el("s_memtime s[62:63]")
    alloc()
    flush(n=5)
    if DEBUG.get("tl"): el("s_memtime s[64:65]")
    assert [sched["slot"][("x", i)] for i in range(4)] == [0, 1, 2, 3]

    T = V_T
    hi, p = T, T + 1
    e(f"v_lshrrev_b32 v{hi}, 5, v{V_LANE}")
    e(f"v_and_b32 v{p}, 31, v{V_LANE}")
    e(f"v_lshlrev_b32 v{V_XA}, 4, v{V_LANE}")
    e(f"v_and_b32 v{T+2}, 15, v{p}")
    e(f"v_xor_b32 v{T+2}, v{T+2}, v{hi}")
    e(f"v_lshlrev_b32 v{V_KA}, 4, v{T+2}")
    e(f"s_lshl_b32 s3, s{S_QI}, 15")
    e(f"v_lshl_add_u32 v{V_KA+1}, v{p}, 10, s3")
    rr, dck = T + 2, T + 3
    e(f"v_bfe_u32 v{rr}, v{V_LANE}, 2, 2")
    e(f"v_bfe_u32 v{T+4}, v{V_LANE}, 4, 1")
    e(f"v_and_b32 v{T+5}, 1, v{V_LANE}")
    e(f"v_bfe_u32 v{T+6}, v{V_LANE}, 1, 1")
    e(f"v_lshlrev_b32 v{T+4}, 2, v{T+4}")
    e(f"v_lshlrev_b32 v{T+5}, 1, v{T+5}")
    e(f"v_or3_b32 v{dck}, v{T+4}, v{T+5}, v{T+6}")
    e(f"v_lshlrev_b32 v{dck}, 3, v{dck}")
    e(f"v_lshl_add_u32 v{T+4}, v{hi}, 3, v{rr}")
    e(f"v_lshl_add_u32 v{T+5}, v{T+4}, 9, v{dck}")
    e(f"v_lshl_add_u32 v{T+5}, v{rr}, 6, v{T+5}")
    e(f"s_lshl_b32 s48, s{S_J}, 8")
    e(f"v_add_u32 v{T+6}, s48, v{T+5}")
    e("s_xor_b32 s48, s48, 256")
    e(f"v_add_u32 v{T+7}, s48, v{T+5}")
    for t in range(4):
        e(f"v_xor_b32 v{V_VA+t}, {t<<6}, v{T+6}")
        e(f"v_xor_b32 v{V_VA+4+t}, {t<<6}, v{T+7}")
        e(f"v_xor_b32 v{V_WA+t}, {t<<6}, v{T+6}")
    e(f"v_lshl_add_u32 v{T+5}, v{T+4}, 7, v{dck}")
    e(f"v_lshrrev_b32 v{T+6}, 1, v{rr}")
    e(f"v_xor_b32 v{T+6}, s{S_J}, v{T+6}")
    e(f"v_lshl_add_u32 v{V_OA}, v{T+6}, 6, v{T+5}")
    for r in range(64):
        e(f"v_mov_b32 v{QACC+r}, 0")
    stamp(g, "start")
    if DEBUG.get("tl"):
        gl.wait_vm(["x0"])
        el("s_memtime s[66:67]")
        gl.wait_vm(["x3"])
        el("s_memtime s[68:69]")
    barrier(needs=[("x", i) for i in range(4)])
    if DEBUG.get("t1"): stamp(g, "xbar")
    e(f"s_lshl_b32 s37, s{S_C0}, 1")
    for kk in range(28):
        e(f"s_add_u32 s3, s37, {kk}")
        e("s_sub_u32 s48, s3, 28")
        e("s_cmp_ge_u32 s3, 28")
        e("s_cselect_b32 s3, s48, s3")
        e("s_lshl_b32 s3, s3, 5")
        e(f"v_xor_b32 v{V_KA+2+(kk&3)}, s3, v{V_KA}")
        e(f"v_add_u32 v{V_KA+2+(kk&3)}, v{V_KA+2+(kk&3)}, v{V_KA+1}")
        e(f"ds_read_b128 {vr(BIGA+4*kk)}, v{V_KA+2+(kk&3)}")
        if kk % 12 == 11: e("s_waitcnt lgkmcnt(0)")
    e("s_waitcnt lgkmcnt(0)")
    e(f"v_and_b32 v{T+2}, 0x13, v{p}")
    e(f"v_and_b32 v{T+3}, 8, v{p}")
    e(f"v_lshrrev_b32 v{T+3}, 1, v{T+3}")
    e(f"v_and_b32 v{T+4}, 4, v{p}")
    e(f"v_lshlrev_b32 v{T+4}, 1, v{T+4}")
    e(f"v_or3_b32 v{T+2}, v{T+2}, v{T+3}, v{T+4}")
    e(f"v_and_b32 v{T+3}, 15, v{T+2}")
    e(f"v_xor_b32 v{T+3}, v{T+3}, v{hi}")
    e(f"v_lshlrev_b32 v{T+3}, 4, v{T+3}")
    e(f"v_lshl_add_u32 v{T+2}, v{T+2}, 9, v{T+3}")
    for k in range(8):
        e(f"v_xor_b32 v{V_KA+k}, {k<<5}, v{T+2}")

    bias = {"k": (0, 0), "v": (0, 0), "w": 0, "o": 0}
    def rebase_j(key, regs, b0, b1):
        o0, o1 = bias[key]
        d0, d1 = b0 - o0, b1 - o1
        if d0 == 0 and d1 == 0: return
        e(f"s_mov_b32 s49, {d1 & 0xffffffff}")
        e(f"s_cmp_eq_u32 s{S_J}, 0")
        e(f"s_cselect_b32 s3, {d0 & 0xffffffff}, s49")
        for r in regs: e(f"v_add_u32 v{r}, s3, v{r}")
        bias[key] = (b0, b1)
    def rebase(key, regs, lo, hi_):
        if lo - bias[key] < 0 or hi_ - bias[key] > 65535:
            d = lo - bias[key]
            e(f"s_mov_b32 s3, {d & 0xffffffff}")
            for r in regs: e(f"v_add_u32 v{r}, s3, v{r}")
            bias[key] = lo

    fb = {"n": 0}
    def run_steps(steps):
        n = len(steps)
        base = fb["n"]
        queue = []
        def do_reads(i):
            st = steps[i]
            if st.get("sync"): st["sync"]()
            buf = FB + 4 * ((base + i) % NB)
            for s in st["reads"](buf):
                e(s); g.ldsop(f"r{base+i}")
        for i in range(min(DEPTH, n)): do_reads(i)
        for i in range(n):
            if i + DEPTH < n: do_reads(i + DEPTH)
            g.wait_lds(f"r{base+i}")
            e(steps[i]["mfma"](FB + 4 * ((base + i) % NB)))
            if steps[i].get("post"): queue.extend(steps[i]["post"]())
            if queue:
                for s in queue.pop(0): e(s)
        while queue:
            for s in queue.pop(0): e(s)
        fb["n"] = base + n
    def mfma(acc, a, b):
        return f"v_mfma_f32_32x32x16_bf16 {vr(acc,16)}, {vr(a)}, {vr(b)}, {vr(acc,16)}"

    steps = []
    for c in range(14):
        for kk2 in range(2):
            for t in range(4):
                kk = 2 * c + kk2
                st = {}
                def reads(buf, c=c, kk2=kk2, t=t):
                    off = slot_of(("wq", c)) + kk2 * 8192 - bias["w"]
                    return [f"ds_read_b64_tr_b16 v[{buf}:{buf+1}], v{V_WA+t} offset:{off}",
                            f"ds_read_b64_tr_b16 v[{buf+2}:{buf+3}], v{V_WA+t} offset:{off+2048}"]
                st["reads"] = reads
                st["mfma"] = (lambda buf, t=t, kk=kk: mfma(QACC + 16 * t, buf, BIGA + 4 * kk))
                if kk2 == 0 and t == 0:
                    def sync(c=c):
                        fr = [("x", i) for i in range(4)] if c == 0 else ([("wq", c - 2)] if c >= 2 else [])
                        if DEBUG.get("t1") and c in (0, 1, 2, 3, 4, 6, 8, 10, 12): stamp(g, f"pre{c}")
                        barrier(needs=[("wq", c)], frees=fr)
                        if DEBUG.get("t1") and c in (0, 1, 2, 3, 4, 6, 8, 10, 12): stamp(g, f"bar{c}")
                        sb = slot_of(("wq", c))
                        rebase("w", range(V_WA, V_WA + 4), sb, sb + 8192 + 2048)
                    st["sync"] = sync
                steps.append(st)
    run_steps(steps)
    stamp(g, "p1end")
    e("s_nop 15")
    e("s_nop 3")
    for t in range(4):
        for a in range(2):
            for q in range(4):
                src = QACC + 16 * t + 8 * a + 2 * q
                e(f"v_cvt_pk_bf16_f32 v{BIGA + (2*t+a)*4 + q}, v{src}, v{src+1}")
    def xch_addr(u0, u1):
        e(f"s_mov_b32 s49, {slot_of(u1)}")
        e(f"s_cmp_eq_u32 s{S_QI}, 0")
        e(f"s_cselect_b32 s3, {slot_of(u0)}, s49")
        e(f"s_lshl_b32 s48, s{S_J}, 13")
        e("s_add_u32 s48, s48, s3")
        e(f"v_add_u32 v{T}, s48, v{V_XA}")
        e(f"v_add_u32 v{T+1}, s3, v{V_XA}")
    xch_addr(("qx", 0), ("qx", 1))
    for f in range(8):
        e(f"ds_write_b128 v{T}, {vr(BIGA+4*f)} offset:{f*1024}")
    e("s_waitcnt lgkmcnt(0)")
    barrier(frees=[("wq", 12), ("wq", 13)])
    for kk in range(16):
        e(f"ds_read_b128 {vr(BIGA+4*kk)}, v{T+1} offset:{kk*1024}")
    for r in range(128):
        e(f"v_mov_b32 v{BIGC+r}, 0")
    e("s_waitcnt lgkmcnt(0)")
    stamp(g, "qx_end")
    steps = []
    for s in range(8):
        for kk in range(16):
            st = {}
            st["reads"] = (lambda buf, kk=kk: [f"ds_read_b128 {vr(buf)}, v{V_KA+(kk&7)} offset:{(kk>>3)*256}"])
            st["mfma"] = (lambda buf, s=s, kk=kk: mfma(BIGC + 16 * s, buf, BIGA + 4 * kk))
            if kk == 0:
                def sync(s=s):
                    fr = [("qx", 0), ("qx", 1)] if s == 0 else ([("k", 2*s-4), ("k", 2*s-3)] if s >= 2 else [])
                    barrier(needs=[("k", 2*s), ("k", 2*s+1)], frees=fr)
                    rebase_j("k", range(V_KA, V_KA + 8), slot_of(("k", 2*s)), slot_of(("k", 2*s+1)))
                st["sync"] = sync
            steps.append(st)
    run_steps(steps)
    g.wait_lds_all()
    barrier(frees=[("k", 12), ("k", 13), ("k", 14), ("k", 15)], maxb=99)
    e("s_nop 7")
    stamp(g, "p2end")
    S = BIGC
    for i in range(64):
        a = S + 2 * i
        e(f"v_cvt_pk_bf16_f32 v{T + (i & 3)}, v{a}, v{a+1}")
        e(f"v_lshlrev_b32 v{a}, 16, v{T + (i & 3)}")
        e(f"v_and_b32 v{a+1}, 0xffff0000, v{T + (i & 3)}")
    for c4 in range(4):
        e(f"v_max_f32 v{T+c4}, v{S+32*c4}, v{S+32*c4+1}")
    for i in range(15):
        for c4 in range(4):
            a = S + 32 * c4 + 2 + 2 * i
            e(f"v_max3_f32 v{T+c4}, v{T+c4}, v{a}, v{a+1}")
    e(f"v_max3_f32 v{T}, v{T}, v{T+1}, v{T+2}")
    e(f"v_max_f32 v{T}, v{T}, v{T+3}")
    e(f"v_mov_b32 v{T+1}, v{T}")
    e("s_nop 1")
    e(f"v_permlane32_swap_b32 v{T}, v{T+1}")
    e("s_nop 1")
    e(f"v_max_f32 v{T}, v{T}, v{T+1}")
    MLOC = T
    e(f"v_mul_f32 v{T+1}, s{S_C}, v{MLOC}")
    e(f"v_sub_f32 v{T+1}, 0, v{T+1}")
    NMC = T + 1
    for c4 in range(4): e(f"v_mov_b32 v{T+2+c4}, 0")
    for i in range(0, 128, 4):
        for k in range(4): e(f"v_fma_f32 v{S+i+k}, v{S+i+k}, s{S_C}, v{NMC}")
        for k in range(4): e(f"v_exp_f32 v{S+i+k}, v{S+i+k}")
        if i >= 4:
            for k in range(4): e(f"v_add_f32 v{T+2+k}, v{T+2+k}, v{S+i-4+k}")
    e("s_nop 0")
    for k in range(4): e(f"v_add_f32 v{T+2+k}, v{T+2+k}, v{S+124+k}")
    e(f"v_add_f32 v{T+2}, v{T+2}, v{T+3}")
    e(f"v_add_f32 v{T+4}, v{T+4}, v{T+5}")
    e(f"v_add_f32 v{T+2}, v{T+2}, v{T+4}")
    e(f"v_mov_b32 v{T+3}, v{T+2}")
    e("s_nop 1")
    e(f"v_permlane32_swap_b32 v{T+2}, v{T+3}")
    e("s_nop 1")
    e(f"v_add_f32 v{T+2}, v{T+2}, v{T+3}")
    LLOC = T + 2
    MISC = slot_of(("st", 0))
    e(f"v_and_b32 v{T+3}, 31, v{V_LANE}")
    e(f"v_lshlrev_b32 v{T+3}, 3, v{T+3}")
    e(f"s_lshl_b32 s3, s{S_W}, 8")
    e(f"s_add_u32 s48, s3, {MISC}")
    e("s_xor_b32 s3, s3, 256")
    e(f"s_add_u32 s3, s3, {MISC}")
    e(f"v_add_u32 v{T+4}, s48, v{T+3}")
    e(f"v_add_u32 v{T+5}, s3, v{T+3}")
    e(f"ds_write_b32 v{T+4}, v{MLOC}")
    e(f"ds_write_b32 v{T+4}, v{LLOC} offset:4")
    e("s_waitcnt lgkmcnt(0)")
    barrier()
    e(f"ds_read_b64 v[{T+6}:{T+7}], v{T+5}")
    e("s_waitcnt lgkmcnt(0)")
    e(f"v_max_f32 v{T+3}, v{MLOC}, v{T+6}")
    e(f"v_sub_f32 v{T+4}, v{MLOC}, v{T+3}")
    e(f"v_sub_f32 v{T+5}, v{T+6}, v{T+3}")
    e(f"v_mul_f32 v{T+4}, s{S_C}, v{T+4}")
    e(f"v_mul_f32 v{T+5}, s{S_C}, v{T+5}")
    e(f"v_exp_f32 v{T+4}, v{T+4}")
    e(f"v_exp_f32 v{T+5}, v{T+5}")
    e("s_nop 0")
    e(f"v_mul_f32 v{T+3}, v{LLOC}, v{T+4}")
    e(f"v_fma_f32 v{T+3}, v{T+7}, v{T+5}, v{T+3}")
    e(f"v_rcp_f32 v{T+3}, v{T+3}")
    e("s_nop 0")
    e(f"v_mul_f32 v{T+3}, v{T+3}, v{T+4}")
    SC = T + 3
    for i in range(64):
        a = S + 2 * i
        e(f"v_mul_f32 v{a}, v{SC}, v{a}")
        e(f"v_mul_f32 v{a+1}, v{SC}, v{a+1}")
        e(f"v_cvt_pk_bf16_f32 v{BIGA+i}, v{a}, v{a+1}")
    for r in range(128): e(f"v_mov_b32 v{BIGC+r}, 0")
    stamp(g, "sm_end")
    steps = []
    for s in range(8):
        for kk2 in range(2):
            for t in range(8):
                st = {}
                st["reads"] = (lambda buf, kk2=kk2, t=t: [
                    f"ds_read_b64_tr_b16 v[{buf}:{buf+1}], v{V_VA+t} offset:{kk2*8192}",
                    f"ds_read_b64_tr_b16 v[{buf+2}:{buf+3}], v{V_VA+t} offset:{kk2*8192+2048}"])
                st["mfma"] = (lambda buf, t=t, s=s, kk2=kk2: mfma(BIGC + 16 * t, buf, BIGA + 8 * s + 4 * kk2))
                if kk2 == 0 and t == 0:
                    def sync(s=s):
                        fr = [("st", 0)] if s == 0 else ([("v", 2*s-4), ("v", 2*s-3)] if s >= 2 else [])
                        barrier(needs=[("v", 2*s), ("v", 2*s+1)], frees=fr)
                        rebase_j("v", range(V_VA, V_VA + 8), slot_of(("v", 2*s)), slot_of(("v", 2*s+1)))
                    st["sync"] = sync
                steps.append(st)
    run_steps(steps)
    stamp(g, "p3end")
    g.wait_lds_all()
    e("s_nop 15")
    barrier()
    xs = [slot_of(("v", 12 + i)) for i in range(4)]
    e(f"s_mov_b32 s48, {xs[1]}")
    e(f"s_mov_b32 s49, {xs[3]}")
    e(f"s_cmp_eq_u32 s{S_J}, 0")
    e(f"s_cselect_b32 s37, {xs[0]}, s48")
    e(f"s_cselect_b32 s38, {xs[2]}, s49")
    e(f"s_cselect_b32 s39, s48, {xs[0]}")
    e(f"s_cselect_b32 s40, s49, {xs[2]}")
    e(f"s_cmp_eq_u32 s{S_QI}, 0")
    e("s_cselect_b32 s37, s37, s38")
    e("s_cselect_b32 s39, s39, s40")
    e(f"v_add_u32 v{T+2}, s37, v{V_XA}")
    e(f"v_add_u32 v{T+3}, s39, v{V_XA}")
    for i in range(16):
        e(f"ds_write_b128 v{T+2}, {vr(BIGC+64+4*i)} offset:{i*1024}")
    xch_addr(("ox", 0), ("ox", 1))
    e("s_waitcnt lgkmcnt(0)")
    barrier()
    for i in range(16):
        e(f"ds_read_b128 {vr(BIGC+64+4*i)}, v{T+3} offset:{i*1024}")
    for i in range(16):
        e(f"s_waitcnt lgkmcnt({15-i})")
        for r in range(4):
            e(f"v_add_f32 v{BIGC+4*i+r}, v{BIGC+4*i+r}, v{BIGC+64+4*i+r}")
    for t in range(4):
        for a in range(2):
            for q in range(4):
                src = BIGC + 16 * t + 8 * a + 2 * q
                e(f"v_cvt_pk_bf16_f32 v{BIGA + (2*t+a)*4 + q}, v{src}, v{src+1}")
    for f in range(8):
        e(f"ds_write_b128 v{T}, {vr(BIGA+4*f)} offset:{f*1024}")
    e("s_waitcnt lgkmcnt(0)")
    barrier(frees=[("v", 12), ("v", 13), ("v", 14), ("v", 15)])
    for kk in range(16):
        e(f"ds_read_b128 {vr(BIGA+4*kk)}, v{T+1} offset:{kk*1024}")
    for r in range(112): e(f"v_mov_b32 v{BIGC+r}, 0")
    e("s_waitcnt lgkmcnt(0)")
    stamp(g, "ox_end")
    def store_tile(tp):
        res = []
        if OPT["pbf16"]:
            for a in range(2):
                o = []
                for q in range(4):
                    src = BIGC + 16 * tp + 8 * a + 2 * q
                    o.append(f"v_cvt_pk_bf16_f32 v{BIGC + 16*tp + 8*a + q}, v{src}, v{src+1}")
                o.append(f"s_add_u32 s3, s{S_T0}, {tp}")
                o.append("s_sub_u32 s48, s3, 7")
                o.append("s_cmp_ge_u32 s3, 7")
                o.append("s_cselect_b32 s3, s48, s3")
                o.append("s_lshl_b32 s3, s3, 11")
                o.append(f"buffer_store_dwordx4 {vr(BIGC+16*tp+8*a)}, v{V_XA}, s[{S_WS}:{S_WS+3}], s3 offen offset:{a*1024} {OPT['pol_st']}")
                res.append(o)
            return res
        for gq in range(4):
            i = 4 * tp + gq
            res.append([f"s_mov_b32 s3, {tp*4096}",
                        f"buffer_store_dwordx4 {vr(BIGC+4*i)}, v{V_XA}, s[{S_WS}:{S_WS+3}], s3 offen offset:{gq*1024} {OPT['pol_st']}"])
        return res
    steps = []
    for tp in range(7):
        for c in range(16):
            def reads(buf, tp=tp, c=c):
                sb = slot_of(("wo", 2 * tp + (c >> 3)))
                rebase("o", [V_OA], sb, sb + 16384)
                off = sb + (c & 7) * 2048 - bias["o"]
                return [f"ds_read_b64_tr_b16 v[{buf}:{buf+1}], v{V_OA} offset:{off}",
                        f"ds_read_b64_tr_b16 v[{buf+2}:{buf+3}], v{V_OA} offset:{off+512}"]
            st = {"reads": reads, "mfma": (lambda buf, tp=tp, c=c: mfma(BIGC + 16 * tp, buf, BIGA + 4 * c))}
            if c == 0:
                def sync(tp=tp):
                    fr = [("ox", 0), ("ox", 1)] if tp == 0 else ([("wo", 2*tp-4), ("wo", 2*tp-3)] if tp >= 2 else [])
                    if DEBUG.get("t4"): stamp(g, f"pre{tp}")
                    barrier(needs=[("wo", 2*tp), ("wo", 2*tp+1)], frees=fr)
                    if DEBUG.get("t4"): stamp(g, f"bar{tp}")
                st["sync"] = sync
            if tp >= 1 and c == 2:
                st["post"] = (lambda tp=tp: store_tile(tp - 1))
            steps.append(st)
    run_steps(steps)
    e("s_nop 15")
    e("s_nop 3")
    for d in store_tile(6):
        for s in d: e(s)
    stamp(g, "p4end")
    if DEBUG.get("t"): e("s_waitcnt vmcnt(0)")
    stamp(g, "end")
    stamp_dump(g)
    g.lab("attn_end")
    e("s_endpgm")
    if DEBUG.get("tl"):
        el("s_waitcnt lgkmcnt(0)")
        for i in range(5): el(f"v_mov_b32 v{64+i}, s{60+2*i}")
        el("s_lshl_b32 s3, s2, 2")
        el(f"s_add_u32 s3, s3, s{S_W}")
        el("s_lshl_b32 s3, s3, 7")
        el(f"s_add_u32 s3, s3, {(200<<20) + 64}")
        el("v_mov_b32 v100, 0")
        for i in range(5): el(f"buffer_store_dword v{64+i}, v100, s[52:55], s3 offen offset:{4*i}")
    el("s_endpgm")
    assert sched["next"] == len(order)
    return "\n".join(g.L) + "\n" + "\n".join(gl.L)

def gen_reduce_bf16(g):
    e = g.e
    g.lab("reduce_kernel")
    e("s_cmp_ge_u32 s2, 224")
    e("s_cbranch_scc1 reduce_end")
    e("s_load_dwordx2 s[4:5], s[0:1], 40")
    e("s_load_dwordx2 s[6:7], s[0:1], 56")
    e("v_and_b32 v1, 63, v0")
    e("v_lshrrev_b32 v2, 6, v0")
    e("s_nop 0")
    e("v_readfirstlane_b32 s3, v2")
    e("s_lshl_b32 s8, s2, 2")
    e("s_add_u32 s8, s8, s3")
    e("s_and_b32 s9, s8, 1")
    e("s_lshr_b32 s10, s8, 1")
    e("s_mul_i32 s11, s10, 9363")
    e("s_lshr_b32 s11, s11, 16")
    e("s_mul_i32 s12, s11, 7")
    e("s_sub_u32 s12, s10, s12")
    e("s_waitcnt lgkmcnt(0)")
    e("s_mov_b32 s16, s6")
    e("s_and_b32 s17, s7, 0xffff")
    e(f"s_mov_b32 s18, {16*16*4*14336}")
    e("s_mov_b32 s19, 0x20000")
    e("s_mov_b32 s20, s4")
    e("s_and_b32 s21, s5, 0xffff")
    e(f"s_mov_b32 s22, {8*128*448*2}")
    e("s_mov_b32 s23, 0x20000")
    e("s_lshl_b32 s13, s8, 10")
    e("v_lshlrev_b32 v3, 4, v1")
    for h in range(16):
        e(f"buffer_load_dwordx4 v[{8+4*h}:{11+4*h}], v3, s[16:19], s13 offen {OPT['pol_rd']}")
        if h < 15: e(f"s_add_u32 s13, s13, {64*14336}")
    e("s_lshr_b32 s24, s11, 1")
    e("s_lshl_b32 s24, s24, 5")
    e("s_and_b32 s25, s11, 1")
    e("s_lshl_b32 s26, s12, 1")
    e("s_add_u32 s26, s26, s25")
    e("s_lshl_b32 s26, s26, 5")
    e("s_lshl_b32 s27, s9, 4")
    e("s_add_u32 s26, s26, s27")
    e("s_mul_i32 s24, s24, 896")
    e("s_lshl_b32 s26, s26, 1")
    e("s_add_u32 s24, s24, s26")
    e("v_and_b32 v4, 31, v1")
    e("v_mul_u32_u24 v4, 896, v4")
    e("v_lshrrev_b32 v5, 5, v1")
    e("v_lshl_add_u32 v4, v5, 4, v4")
    A = 80
    for h in range(16):
        e(f"s_waitcnt vmcnt({15-h})")
        for k in range(4):
            src = 8 + 4 * h + k
            if h == 0:
                e(f"v_lshlrev_b32 v{A+2*k}, 16, v{src}")
                e(f"v_and_b32 v{A+2*k+1}, 0xffff0000, v{src}")
            else:
                e(f"v_lshlrev_b32 v{A+8}, 16, v{src}")
                e(f"v_and_b32 v{A+9}, 0xffff0000, v{src}")
                e(f"v_add_f32 v{A+2*k}, v{A+2*k}, v{A+8}")
                e(f"v_add_f32 v{A+2*k+1}, v{A+2*k+1}, v{A+9}")
    for k in range(4): e(f"v_cvt_pk_bf16_f32 v{A+12+k}, v{A+2*k}, v{A+2*k+1}")
    e(f"buffer_store_dwordx4 v[{A+12}:{A+15}], v4, s[20:23], s24 offen")
    g.lab("reduce_end")
    e("s_endpgm")

def gen_reduce(g):
    if OPT["pbf16"]: return gen_reduce_bf16(g)
    e = g.e
    g.lab("reduce_kernel")
    e("s_cmp_ge_u32 s2, 224")
    e("s_cbranch_scc1 reduce_end")
    e("s_load_dwordx2 s[4:5], s[0:1], 40")
    e("s_load_dwordx2 s[6:7], s[0:1], 56")
    e("v_and_b32 v1, 63, v0")
    e("v_lshrrev_b32 v2, 6, v0")
    e("s_nop 0")
    e("v_readfirstlane_b32 s3, v2")
    e("s_lshl_b32 s8, s2, 2")
    e("s_add_u32 s8, s8, s3")
    e("s_and_b32 s9, s8, 1")
    e("s_lshr_b32 s10, s8, 1")
    e("s_mul_i32 s11, s10, 9363")
    e("s_lshr_b32 s11, s11, 16")
    e("s_mul_i32 s12, s11, 7")
    e("s_sub_u32 s12, s10, s12")
    e("s_waitcnt lgkmcnt(0)")
    e("s_mov_b32 s16, s6")
    e("s_and_b32 s17, s7, 0xffff")
    e(f"s_mov_b32 s18, {16*16*4*28672}")
    e("s_mov_b32 s19, 0x20000")
    e("s_mov_b32 s20, s4")
    e("s_and_b32 s21, s5, 0xffff")
    e(f"s_mov_b32 s22, {8*128*448*2}")
    e("s_mov_b32 s23, 0x20000")
    e("s_mul_i32 s13, s11, 28672")
    e("s_lshl_b32 s14, s12, 2")
    e("s_lshl_b32 s15, s9, 1")
    e("s_add_u32 s14, s14, s15")
    e("s_lshl_b32 s14, s14, 10")
    e("s_add_u32 s13, s13, s14")
    e("v_lshlrev_b32 v3, 4, v1")
    for h in range(16):
        e(f"buffer_load_dwordx4 v[{8+8*h}:{11+8*h}], v3, s[16:19], s13 offen {OPT['pol_rd']}")
        e(f"buffer_load_dwordx4 v[{12+8*h}:{15+8*h}], v3, s[16:19], s13 offen offset:1024 {OPT['pol_rd']}")
        if h < 15: e(f"s_add_u32 s13, s13, {64*28672}")
    e("s_lshr_b32 s24, s11, 1")
    e("s_lshl_b32 s24, s24, 5")
    e("s_and_b32 s25, s11, 1")
    e("s_lshl_b32 s26, s12, 1")
    e("s_add_u32 s26, s26, s25")
    e("s_lshl_b32 s26, s26, 5")
    e("s_lshl_b32 s27, s9, 4")
    e("s_add_u32 s26, s26, s27")
    e("s_mul_i32 s24, s24, 896")
    e("s_lshl_b32 s26, s26, 1")
    e("s_add_u32 s24, s24, s26")
    e("v_and_b32 v4, 31, v1")
    e("v_mul_u32_u24 v4, 896, v4")
    e("v_lshrrev_b32 v5, 5, v1")
    e("v_lshl_add_u32 v4, v5, 4, v4")
    for h in range(1, 16):
        e(f"s_waitcnt vmcnt({2*(15-h)})")
        for k in range(8): e(f"v_add_f32 v{8+k}, v{8+k}, v{8+8*h+k}")
    for k in range(4): e(f"v_cvt_pk_bf16_f32 v{8+k}, v{8+2*k}, v{9+2*k}")
    e("buffer_store_dwordx4 v[8:11], v4, s[20:23], s24 offen")
    g.lab("reduce_end")
    e("s_endpgm")

def kd(name, vgpr, sgpr):
    return f""".p2align 6
.amdhsa_kernel {name}
  .amdhsa_next_free_vgpr {vgpr}
  .amdhsa_next_free_sgpr {sgpr}
  .amdhsa_accum_offset {vgpr}
  .amdhsa_group_segment_fixed_size 0
  .amdhsa_kernarg_size 64
  .amdhsa_user_sgpr_count 2
  .amdhsa_user_sgpr_kernarg_segment_ptr 1
  .amdhsa_system_sgpr_workgroup_id_x 1
.end_amdhsa_kernel
"""

def main():
    out = sys.argv[1]
    only = None
    for a in sys.argv[2:]:
        if "=" in a:
            k, v = a.split("=", 1)
            if k == "only": only = v
            elif k.startswith("pol"): OPT[k] = (v.replace("_", " ") + " ") if v else ""
            else: OPT[k] = int(v)
        else:
            DEBUG[a] = 1
    a = gen_attn()
    g2 = G(); gen_reduce(g2); r = "\n".join(g2.L)
    txt = HEADER
    if only != "reduce":
        txt += f"; @launch kernel=attn_kernel grid=(256,1,1) block=(512,1,1) lds={LDS_TOTAL}\n"
    if only != "attn":
        txt += "; @launch kernel=reduce_kernel grid=(224,1,1) block=(256,1,1) lds=0\n"
    txt += '.amdgcn_target "amdgcn-amd-amdhsa--gfx950"\n.text\n'
    txt += ".globl attn_kernel\n.p2align 8\n.type attn_kernel,@function\n" + a + "\n"
    txt += ".globl reduce_kernel\n.p2align 8\n.type reduce_kernel,@function\n" + r + "\n"
    txt += '.section .rodata,"a"\n' + kd("attn_kernel", 256, 100) + kd("reduce_kernel", 136, 32)
    open(out, "w").write(txt)
main()
```

```python
import sys

HEADER = """; Kernarg layout for this problem (64 bytes, ptrs only, base s[0:1]):
;   offset   0: d_in[0] x  shape=(8, 128, 448) dtype=bfloat16 strides=(114688, 896, 2) contiguous=True
;   offset   8: d_in[1] k_cache  shape=(8, 16, 512, 256) dtype=bfloat16 strides=(4194304, 262144, 512, 2) contiguous=True
;   offset  16: d_in[2] v_cache  shape=(8, 16, 512, 256) dtype=bfloat16 strides=(4194304, 262144, 512, 2) contiguous=True
;   offset  24: d_in[3] wq  shape=(448, 4096) dtype=bfloat16 strides=(8192, 2) contiguous=True
;   offset  32: d_in[4] wo  shape=(4096, 448) dtype=bfloat16 strides=(896, 2) contiguous=True
;   offset  56: d_ws      268435456 bytes workspace
"""
SLOT = 16384
NSLOT = 10
LDS_TOTAL = SLOT * NSLOT
DEBUG = {}
OPT = {"pol_kv": "nt ", "pol_w": "", "pol_x": "", "pol_st": "", "pol_rd": "", "depth": 5, "early_k": 1, "wq_first": 4, "tm": 6, "prio": 0, "pbf16": 1, "maxb": 2, "rot_o": 1, "rot_q": 1, "cissue": 1}

class G:
    def __init__(self):
        self.L = []
        self.vml = []
        self.lds = []
    def e(self, s): self.L.append("    " + s)
    def lab(self, s): self.L.append(s + ":")
    def vm(self, tag): self.vml.append(tag)
    def wait_vm(self, tags):
        idx = [i for i, t in enumerate(self.vml) if t in tags]
        if not idx: return
        n = len(self.vml) - 1 - idx[-1]
        assert n <= 63
        self.e(f"s_waitcnt vmcnt({n})")
        self.vml = self.vml[len(self.vml) - n:] if n > 0 else []
    def ldsop(self, tag): self.lds.append(tag)
    def wait_lds(self, tag):
        idx = [i for i, t in enumerate(self.lds) if t == tag]
        if not idx: return
        n = len(self.lds) - 1 - idx[-1]
        assert n <= 15, n
        self.e(f"s_waitcnt lgkmcnt({n})")
        self.lds = self.lds[len(self.lds) - n:] if n > 0 else []
    def wait_lds_all(self):
        if self.lds: self.e("s_waitcnt lgkmcnt(0)")
        self.lds = []

def vr(a, n=4): return f"v[{a}:{a+n-1}]"

V_LANE = 1
V_KA = 2
V_VA = 10
V_WA = 18
V_OA = 22
V_XA = 30
V_T = 32
FB = 40
NB = 6
BIGA = 64
QACC = 176
BIGC = 128
L_KD = 2
L_VD = 4
L_WD = 5
L_OD = 6
L_XD = 8
C_XD = 64
C_KD = 68
C_T = 72
S_X, S_K, S_V, S_WQ, S_WO, S_WS = 4, 8, 12, 16, 20, 24
S_W, S_QI, S_J, S_H, S_B, S_QH, S_W1K, S_WL = 28, 29, 30, 31, 32, 33, 34, 35
S_W896 = 36
S_WQOFF = 51
S_W7168 = 37
S_C2 = 42
S_T0 = 97
S_C0 = 98
S_C = 50

STAMPS = []
def stamp(g, name):
    if not DEBUG.get("t"): return
    if len(STAMPS) >= 20: return
    if DEBUG.get("t4") and name in ("p1end", "qx_end", "p2end", "sm_end"): return
    i = len(STAMPS); STAMPS.append(name)
    g.e(f"s_memtime s[{56+2*i}:{57+2*i}]")
def stamp_dump(g):
    if not DEBUG.get("t"): return
    e = g.e
    e("s_waitcnt lgkmcnt(0)")
    n = len(STAMPS)
    for i in range(n): e(f"v_mov_b32 v{64+i}, s{56+2*i}")
    e("s_lshl_b32 s3, s2, 2")
    e(f"s_add_u32 s3, s3, s{S_W}")
    e("s_lshl_b32 s3, s3, 7")
    e(f"s_add_u32 s3, s3, {200<<20}")
    e("v_mov_b32 v100, 0")
    for i in range(n): e(f"buffer_store_dword v{64+i}, v100, s[52:55], s3 offen offset:{4*i}")
    print("stamps:", len(STAMPS), STAMPS)

def gen_attn():
    g = G()
    gl = G()
    e = g.e
    el = gl.e
    DEPTH = OPT["depth"]
    g.lab("attn_kernel")
    e("s_cmp_ge_u32 s2, 256")
    e("s_cbranch_scc1 attn_end")
    e("s_load_dwordx8 s[36:43], s[0:1], 0")
    e("s_load_dwordx2 s[44:45], s[0:1], 32")
    e("s_load_dwordx2 s[46:47], s[0:1], 56")
    e(f"v_and_b32 v{V_LANE}, 63, v0")
    e(f"v_lshrrev_b32 v{V_T}, 6, v0")
    e("s_nop 0")
    e(f"v_readfirstlane_b32 s49, v{V_T}")
    e("s_and_b32 s3, s2, 7")
    e(f"s_lshr_b32 s{S_QH}, s2, 3")
    e(f"s_lshr_b32 s{S_B}, s{S_QH}, 2")
    e(f"s_lshr_b32 s{S_H}, s{S_QH}, 1")
    e(f"s_and_b32 s{S_H}, s{S_H}, 1")
    e(f"s_and_b32 s{S_QH}, s{S_QH}, 1")
    e("s_lshl_b32 s3, s3, 1")
    e(f"s_add_u32 s{S_H}, s{S_H}, s3")
    e(f"s_and_b32 s{S_W}, s49, 3")
    e(f"s_lshr_b32 s{S_QI}, s{S_W}, 1")
    e(f"s_and_b32 s{S_J}, s{S_W}, 1")
    e(f"s_lshl_b32 s{S_W1K}, s{S_W}, 10")
    e(f"s_mov_b32 s{S_WL}, s{S_J}")
    e(f"s_lshl_b32 s3, s{S_B}, 1")
    e(f"s_add_u32 s3, s3, s{S_QH}")
    e("s_mul_i32 s48, s3, 37")
    e("s_lshr_b32 s48, s48, 8")
    e("s_mul_i32 s48, s48, 7")
    e(f"s_sub_u32 s{S_T0}, s3, s48")
    if not OPT["rot_o"]: e(f"s_mov_b32 s{S_T0}, 0")
    e("s_sub_u32 s48, s3, 14")
    e("s_cmp_ge_u32 s3, 14")
    e(f"s_cselect_b32 s{S_C0}, s48, s3")
    if not OPT["rot_q"]: e(f"s_mov_b32 s{S_C0}, 0")
    e("s_cmp_ge_u32 s49, 4")
    e("s_waitcnt lgkmcnt(0)")
    e("s_cbranch_scc1 attn_loader")
    e(f"s_lshl_b32 s3, s{S_H}, 4")
    e(f"s_lshl_b32 s48, s{S_B}, 1")
    e("s_add_u32 s3, s3, s48")
    e(f"s_add_u32 s3, s3, s{S_QH}")
    e("s_lshl_b32 s3, s3, 2")
    e(f"s_add_u32 s3, s3, s{S_W}")
    WB = 14336 if OPT["pbf16"] else 28672
    e(f"s_mul_i32 s3, s3, {WB}")
    if DEBUG:
        e("s_mov_b32 s52, s46")
        e("s_and_b32 s53, s47, 0xffff")
        e("s_mov_b32 s54, 0x10000000")
        e("s_mov_b32 s55, 0x20000")
    e(f"s_add_u32 s{S_WS}, s46, s3")
    e(f"s_addc_u32 s{S_WS+1}, s47, 0")
    e(f"s_and_b32 s{S_WS+1}, s{S_WS+1}, 0xffff")
    e(f"s_mov_b32 s{S_WS+2}, {WB}")
    e(f"s_mov_b32 s{S_WS+3}, 0x20000")
    e(f"s_mov_b32 s{S_C}, 0x3db8aa3b")
    e(f"s_mov_b32 s{S_C2}, 0x3db8aa3b")
    e(f"s_mov_b32 s{S_C2+1}, 0x3db8aa3b")
    e(f"s_lshl_b32 s3, s{S_B}, 1")
    e(f"s_add_u32 s3, s3, s{S_QH}")
    e("s_mul_i32 s3, s3, 57344")
    e(f"s_add_u32 s{S_X}, s36, s3")
    e(f"s_addc_u32 s{S_X+1}, s37, 0")
    e(f"s_and_b32 s{S_X+1}, s{S_X+1}, 0xffff")
    e(f"s_mov_b32 s{S_X+2}, 57344")
    e(f"s_mov_b32 s{S_X+3}, 0x20000")
    e(f"s_lshl_b32 s3, s{S_B}, 4")
    e(f"s_add_u32 s3, s3, s{S_H}")
    e("s_lshl_b32 s3, s3, 18")
    e(f"s_add_u32 s{S_K}, s38, s3")
    e(f"s_addc_u32 s{S_K+1}, s39, 0")
    e(f"s_and_b32 s{S_K+1}, s{S_K+1}, 0xffff")
    e(f"s_mov_b32 s{S_K+2}, 262144")
    e(f"s_mov_b32 s{S_K+3}, 0x20000")
    e(f"s_mul_i32 s{S_W896}, s{S_W}, 896")
    e(f"v_mov_b32 v{C_T+2}, 0x40000000")
    for k in range(4):
        e(f"s_add_u32 s3, s{S_W}, {4*k}")
        e(f"v_xor_b32 v{C_T}, s3, v{V_LANE}")
        e(f"v_lshlrev_b32 v{C_T+1}, 4, v{C_T}")
        e(f"v_cmp_gt_u32 vcc, 56, v{C_T}")
        e("s_nop 1")
        e(f"v_cndmask_b32 v{C_XD+k}, v{C_T+2}, v{C_T+1}, vcc")
    e(f"v_lshrrev_b32 v{C_T}, 5, v{V_LANE}")
    e(f"v_and_b32 v{C_T+1}, 31, v{V_LANE}")
    e(f"v_xor_b32 v{C_T+1}, v{C_T+1}, v{C_T}")
    e(f"v_lshlrev_b32 v{C_T+1}, 4, v{C_T+1}")
    e(f"v_lshl_add_u32 v{C_T+1}, v{C_T}, 9, v{C_T+1}")
    e(f"s_lshl_b32 s3, s{S_W}, 5")
    e(f"v_xor_b32 v{C_KD}, s3, v{C_T+1}")
    e(f"v_xor_b32 v{C_KD+1}, 0x80, v{C_KD}")
    gl.lab("attn_loader")
    if DEBUG.get("tl"):
        el("s_memtime s[60:61]")
        el("s_mov_b32 s52, s46")
        el("s_and_b32 s53, s47, 0xffff")
        el("s_mov_b32 s54, 0x10000000")
        el("s_mov_b32 s55, 0x20000")
    if OPT["prio"]: el(f"s_setprio {OPT['prio']}")
    el(f"s_lshl_b32 s3, s{S_B}, 1")
    el(f"s_add_u32 s3, s3, s{S_QH}")
    el("s_mul_i32 s3, s3, 57344")
    el(f"s_add_u32 s{S_X}, s36, s3")
    el(f"s_addc_u32 s{S_X+1}, s37, 0")
    el(f"s_and_b32 s{S_X+1}, s{S_X+1}, 0xffff")
    el(f"s_mov_b32 s{S_X+2}, 57344")
    el(f"s_mov_b32 s{S_X+3}, 0x20000")
    el(f"s_mov_b32 s{S_WQ}, s42")
    el(f"s_and_b32 s{S_WQ+1}, s43, 0xffff")
    el(f"s_mov_b32 s{S_WQ+2}, {448*8192}")
    el(f"s_mov_b32 s{S_WQ+3}, 0x20000")
    el(f"s_lshl_b32 s3, s{S_B}, 4")
    el(f"s_add_u32 s3, s3, s{S_H}")
    el("s_lshl_b32 s3, s3, 18")
    el(f"s_add_u32 s{S_K}, s38, s3")
    el(f"s_addc_u32 s{S_K+1}, s39, 0")
    el(f"s_and_b32 s{S_K+1}, s{S_K+1}, 0xffff")
    el(f"s_mov_b32 s{S_K+2}, 262144")
    el(f"s_mov_b32 s{S_K+3}, 0x20000")
    el(f"s_add_u32 s{S_V}, s40, s3")
    el(f"s_addc_u32 s{S_V+1}, s41, 0")
    el(f"s_and_b32 s{S_V+1}, s{S_V+1}, 0xffff")
    el(f"s_mov_b32 s{S_V+2}, 262144")
    el(f"s_mov_b32 s{S_V+3}, 0x20000")
    el(f"s_mul_i32 s3, s{S_H}, {256*896}")
    el(f"s_add_u32 s{S_WO}, s44, s3")
    el(f"s_addc_u32 s{S_WO+1}, s45, 0")
    el(f"s_and_b32 s{S_WO+1}, s{S_WO+1}, 0xffff")
    el(f"s_mov_b32 s{S_WO+2}, {256*896}")
    el(f"s_mov_b32 s{S_WO+3}, 0x20000")
    el(f"s_lshl_b32 s{S_WQOFF}, s{S_H}, 9")
    el(f"s_lshl_b32 s3, s{S_W}, 14")
    el(f"s_add_u32 s{S_WQOFF}, s{S_WQOFF}, s3")
    el(f"s_mul_i32 s{S_W896}, s{S_W}, 896")
    T = 16
    hi, p = T, T + 1
    el(f"v_lshrrev_b32 v{hi}, 5, v{V_LANE}")
    el(f"v_and_b32 v{p}, 31, v{V_LANE}")
    el(f"v_mov_b32 v{T+4}, 0x40000000")
    for k in range(4):
        el(f"s_add_u32 s3, s{S_W}, {4*k}")
        el(f"v_xor_b32 v{T+2}, s3, v{V_LANE}")
        el(f"v_lshlrev_b32 v{T+3}, 4, v{T+2}")
        el(f"v_cmp_gt_u32 vcc, 56, v{T+2}")
        el("s_nop 1")
        el(f"v_cndmask_b32 v{L_XD+k}, v{T+4}, v{T+3}, vcc")
    el(f"s_lshl_b32 s3, s{S_WL}, 1")
    el(f"v_add_u32 v{T+2}, s3, v{hi}")
    el(f"v_lshlrev_b32 v{T+2}, 2, v{T+2}")
    el(f"v_xor_b32 v{T+2}, v{p}, v{T+2}")
    el(f"v_lshlrev_b32 v{T+2}, 4, v{T+2}")
    el(f"v_lshl_add_u32 v{L_VD}, v{hi}, 9, v{T+2}")
    el(f"v_lshl_add_u32 v{L_WD}, v{hi}, 13, v{T+2}")
    el(f"v_xor_b32 v{T+2}, v{p}, v{hi}")
    el(f"v_lshlrev_b32 v{T+2}, 4, v{T+2}")
    el(f"v_lshl_add_u32 v{T+3}, v{hi}, 9, v{T+2}")
    el(f"s_lshl_b32 s3, s{S_W}, 5")
    el(f"v_xor_b32 v{L_KD}, s3, v{T+3}")
    el(f"v_xor_b32 v{L_KD+1}, 0x80, v{L_KD}")
    el(f"v_lshrrev_b32 v{T+2}, 3, v{V_LANE}")
    el(f"v_mul_u32_u24 v{T+2}, 896, v{T+2}")
    el(f"v_lshrrev_b32 v{T+3}, 2, v{V_LANE}")
    el(f"v_lshrrev_b32 v{T+5}, 4, v{V_LANE}")
    el(f"v_xor_b32 v{T+3}, v{T+3}, v{T+5}")
    el(f"v_and_b32 v{T+3}, 1, v{T+3}")
    el(f"v_lshl_add_u32 v{T+2}, v{T+3}, 6, v{T+2}")
    el(f"v_and_b32 v{T+3}, 3, v{V_LANE}")
    el(f"v_lshl_add_u32 v{L_OD}, v{T+3}, 4, v{T+2}")
    el(f"s_mul_i32 s{S_W7168}, s{S_W}, 7168")

    order = [("x", i) for i in range(4)]
    nwf = OPT["wq_first"]; ek = OPT["early_k"]
    for c in range(nwf): order.append(("wq", c))
    for s in range(ek): order += [("k", 2*s), ("k", 2*s+1)]
    for c in range(nwf, 14): order.append(("wq", c))
    order += [("qx", 0), ("qx", 1)]
    for s in range(ek, 8): order += [("k", 2*s), ("k", 2*s+1)]
    order.append(("st", 0))
    for s in range(8): order += [("v", 2*s), ("v", 2*s+1)]
    order += [("ox", 0), ("ox", 1)]
    for c in range(14): order.append(("wo", c))
    sched = {"next": 0, "free": list(range(NSLOT)), "slot": {}}
    cunits = set([("x", i) for i in range(4)] + [("k", i) for i in range(2 * OPT["early_k"])]) if OPT["cissue"] else set()
    def issue_unit(u, slot):
        kind, i = u
        tag = f"{kind}{i}"
        if kind in ("qx", "st", "ox"): return
        if u in cunits:
            for k in range(4):
                lds = slot * SLOT + k * 4096
                e(f"s_add_u32 m0, s{S_W1K}, {lds}")
                if kind == "k":
                    e(f"s_add_u32 s3, s{S_W1K}, {i*16384 + k*4096}")
                    e(f"buffer_load_dwordx4 v{C_KD+(k&1)}, s[{S_K}:{S_K+3}], s3 offen {OPT['pol_kv']}lds")
                else:
                    e(f"s_add_u32 s3, s{S_W896}, {(16*i + 4*k)*896}")
                    e(f"buffer_load_dwordx4 v{C_XD+k}, s[{S_X}:{S_X+3}], s3 offen {OPT['pol_x']}lds")
                g.vm(tag)
            return
        for k in range(4):
            lds = slot * SLOT + k * 4096
            el(f"s_add_u32 m0, s{S_W1K}, {lds}")
            if kind == "k":
                el(f"s_add_u32 s3, s{S_W1K}, {i*16384 + k*4096}")
                el(f"buffer_load_dwordx4 v{L_KD+(k&1)}, s[{S_K}:{S_K+3}], s3 offen {OPT['pol_kv']}lds")
            elif kind == "v":
                el(f"s_add_u32 s3, s{S_W1K}, {i*16384 + k*4096}")
                el(f"buffer_load_dwordx4 v{L_VD}, s[{S_V}:{S_V+3}], s3 offen {OPT['pol_kv']}lds")
            elif kind == "wq":
                if k == 0:
                    el(f"s_add_u32 s39, s{S_C0}, {i}")
                    el("s_sub_u32 s40, s39, 14")
                    el("s_cmp_ge_u32 s39, 14")
                    el("s_cselect_b32 s39, s40, s39")
                    el("s_lshl_b32 s39, s39, 18")
                    el(f"s_add_u32 s38, s39, s{S_WQOFF}")
                    el(f"s_add_u32 m0, s{S_W1K}, {lds}")
                el(f"s_add_u32 s3, s38, {k*65536}")
                el(f"buffer_load_dwordx4 v{L_WD}, s[{S_WQ}:{S_WQ+3}], s3 offen {OPT['pol_w']}lds")
            elif kind == "wo":
                if k == 0:
                    el(f"s_add_u32 s39, s{S_T0}, {i>>1}")
                    el("s_sub_u32 s40, s39, 7")
                    el("s_cmp_ge_u32 s39, 7")
                    el("s_cselect_b32 s39, s40, s39")
                    el("s_lshl_b32 s39, s39, 7")
                    el(f"s_add_u32 s38, s39, s{S_W7168}")
                    el(f"s_add_u32 m0, s{S_W1K}, {lds}")
                el(f"s_add_u32 s3, s38, {(128*(i&1) + 32*k)*896}")
                el(f"buffer_load_dwordx4 v{L_OD}, s[{S_WO}:{S_WO+3}], s3 offen {OPT['pol_w']}lds")
            elif kind == "x":
                el(f"s_add_u32 s3, s{S_W896}, {(16*i + 4*k)*896}")
                el(f"buffer_load_dwordx4 v{L_XD+k}, s[{S_X}:{S_X+3}], s3 offen {OPT['pol_x']}lds")
            gl.vm(tag)
    pending = []
    def alloc():
        while sched["free"] and sched["next"] < len(order):
            u = order[sched["next"]]; sched["next"] += 1
            s = sched["free"].pop(0)
            sched["slot"][u] = s
            if u[0] not in ("qx", "st", "ox"): pending.append(u)
    def flush(n=None, upto=None):
        k = 0
        while pending and (n is None or k < n):
            if upto is not None and not any(u in pending for u in upto): break
            u = pending.pop(0); issue_unit(u, sched["slot"][u]); k += 1
    def slot_of(u): return sched["slot"][u] * SLOT
    def barrier(needs=(), frees=(), maxb=None):
        flush(upto=list(needs)) if needs else None
        gl.wait_vm([f"{k}{i}" for (k, i) in needs])
        g.wait_vm([f"{k}{i}" for (k, i) in needs])
        el("s_barrier")
        e("s_barrier")
        for u in frees: sched["free"].append(sched["slot"][u])
        alloc()
        flush(n=OPT["maxb"] if maxb is None else maxb)
    if DEBUG.get("tl"): el("s_memtime s[62:63]")
    alloc()
    if OPT["cissue"]:
        for u in [u for u in pending if u in cunits]:
            pending.remove(u); issue_unit(u, sched["slot"][u])
        flush(n=2)
    else:
        flush(n=5)
    if DEBUG.get("tl"): el("s_memtime s[64:65]")
    assert [sched["slot"][("x", i)] for i in range(4)] == [0, 1, 2, 3]

    T = V_T
    hi, p = T, T + 1
    e(f"v_lshrrev_b32 v{hi}, 5, v{V_LANE}")
    e(f"v_and_b32 v{p}, 31, v{V_LANE}")
    e(f"v_lshlrev_b32 v{V_XA}, 4, v{V_LANE}")
    e(f"v_and_b32 v{T+2}, 15, v{p}")
    e(f"v_xor_b32 v{T+2}, v{T+2}, v{hi}")
    e(f"v_lshlrev_b32 v{V_KA}, 4, v{T+2}")
    e(f"s_lshl_b32 s3, s{S_QI}, 15")
    e(f"v_lshl_add_u32 v{V_KA+1}, v{p}, 10, s3")
    rr, dck = T + 2, T + 3
    e(f"v_bfe_u32 v{rr}, v{V_LANE}, 2, 2")
    e(f"v_bfe_u32 v{T+4}, v{V_LANE}, 4, 1")
    e(f"v_and_b32 v{T+5}, 1, v{V_LANE}")
    e(f"v_bfe_u32 v{T+6}, v{V_LANE}, 1, 1")
    e(f"v_lshlrev_b32 v{T+4}, 2, v{T+4}")
    e(f"v_lshlrev_b32 v{T+5}, 1, v{T+5}")
    e(f"v_or3_b32 v{dck}, v{T+4}, v{T+5}, v{T+6}")
    e(f"v_lshlrev_b32 v{dck}, 3, v{dck}")
    e(f"v_lshl_add_u32 v{T+4}, v{hi}, 3, v{rr}")
    e(f"v_lshl_add_u32 v{T+5}, v{T+4}, 9, v{dck}")
    e(f"v_lshl_add_u32 v{T+5}, v{rr}, 6, v{T+5}")
    e(f"s_lshl_b32 s48, s{S_J}, 8")
    e(f"v_add_u32 v{T+6}, s48, v{T+5}")
    e("s_xor_b32 s48, s48, 256")
    e(f"v_add_u32 v{T+7}, s48, v{T+5}")
    for t in range(4):
        e(f"v_xor_b32 v{V_VA+t}, {t<<6}, v{T+6}")
        e(f"v_xor_b32 v{V_VA+4+t}, {t<<6}, v{T+7}")
        e(f"v_xor_b32 v{V_WA+t}, {t<<6}, v{T+6}")
    e(f"v_lshl_add_u32 v{T+5}, v{T+4}, 7, v{dck}")
    e(f"v_lshrrev_b32 v{T+6}, 1, v{rr}")
    e(f"v_xor_b32 v{T+6}, s{S_J}, v{T+6}")
    e(f"v_lshl_add_u32 v{V_OA}, v{T+6}, 6, v{T+5}")
    stamp(g, "start")
    if DEBUG.get("tl"):
        gl.wait_vm(["x0"])
        el("s_memtime s[66:67]")
        gl.wait_vm(["x3"])
        el("s_memtime s[68:69]")
    barrier(needs=[("x", i) for i in range(4)])
    if DEBUG.get("t1"): stamp(g, "xbar")
    e(f"s_lshl_b32 s37, s{S_C0}, 1")
    for kk in range(28):
        e(f"s_add_u32 s3, s37, {kk}")
        e("s_sub_u32 s48, s3, 28")
        e("s_cmp_ge_u32 s3, 28")
        e("s_cselect_b32 s3, s48, s3")
        e("s_lshl_b32 s3, s3, 5")
        e(f"v_xor_b32 v{V_KA+2+(kk&3)}, s3, v{V_KA}")
        e(f"v_add_u32 v{V_KA+2+(kk&3)}, v{V_KA+2+(kk&3)}, v{V_KA+1}")
        e(f"ds_read_b128 {vr(BIGA+4*kk)}, v{V_KA+2+(kk&3)}")
        if kk % 12 == 11: e("s_waitcnt lgkmcnt(0)")
    e("s_waitcnt lgkmcnt(0)")
    e(f"v_and_b32 v{T+2}, 0x13, v{p}")
    e(f"v_and_b32 v{T+3}, 8, v{p}")
    e(f"v_lshrrev_b32 v{T+3}, 1, v{T+3}")
    e(f"v_and_b32 v{T+4}, 4, v{p}")
    e(f"v_lshlrev_b32 v{T+4}, 1, v{T+4}")
    e(f"v_or3_b32 v{T+2}, v{T+2}, v{T+3}, v{T+4}")
    e(f"v_and_b32 v{T+3}, 15, v{T+2}")
    e(f"v_xor_b32 v{T+3}, v{T+3}, v{hi}")
    e(f"v_lshlrev_b32 v{T+3}, 4, v{T+3}")
    e(f"v_lshl_add_u32 v{T+2}, v{T+2}, 9, v{T+3}")
    for k in range(8):
        e(f"v_xor_b32 v{V_KA+k}, {k<<5}, v{T+2}")

    bias = {"k": (0, 0), "v": (0, 0), "w": 0, "o": 0}
    def rebase_j(key, regs, b0, b1):
        o0, o1 = bias[key]
        d0, d1 = b0 - o0, b1 - o1
        if d0 == 0 and d1 == 0: return
        e(f"s_mov_b32 s49, {d1 & 0xffffffff}")
        e(f"s_cmp_eq_u32 s{S_J}, 0")
        e(f"s_cselect_b32 s3, {d0 & 0xffffffff}, s49")
        for r in regs: e(f"v_add_u32 v{r}, s3, v{r}")
        bias[key] = (b0, b1)
    def rebase(key, regs, lo, hi_):
        if lo - bias[key] < 0 or hi_ - bias[key] > 65535:
            d = lo - bias[key]
            e(f"s_mov_b32 s3, {d & 0xffffffff}")
            for r in regs: e(f"v_add_u32 v{r}, s3, v{r}")
            bias[key] = lo

    fb = {"n": 0}
    def run_steps(steps):
        n = len(steps)
        base = fb["n"]
        queue = []
        def do_reads(i):
            st = steps[i]
            if st.get("sync"): st["sync"]()
            buf = FB + 4 * ((base + i) % NB)
            for s in st["reads"](buf):
                e(s); g.ldsop(f"r{base+i}")
        for i in range(min(DEPTH, n)): do_reads(i)
        for i in range(n):
            if i + DEPTH < n: do_reads(i + DEPTH)
            g.wait_lds(f"r{base+i}")
            e(steps[i]["mfma"](FB + 4 * ((base + i) % NB)))
            if steps[i].get("post"): queue.extend(steps[i]["post"]())
            if queue:
                for s in queue.pop(0): e(s)
        while queue:
            for s in queue.pop(0): e(s)
        fb["n"] = base + n
    def mfma(acc, a, b, first=False):
        return f"v_mfma_f32_32x32x16_bf16 {vr(acc,16)}, {vr(a)}, {vr(b)}, " + ("0" if first else vr(acc,16))

    steps = []
    for c in range(14):
        for kk2 in range(2):
            for t in range(4):
                kk = 2 * c + kk2
                st = {}
                def reads(buf, c=c, kk2=kk2, t=t):
                    off = slot_of(("wq", c)) + kk2 * 8192 - bias["w"]
                    return [f"ds_read_b64_tr_b16 v[{buf}:{buf+1}], v{V_WA+t} offset:{off}",
                            f"ds_read_b64_tr_b16 v[{buf+2}:{buf+3}], v{V_WA+t} offset:{off+2048}"]
                st["reads"] = reads
                st["mfma"] = (lambda buf, t=t, kk=kk: mfma(QACC + 16 * t, buf, BIGA + 4 * kk, kk == 0))
                if kk2 == 0 and t == 0:
                    def sync(c=c):
                        fr = [("x", i) for i in range(4)] if c == 0 else ([("wq", c - 2)] if c >= 2 else [])
                        if DEBUG.get("t1") and c in (0, 1, 2, 3, 4, 6, 8, 10, 12): stamp(g, f"pre{c}")
                        barrier(needs=[("wq", c)], frees=fr)
                        if DEBUG.get("t1") and c in (0, 1, 2, 3, 4, 6, 8, 10, 12): stamp(g, f"bar{c}")
                        sb = slot_of(("wq", c))
                        rebase("w", range(V_WA, V_WA + 4), sb, sb + 8192 + 2048)
                    st["sync"] = sync
                steps.append(st)
    run_steps(steps)
    stamp(g, "p1end")
    e("s_nop 15")
    e("s_nop 3")
    for t in range(4):
        for a in range(2):
            for q in range(4):
                src = QACC + 16 * t + 8 * a + 2 * q
                e(f"v_cvt_pk_bf16_f32 v{BIGA + (2*t+a)*4 + q}, v{src}, v{src+1}")
    def xch_addr(u0, u1):
        e(f"s_mov_b32 s49, {slot_of(u1)}")
        e(f"s_cmp_eq_u32 s{S_QI}, 0")
        e(f"s_cselect_b32 s3, {slot_of(u0)}, s49")
        e(f"s_lshl_b32 s48, s{S_J}, 13")
        e("s_add_u32 s48, s48, s3")
        e(f"v_add_u32 v{T}, s48, v{V_XA}")
        e(f"v_add_u32 v{T+1}, s3, v{V_XA}")
    xch_addr(("qx", 0), ("qx", 1))
    for f in range(8):
        e(f"ds_write_b128 v{T}, {vr(BIGA+4*f)} offset:{f*1024}")
    e("s_waitcnt lgkmcnt(0)")
    barrier(frees=[("wq", 12), ("wq", 13)])
    for kk in range(16):
        e(f"ds_read_b128 {vr(BIGA+4*kk)}, v{T+1} offset:{kk*1024}")
    e("s_waitcnt lgkmcnt(0)")
    stamp(g, "qx_end")
    steps = []
    for s in range(8):
        for kk in range(16):
            st = {}
            st["reads"] = (lambda buf, kk=kk: [f"ds_read_b128 {vr(buf)}, v{V_KA+(kk&7)} offset:{(kk>>3)*256}"])
            st["mfma"] = (lambda buf, s=s, kk=kk: mfma(BIGC + 16 * s, buf, BIGA + 4 * kk, kk == 0))
            if kk == 0:
                def sync(s=s):
                    fr = [("qx", 0), ("qx", 1)] if s == 0 else ([("k", 2*s-4), ("k", 2*s-3)] if s >= 2 else [])
                    barrier(needs=[("k", 2*s), ("k", 2*s+1)], frees=fr)
                    rebase_j("k", range(V_KA, V_KA + 8), slot_of(("k", 2*s)), slot_of(("k", 2*s+1)))
                st["sync"] = sync
            steps.append(st)
    run_steps(steps)
    g.wait_lds_all()
    barrier(frees=[("k", 12), ("k", 13), ("k", 14), ("k", 15)], maxb=99)
    e("s_nop 7")
    stamp(g, "p2end")
    S = BIGC
    for i in range(64):
        a = S + 2 * i
        e(f"v_cvt_pk_bf16_f32 v{T + (i & 3)}, v{a}, v{a+1}")
        e(f"v_lshlrev_b32 v{a}, 16, v{T + (i & 3)}")
        e(f"v_and_b32 v{a+1}, 0xffff0000, v{T + (i & 3)}")
    for c4 in range(4):
        e(f"v_max_f32 v{T+c4}, v{S+32*c4}, v{S+32*c4+1}")
    for i in range(15):
        for c4 in range(4):
            a = S + 32 * c4 + 2 + 2 * i
            e(f"v_max3_f32 v{T+c4}, v{T+c4}, v{a}, v{a+1}")
    e(f"v_max3_f32 v{T}, v{T}, v{T+1}, v{T+2}")
    e(f"v_max_f32 v{T}, v{T}, v{T+3}")
    e(f"v_mov_b32 v{T+1}, v{T}")
    e("s_nop 1")
    e(f"v_permlane32_swap_b32 v{T}, v{T+1}")
    e("s_nop 1")
    e(f"v_max_f32 v{T}, v{T}, v{T+1}")
    MLOC = T
    e(f"v_mul_f32 v{T+6}, s{S_C}, v{MLOC}")
    e(f"v_sub_f32 v{T+6}, 0, v{T+6}")
    e(f"v_mov_b32 v{T+7}, v{T+6}")
    e(f"s_mov_b32 s{S_C+1}, s{S_C}") if False else None
    NMC = T + 6
    for c4 in range(4): e(f"v_mov_b32 v{T+2+c4}, 0")
    for i in range(0, 128, 4):
        for k in (0, 2): e(f"v_pk_fma_f32 v[{S+i+k}:{S+i+k+1}], v[{S+i+k}:{S+i+k+1}], s[{S_C2}:{S_C2+1}], v[{NMC}:{NMC+1}]")
        for k in range(4): e(f"v_exp_f32 v{S+i+k}, v{S+i+k}")
        if i >= 4:
            for k in (0, 2): e(f"v_pk_add_f32 v[{T+2+k}:{T+3+k}], v[{T+2+k}:{T+3+k}], v[{S+i-4+k}:{S+i-3+k}]")
    e("s_nop 0")
    for k in (0, 2): e(f"v_pk_add_f32 v[{T+2+k}:{T+3+k}], v[{T+2+k}:{T+3+k}], v[{S+124+k}:{S+125+k}]")
    e(f"v_add_f32 v{T+2}, v{T+2}, v{T+3}")
    e(f"v_add_f32 v{T+4}, v{T+4}, v{T+5}")
    e(f"v_add_f32 v{T+2}, v{T+2}, v{T+4}")
    e(f"v_mov_b32 v{T+3}, v{T+2}")
    e("s_nop 1")
    e(f"v_permlane32_swap_b32 v{T+2}, v{T+3}")
    e("s_nop 1")
    e(f"v_add_f32 v{T+2}, v{T+2}, v{T+3}")
    LLOC = T + 2
    MISC = slot_of(("st", 0))
    e(f"v_and_b32 v{T+3}, 31, v{V_LANE}")
    e(f"v_lshlrev_b32 v{T+3}, 3, v{T+3}")
    e(f"s_lshl_b32 s3, s{S_W}, 8")
    e(f"s_add_u32 s48, s3, {MISC}")
    e("s_xor_b32 s3, s3, 256")
    e(f"s_add_u32 s3, s3, {MISC}")
    e(f"v_add_u32 v{T+4}, s48, v{T+3}")
    e(f"v_add_u32 v{T+5}, s3, v{T+3}")
    e(f"ds_write_b32 v{T+4}, v{MLOC}")
    e(f"ds_write_b32 v{T+4}, v{LLOC} offset:4")
    e("s_waitcnt lgkmcnt(0)")
    barrier()
    e(f"ds_read_b64 v[{T+6}:{T+7}], v{T+5}")
    e("s_waitcnt lgkmcnt(0)")
    e(f"v_max_f32 v{T+3}, v{MLOC}, v{T+6}")
    e(f"v_sub_f32 v{T+4}, v{MLOC}, v{T+3}")
    e(f"v_sub_f32 v{T+5}, v{T+6}, v{T+3}")
    e(f"v_mul_f32 v{T+4}, s{S_C}, v{T+4}")
    e(f"v_mul_f32 v{T+5}, s{S_C}, v{T+5}")
    e(f"v_exp_f32 v{T+4}, v{T+4}")
    e(f"v_exp_f32 v{T+5}, v{T+5}")
    e("s_nop 0")
    e(f"v_mul_f32 v{T+3}, v{LLOC}, v{T+4}")
    e(f"v_fma_f32 v{T+3}, v{T+7}, v{T+5}, v{T+3}")
    e(f"v_rcp_f32 v{T+3}, v{T+3}")
    e("s_nop 0")
    e(f"v_mul_f32 v{T+3}, v{T+3}, v{T+4}")
    e(f"v_mov_b32 v{T+4}, v{T+3}")
    e(f"v_mov_b32 v{T+5}, v{T+3}")
    SC = T + 4
    for i in range(64):
        a = S + 2 * i
        e(f"v_pk_mul_f32 v[{a}:{a+1}], v[{a}:{a+1}], v[{SC}:{SC+1}]")
        if i >= 1:
            e(f"v_cvt_pk_bf16_f32 v{BIGA+i-1}, v{a-2}, v{a-1}")
    e(f"v_cvt_pk_bf16_f32 v{BIGA+63}, v{S+126}, v{S+127}")
    stamp(g, "sm_end")
    steps = []
    for s in range(8):
        for kk2 in range(2):
            for t in range(8):
                st = {}
                st["reads"] = (lambda buf, kk2=kk2, t=t: [
                    f"ds_read_b64_tr_b16 v[{buf}:{buf+1}], v{V_VA+t} offset:{kk2*8192}",
                    f"ds_read_b64_tr_b16 v[{buf+2}:{buf+3}], v{V_VA+t} offset:{kk2*8192+2048}"])
                st["mfma"] = (lambda buf, t=t, s=s, kk2=kk2: mfma(BIGC + 16 * t, buf, BIGA + 8 * s + 4 * kk2, s == 0 and kk2 == 0))
                if kk2 == 0 and t == 0:
                    def sync(s=s):
                        fr = [("st", 0)] if s == 0 else ([("v", 2*s-4), ("v", 2*s-3)] if s >= 2 else [])
                        barrier(needs=[("v", 2*s), ("v", 2*s+1)], frees=fr)
                        rebase_j("v", range(V_VA, V_VA + 8), slot_of(("v", 2*s)), slot_of(("v", 2*s+1)))
                    st["sync"] = sync
                steps.append(st)
    run_steps(steps)
    stamp(g, "p3end")
    g.wait_lds_all()
    e("s_nop 15")
    barrier()
    xs = [slot_of(("v", 12 + i)) for i in range(4)]
    e(f"s_mov_b32 s48, {xs[1]}")
    e(f"s_mov_b32 s49, {xs[3]}")
    e(f"s_cmp_eq_u32 s{S_J}, 0")
    e(f"s_cselect_b32 s37, {xs[0]}, s48")
    e(f"s_cselect_b32 s38, {xs[2]}, s49")
    e(f"s_cselect_b32 s39, s48, {xs[0]}")
    e(f"s_cselect_b32 s40, s49, {xs[2]}")
    e(f"s_cmp_eq_u32 s{S_QI}, 0")
    e("s_cselect_b32 s37, s37, s38")
    e("s_cselect_b32 s39, s39, s40")
    e(f"v_add_u32 v{T+2}, s37, v{V_XA}")
    e(f"v_add_u32 v{T+3}, s39, v{V_XA}")
    for i in range(16):
        e(f"ds_write_b128 v{T+2}, {vr(BIGC+64+4*i)} offset:{i*1024}")
    xch_addr(("ox", 0), ("ox", 1))
    e("s_waitcnt lgkmcnt(0)")
    barrier()
    for i in range(16):
        e(f"ds_read_b128 {vr(BIGC+64+4*i)}, v{T+3} offset:{i*1024}")
    for i in range(16):
        e(f"s_waitcnt lgkmcnt({15-i})")
        for r in range(4):
            e(f"v_add_f32 v{BIGC+4*i+r}, v{BIGC+4*i+r}, v{BIGC+64+4*i+r}")
    for t in range(4):
        for a in range(2):
            for q in range(4):
                src = BIGC + 16 * t + 8 * a + 2 * q
                e(f"v_cvt_pk_bf16_f32 v{BIGA + (2*t+a)*4 + q}, v{src}, v{src+1}")
    for f in range(8):
        e(f"ds_write_b128 v{T}, {vr(BIGA+4*f)} offset:{f*1024}")
    e("s_waitcnt lgkmcnt(0)")
    barrier(frees=[("v", 12), ("v", 13), ("v", 14), ("v", 15)])
    for kk in range(16):
        e(f"ds_read_b128 {vr(BIGA+4*kk)}, v{T+1} offset:{kk*1024}")
    e("s_waitcnt lgkmcnt(0)")
    stamp(g, "ox_end")
    def store_tile(tp):
        res = []
        if OPT["pbf16"]:
            for a in range(2):
                o = []
                for q in range(4):
                    src = BIGC + 16 * tp + 8 * a + 2 * q
                    o.append(f"v_cvt_pk_bf16_f32 v{BIGC + 16*tp + 8*a + q}, v{src}, v{src+1}")
                o.append(f"s_add_u32 s3, s{S_T0}, {tp}")
                o.append("s_sub_u32 s48, s3, 7")
                o.append("s_cmp_ge_u32 s3, 7")
                o.append("s_cselect_b32 s3, s48, s3")
                o.append("s_lshl_b32 s3, s3, 11")
                o.append(f"buffer_store_dwordx4 {vr(BIGC+16*tp+8*a)}, v{V_XA}, s[{S_WS}:{S_WS+3}], s3 offen offset:{a*1024} {OPT['pol_st']}")
                res.append(o)
            return res
        for gq in range(4):
            i = 4 * tp + gq
            res.append([f"s_mov_b32 s3, {tp*4096}",
                        f"buffer_store_dwordx4 {vr(BIGC+4*i)}, v{V_XA}, s[{S_WS}:{S_WS+3}], s3 offen offset:{gq*1024} {OPT['pol_st']}"])
        return res
    steps = []
    for tp in range(7):
        for c in range(16):
            def reads(buf, tp=tp, c=c):
                sb = slot_of(("wo", 2 * tp + (c >> 3)))
                rebase("o", [V_OA], sb, sb + 16384)
                off = sb + (c & 7) * 2048 - bias["o"]
                return [f"ds_read_b64_tr_b16 v[{buf}:{buf+1}], v{V_OA} offset:{off}",
                        f"ds_read_b64_tr_b16 v[{buf+2}:{buf+3}], v{V_OA} offset:{off+512}"]
            st = {"reads": reads, "mfma": (lambda buf, tp=tp, c=c: mfma(BIGC + 16 * tp, buf, BIGA + 4 * c, c == 0))}
            if c == 0:
                def sync(tp=tp):
                    fr = [("ox", 0), ("ox", 1)] if tp == 0 else ([("wo", 2*tp-4), ("wo", 2*tp-3)] if tp >= 2 else [])
                    if DEBUG.get("t4"): stamp(g, f"pre{tp}")
                    barrier(needs=[("wo", 2*tp), ("wo", 2*tp+1)], frees=fr)
                    if DEBUG.get("t4"): stamp(g, f"bar{tp}")
                st["sync"] = sync
            if tp >= 1 and c == 2:
                st["post"] = (lambda tp=tp: store_tile(tp - 1))
            steps.append(st)
    run_steps(steps)
    e("s_nop 15")
    e("s_nop 3")
    for d in store_tile(6):
        for s in d: e(s)
    stamp(g, "p4end")
    if DEBUG.get("t"): e("s_waitcnt vmcnt(0)")
    stamp(g, "end")
    stamp_dump(g)
    g.lab("attn_end")
    e("s_endpgm")
    if DEBUG.get("tl"):
        el("s_waitcnt lgkmcnt(0)")
        for i in range(5): el(f"v_mov_b32 v{64+i}, s{60+2*i}")
        el("s_lshl_b32 s3, s2, 2")
        el(f"s_add_u32 s3, s3, s{S_W}")
        el("s_lshl_b32 s3, s3, 7")
        el(f"s_add_u32 s3, s3, {(200<<20) + 64}")
        el("v_mov_b32 v100, 0")
        for i in range(5): el(f"buffer_store_dword v{64+i}, v100, s[52:55], s3 offen offset:{4*i}")
    el("s_endpgm")
    assert sched["next"] == len(order)
    return "\n".join(g.L) + "\n" + "\n".join(gl.L)

def gen_reduce_bf16(g):
    e = g.e
    g.lab("reduce_kernel")
    e("s_cmp_ge_u32 s2, 224")
    e("s_cbranch_scc1 reduce_end")
    e("s_load_dwordx2 s[4:5], s[0:1], 40")
    e("s_load_dwordx2 s[6:7], s[0:1], 56")
    e("v_and_b32 v1, 63, v0")
    e("v_lshrrev_b32 v2, 6, v0")
    e("s_nop 0")
    e("v_readfirstlane_b32 s3, v2")
    e("s_lshl_b32 s8, s2, 2")
    e("s_add_u32 s8, s8, s3")
    e("s_and_b32 s9, s8, 1")
    e("s_lshr_b32 s10, s8, 1")
    e("s_mul_i32 s11, s10, 9363")
    e("s_lshr_b32 s11, s11, 16")
    e("s_mul_i32 s12, s11, 7")
    e("s_sub_u32 s12, s10, s12")
    e("s_waitcnt lgkmcnt(0)")
    e("s_mov_b32 s16, s6")
    e("s_and_b32 s17, s7, 0xffff")
    e(f"s_mov_b32 s18, {16*16*4*14336}")
    e("s_mov_b32 s19, 0x20000")
    e("s_mov_b32 s20, s4")
    e("s_and_b32 s21, s5, 0xffff")
    e(f"s_mov_b32 s22, {8*128*448*2}")
    e("s_mov_b32 s23, 0x20000")
    e("s_lshl_b32 s13, s8, 10")
    e("v_lshlrev_b32 v3, 4, v1")
    for h in range(16):
        e(f"buffer_load_dwordx4 v[{8+4*h}:{11+4*h}], v3, s[16:19], s13 offen {OPT['pol_rd']}")
        if h < 15: e(f"s_add_u32 s13, s13, {64*14336}")
    e("s_lshr_b32 s24, s11, 1")
    e("s_lshl_b32 s24, s24, 5")
    e("s_and_b32 s25, s11, 1")
    e("s_lshl_b32 s26, s12, 1")
    e("s_add_u32 s26, s26, s25")
    e("s_lshl_b32 s26, s26, 5")
    e("s_lshl_b32 s27, s9, 4")
    e("s_add_u32 s26, s26, s27")
    e("s_mul_i32 s24, s24, 896")
    e("s_lshl_b32 s26, s26, 1")
    e("s_add_u32 s24, s24, s26")
    e("v_and_b32 v4, 31, v1")
    e("v_mul_u32_u24 v4, 896, v4")
    e("v_lshrrev_b32 v5, 5, v1")
    e("v_lshl_add_u32 v4, v5, 4, v4")
    A = 80
    for h in range(16):
        e(f"s_waitcnt vmcnt({15-h})")
        for k in range(4):
            src = 8 + 4 * h + k
            if h == 0:
                e(f"v_lshlrev_b32 v{A+2*k}, 16, v{src}")
                e(f"v_and_b32 v{A+2*k+1}, 0xffff0000, v{src}")
            else:
                e(f"v_lshlrev_b32 v{A+8}, 16, v{src}")
                e(f"v_and_b32 v{A+9}, 0xffff0000, v{src}")
                e(f"v_add_f32 v{A+2*k}, v{A+2*k}, v{A+8}")
                e(f"v_add_f32 v{A+2*k+1}, v{A+2*k+1}, v{A+9}")
    for k in range(4): e(f"v_cvt_pk_bf16_f32 v{A+12+k}, v{A+2*k}, v{A+2*k+1}")
    e(f"buffer_store_dwordx4 v[{A+12}:{A+15}], v4, s[20:23], s24 offen")
    g.lab("reduce_end")
    e("s_endpgm")

def gen_reduce(g):
    if OPT["pbf16"]: return gen_reduce_bf16(g)
    e = g.e
    g.lab("reduce_kernel")
    e("s_cmp_ge_u32 s2, 224")
    e("s_cbranch_scc1 reduce_end")
    e("s_load_dwordx2 s[4:5], s[0:1], 40")
    e("s_load_dwordx2 s[6:7], s[0:1], 56")
    e("v_and_b32 v1, 63, v0")
    e("v_lshrrev_b32 v2, 6, v0")
    e("s_nop 0")
    e("v_readfirstlane_b32 s3, v2")
    e("s_lshl_b32 s8, s2, 2")
    e("s_add_u32 s8, s8, s3")
    e("s_and_b32 s9, s8, 1")
    e("s_lshr_b32 s10, s8, 1")
    e("s_mul_i32 s11, s10, 9363")
    e("s_lshr_b32 s11, s11, 16")
    e("s_mul_i32 s12, s11, 7")
    e("s_sub_u32 s12, s10, s12")
    e("s_waitcnt lgkmcnt(0)")
    e("s_mov_b32 s16, s6")
    e("s_and_b32 s17, s7, 0xffff")
    e(f"s_mov_b32 s18, {16*16*4*28672}")
    e("s_mov_b32 s19, 0x20000")
    e("s_mov_b32 s20, s4")
    e("s_and_b32 s21, s5, 0xffff")
    e(f"s_mov_b32 s22, {8*128*448*2}")
    e("s_mov_b32 s23, 0x20000")
    e("s_mul_i32 s13, s11, 28672")
    e("s_lshl_b32 s14, s12, 2")
    e("s_lshl_b32 s15, s9, 1")
    e("s_add_u32 s14, s14, s15")
    e("s_lshl_b32 s14, s14, 10")
    e("s_add_u32 s13, s13, s14")
    e("v_lshlrev_b32 v3, 4, v1")
    for h in range(16):
        e(f"buffer_load_dwordx4 v[{8+8*h}:{11+8*h}], v3, s[16:19], s13 offen {OPT['pol_rd']}")
        e(f"buffer_load_dwordx4 v[{12+8*h}:{15+8*h}], v3, s[16:19], s13 offen offset:1024 {OPT['pol_rd']}")
        if h < 15: e(f"s_add_u32 s13, s13, {64*28672}")
    e("s_lshr_b32 s24, s11, 1")
    e("s_lshl_b32 s24, s24, 5")
    e("s_and_b32 s25, s11, 1")
    e("s_lshl_b32 s26, s12, 1")
    e("s_add_u32 s26, s26, s25")
    e("s_lshl_b32 s26, s26, 5")
    e("s_lshl_b32 s27, s9, 4")
    e("s_add_u32 s26, s26, s27")
    e("s_mul_i32 s24, s24, 896")
    e("s_lshl_b32 s26, s26, 1")
    e("s_add_u32 s24, s24, s26")
    e("v_and_b32 v4, 31, v1")
    e("v_mul_u32_u24 v4, 896, v4")
    e("v_lshrrev_b32 v5, 5, v1")
    e("v_lshl_add_u32 v4, v5, 4, v4")
    for h in range(1, 16):
        e(f"s_waitcnt vmcnt({2*(15-h)})")
        for k in range(8): e(f"v_add_f32 v{8+k}, v{8+k}, v{8+8*h+k}")
    for k in range(4): e(f"v_cvt_pk_bf16_f32 v{8+k}, v{8+2*k}, v{9+2*k}")
    e("buffer_store_dwordx4 v[8:11], v4, s[20:23], s24 offen")
    g.lab("reduce_end")
    e("s_endpgm")

def kd(name, vgpr, sgpr):
    return f""".p2align 6
.amdhsa_kernel {name}
  .amdhsa_next_free_vgpr {vgpr}
  .amdhsa_next_free_sgpr {sgpr}
  .amdhsa_accum_offset {vgpr}
  .amdhsa_group_segment_fixed_size 0
  .amdhsa_kernarg_size 64
  .amdhsa_user_sgpr_count 2
  .amdhsa_user_sgpr_kernarg_segment_ptr 1
  .amdhsa_system_sgpr_workgroup_id_x 1
.end_amdhsa_kernel
"""

def main():
    out = sys.argv[1]
    only = None
    for a in sys.argv[2:]:
        if "=" in a:
            k, v = a.split("=", 1)
            if k == "only": only = v
            elif k.startswith("pol"): OPT[k] = (v.replace("_", " ") + " ") if v else ""
            else: OPT[k] = int(v)
        else:
            DEBUG[a] = 1
    a = gen_attn()
    g2 = G(); gen_reduce(g2); r = "\n".join(g2.L)
    txt = HEADER
    if only != "reduce":
        txt += f"; @launch kernel=attn_kernel grid=(256,1,1) block=(512,1,1) lds={LDS_TOTAL}\n"
    if only != "attn":
        txt += "; @launch kernel=reduce_kernel grid=(224,1,1) block=(256,1,1) lds=0\n"
    txt += '.amdgcn_target "amdgcn-amd-amdhsa--gfx950"\n.text\n'
    txt += ".globl attn_kernel\n.p2align 8\n.type attn_kernel,@function\n" + a + "\n"
    txt += ".globl reduce_kernel\n.p2align 8\n.type reduce_kernel,@function\n" + r + "\n"
    txt += '.section .rodata,"a"\n' + kd("attn_kernel", 256, 100) + kd("reduce_kernel", 136, 32)
    open(out, "w").write(txt)
main()
```

```python
import sys

HEADER = """; Kernarg layout for this problem (64 bytes, ptrs only, base s[0:1]):
;   offset   0: d_in[0] x  shape=(8, 128, 448) dtype=bfloat16 strides=(114688, 896, 2) contiguous=True
;   offset   8: d_in[1] k_cache  shape=(8, 16, 512, 256) dtype=bfloat16 strides=(4194304, 262144, 512, 2) contiguous=True
;   offset  16: d_in[2] v_cache  shape=(8, 16, 512, 256) dtype=bfloat16 strides=(4194304, 262144, 512, 2) contiguous=True
;   offset  24: d_in[3] wq  shape=(448, 4096) dtype=bfloat16 strides=(8192, 2) contiguous=True
;   offset  32: d_in[4] wo  shape=(4096, 448) dtype=bfloat16 strides=(896, 2) contiguous=True
;   offset  56: d_ws      268435456 bytes workspace
"""
SLOT = 16384
NSLOT = 10
LDS_TOTAL = SLOT * NSLOT
DEBUG = {}
OPT = {"pol_kv": "nt ", "pol_w": "", "pol_x": "", "pol_st": "", "pol_rd": "", "depth": 5, "early_k": 1, "wq_first": 4, "tm": 6, "prio": 0, "pbf16": 1, "maxb": 2, "rot_o": 1, "rot_q": 1, "cissue": 1, "tlbw": 0}

class G:
    def __init__(self):
        self.L = []
        self.vml = []
        self.lds = []
    def e(self, s): self.L.append("    " + s)
    def lab(self, s): self.L.append(s + ":")
    def vm(self, tag): self.vml.append(tag)
    def wait_vm(self, tags):
        idx = [i for i, t in enumerate(self.vml) if t in tags]
        if not idx: return
        n = len(self.vml) - 1 - idx[-1]
        assert n <= 63
        self.e(f"s_waitcnt vmcnt({n})")
        self.vml = self.vml[len(self.vml) - n:] if n > 0 else []
    def ldsop(self, tag): self.lds.append(tag)
    def wait_lds(self, tag):
        idx = [i for i, t in enumerate(self.lds) if t == tag]
        if not idx: return
        n = len(self.lds) - 1 - idx[-1]
        assert n <= 15, n
        self.e(f"s_waitcnt lgkmcnt({n})")
        self.lds = self.lds[len(self.lds) - n:] if n > 0 else []
    def wait_lds_all(self):
        if self.lds: self.e("s_waitcnt lgkmcnt(0)")
        self.lds = []

def vr(a, n=4): return f"v[{a}:{a+n-1}]"

V_LANE = 1
V_KA = 2
V_VA = 10
V_WA = 18
V_OA = 22
V_XA = 30
V_T = 32
FB = 40
NB = 6
BIGA = 64
QACC = 176
BIGC = 128
L_KD = 2
L_VD = 4
L_WD = 5
L_OD = 6
L_XD = 8
C_XD = 64
C_KD = 68
C_T = 72
S_X, S_K, S_V, S_WQ, S_WO, S_WS = 4, 8, 12, 16, 20, 24
S_W, S_QI, S_J, S_H, S_B, S_QH, S_W1K, S_WL = 28, 29, 30, 31, 32, 33, 34, 35
S_W896 = 36
S_WQOFF = 51
S_W7168 = 37
S_C2 = 42
S_T0 = 97
S_C0 = 98
S_C = 50

STAMPS = []
def stamp(g, name):
    if not DEBUG.get("t"): return
    if len(STAMPS) >= 20: return
    if DEBUG.get("t4") and name in ("p1end", "qx_end", "p2end", "sm_end"): return
    i = len(STAMPS); STAMPS.append(name)
    g.e(f"s_memtime s[{56+2*i}:{57+2*i}]")
def stamp_dump(g):
    if not DEBUG.get("t"): return
    e = g.e
    e("s_waitcnt lgkmcnt(0)")
    n = len(STAMPS)
    for i in range(n): e(f"v_mov_b32 v{64+i}, s{56+2*i}")
    e("s_lshl_b32 s3, s2, 2")
    e(f"s_add_u32 s3, s3, s{S_W}")
    e("s_lshl_b32 s3, s3, 7")
    e(f"s_add_u32 s3, s3, {200<<20}")
    e("v_mov_b32 v100, 0")
    for i in range(n): e(f"buffer_store_dword v{64+i}, v100, s[52:55], s3 offen offset:{4*i}")
    print("stamps:", len(STAMPS), STAMPS)

def gen_attn():
    g = G()
    gl = G()
    e = g.e
    el = gl.e
    DEPTH = OPT["depth"]
    g.lab("attn_kernel")
    e("s_cmp_ge_u32 s2, 256")
    e("s_cbranch_scc1 attn_end")
    e("s_load_dwordx8 s[36:43], s[0:1], 0")
    e("s_load_dwordx2 s[44:45], s[0:1], 32")
    e("s_load_dwordx2 s[46:47], s[0:1], 56")
    e(f"v_and_b32 v{V_LANE}, 63, v0")
    e(f"v_lshrrev_b32 v{V_T}, 6, v0")
    e("s_nop 0")
    e(f"v_readfirstlane_b32 s49, v{V_T}")
    e("s_and_b32 s3, s2, 7")
    e(f"s_lshr_b32 s{S_QH}, s2, 3")
    e(f"s_lshr_b32 s{S_B}, s{S_QH}, 2")
    e(f"s_lshr_b32 s{S_H}, s{S_QH}, 1")
    e(f"s_and_b32 s{S_H}, s{S_H}, 1")
    e(f"s_and_b32 s{S_QH}, s{S_QH}, 1")
    e("s_lshl_b32 s3, s3, 1")
    e(f"s_add_u32 s{S_H}, s{S_H}, s3")
    e(f"s_and_b32 s{S_W}, s49, 3")
    e(f"s_lshr_b32 s{S_QI}, s{S_W}, 1")
    e(f"s_and_b32 s{S_J}, s{S_W}, 1")
    e(f"s_lshl_b32 s{S_W1K}, s{S_W}, 10")
    e(f"s_mov_b32 s{S_WL}, s{S_J}")
    e(f"s_lshl_b32 s3, s{S_B}, 1")
    e(f"s_add_u32 s3, s3, s{S_QH}")
    e("s_mul_i32 s48, s3, 37")
    e("s_lshr_b32 s48, s48, 8")
    e("s_mul_i32 s48, s48, 7")
    e(f"s_sub_u32 s{S_T0}, s3, s48")
    if not OPT["rot_o"]: e(f"s_mov_b32 s{S_T0}, 0")
    e("s_sub_u32 s48, s3, 14")
    e("s_cmp_ge_u32 s3, 14")
    e(f"s_cselect_b32 s{S_C0}, s48, s3")
    if not OPT["rot_q"]: e(f"s_mov_b32 s{S_C0}, 0")
    e("s_cmp_ge_u32 s49, 4")
    e("s_waitcnt lgkmcnt(0)")
    e("s_cbranch_scc1 attn_loader")
    e(f"s_lshl_b32 s3, s{S_H}, 4")
    e(f"s_lshl_b32 s48, s{S_B}, 1")
    e("s_add_u32 s3, s3, s48")
    e(f"s_add_u32 s3, s3, s{S_QH}")
    e("s_lshl_b32 s3, s3, 2")
    e(f"s_add_u32 s3, s3, s{S_W}")
    WB = 14336 if OPT["pbf16"] else 28672
    e(f"s_mul_i32 s3, s3, {WB}")
    if DEBUG:
        e("s_mov_b32 s52, s46")
        e("s_and_b32 s53, s47, 0xffff")
        e("s_mov_b32 s54, 0x10000000")
        e("s_mov_b32 s55, 0x20000")
    e(f"s_add_u32 s{S_WS}, s46, s3")
    e(f"s_addc_u32 s{S_WS+1}, s47, 0")
    e(f"s_and_b32 s{S_WS+1}, s{S_WS+1}, 0xffff")
    e(f"s_mov_b32 s{S_WS+2}, {WB}")
    e(f"s_mov_b32 s{S_WS+3}, 0x20000")
    e(f"s_mov_b32 s{S_C}, 0x3db8aa3b")
    e(f"s_mov_b32 s{S_C2}, 0x3db8aa3b")
    e(f"s_mov_b32 s{S_C2+1}, 0x3db8aa3b")
    e(f"s_lshl_b32 s3, s{S_B}, 1")
    e(f"s_add_u32 s3, s3, s{S_QH}")
    e("s_mul_i32 s3, s3, 57344")
    e(f"s_add_u32 s{S_X}, s36, s3")
    e(f"s_addc_u32 s{S_X+1}, s37, 0")
    e(f"s_and_b32 s{S_X+1}, s{S_X+1}, 0xffff")
    e(f"s_mov_b32 s{S_X+2}, 57344")
    e(f"s_mov_b32 s{S_X+3}, 0x20000")
    e(f"s_lshl_b32 s3, s{S_B}, 4")
    e(f"s_add_u32 s3, s3, s{S_H}")
    e("s_lshl_b32 s3, s3, 18")
    e(f"s_add_u32 s{S_K}, s38, s3")
    e(f"s_addc_u32 s{S_K+1}, s39, 0")
    e(f"s_and_b32 s{S_K+1}, s{S_K+1}, 0xffff")
    e(f"s_mov_b32 s{S_K+2}, 262144")
    e(f"s_mov_b32 s{S_K+3}, 0x20000")
    e(f"s_mul_i32 s{S_W896}, s{S_W}, 896")
    e(f"v_mov_b32 v{C_T+2}, 0x40000000")
    for k in range(4):
        e(f"s_add_u32 s3, s{S_W}, {4*k}")
        e(f"v_xor_b32 v{C_T}, s3, v{V_LANE}")
        e(f"v_lshlrev_b32 v{C_T+1}, 4, v{C_T}")
        e(f"v_cmp_gt_u32 vcc, 56, v{C_T}")
        e("s_nop 1")
        e(f"v_cndmask_b32 v{C_XD+k}, v{C_T+2}, v{C_T+1}, vcc")
    e(f"v_lshrrev_b32 v{C_T}, 5, v{V_LANE}")
    e(f"v_and_b32 v{C_T+1}, 31, v{V_LANE}")
    e(f"v_xor_b32 v{C_T+1}, v{C_T+1}, v{C_T}")
    e(f"v_lshlrev_b32 v{C_T+1}, 4, v{C_T+1}")
    e(f"v_lshl_add_u32 v{C_T+1}, v{C_T}, 9, v{C_T+1}")
    e(f"s_lshl_b32 s3, s{S_W}, 5")
    e(f"v_xor_b32 v{C_KD}, s3, v{C_T+1}")
    e(f"v_xor_b32 v{C_KD+1}, 0x80, v{C_KD}")
    gl.lab("attn_loader")
    if DEBUG.get("tl"):
        el("s_memtime s[60:61]")
        el("s_mov_b32 s52, s46")
        el("s_and_b32 s53, s47, 0xffff")
        el("s_mov_b32 s54, 0x10000000")
        el("s_mov_b32 s55, 0x20000")
    if OPT["prio"]: el(f"s_setprio {OPT['prio']}")
    el(f"s_lshl_b32 s3, s{S_B}, 1")
    el(f"s_add_u32 s3, s3, s{S_QH}")
    el("s_mul_i32 s3, s3, 57344")
    el(f"s_add_u32 s{S_X}, s36, s3")
    el(f"s_addc_u32 s{S_X+1}, s37, 0")
    el(f"s_and_b32 s{S_X+1}, s{S_X+1}, 0xffff")
    el(f"s_mov_b32 s{S_X+2}, 57344")
    el(f"s_mov_b32 s{S_X+3}, 0x20000")
    el(f"s_mov_b32 s{S_WQ}, s42")
    el(f"s_and_b32 s{S_WQ+1}, s43, 0xffff")
    el(f"s_mov_b32 s{S_WQ+2}, {448*8192}")
    el(f"s_mov_b32 s{S_WQ+3}, 0x20000")
    el(f"s_lshl_b32 s3, s{S_B}, 4")
    el(f"s_add_u32 s3, s3, s{S_H}")
    el("s_lshl_b32 s3, s3, 18")
    el(f"s_add_u32 s{S_K}, s38, s3")
    el(f"s_addc_u32 s{S_K+1}, s39, 0")
    el(f"s_and_b32 s{S_K+1}, s{S_K+1}, 0xffff")
    el(f"s_mov_b32 s{S_K+2}, 262144")
    el(f"s_mov_b32 s{S_K+3}, 0x20000")
    el(f"s_add_u32 s{S_V}, s40, s3")
    el(f"s_addc_u32 s{S_V+1}, s41, 0")
    el(f"s_and_b32 s{S_V+1}, s{S_V+1}, 0xffff")
    el(f"s_mov_b32 s{S_V+2}, 262144")
    el(f"s_mov_b32 s{S_V+3}, 0x20000")
    el(f"s_mul_i32 s3, s{S_H}, {256*896}")
    el(f"s_add_u32 s{S_WO}, s44, s3")
    el(f"s_addc_u32 s{S_WO+1}, s45, 0")
    el(f"s_and_b32 s{S_WO+1}, s{S_WO+1}, 0xffff")
    el(f"s_mov_b32 s{S_WO+2}, {256*896}")
    el(f"s_mov_b32 s{S_WO+3}, 0x20000")
    el(f"s_lshl_b32 s{S_WQOFF}, s{S_H}, 9")
    el(f"s_lshl_b32 s3, s{S_W}, 14")
    el(f"s_add_u32 s{S_WQOFF}, s{S_WQOFF}, s3")
    el(f"s_mul_i32 s{S_W896}, s{S_W}, 896")
    T = 16
    hi, p = T, T + 1
    el(f"v_lshrrev_b32 v{hi}, 5, v{V_LANE}")
    el(f"v_and_b32 v{p}, 31, v{V_LANE}")
    el(f"v_mov_b32 v{T+4}, 0x40000000")
    for k in range(4):
        el(f"s_add_u32 s3, s{S_W}, {4*k}")
        el(f"v_xor_b32 v{T+2}, s3, v{V_LANE}")
        el(f"v_lshlrev_b32 v{T+3}, 4, v{T+2}")
        el(f"v_cmp_gt_u32 vcc, 56, v{T+2}")
        el("s_nop 1")
        el(f"v_cndmask_b32 v{L_XD+k}, v{T+4}, v{T+3}, vcc")
    el(f"s_lshl_b32 s3, s{S_WL}, 1")
    el(f"v_add_u32 v{T+2}, s3, v{hi}")
    el(f"v_lshlrev_b32 v{T+2}, 2, v{T+2}")
    el(f"v_xor_b32 v{T+2}, v{p}, v{T+2}")
    el(f"v_lshlrev_b32 v{T+2}, 4, v{T+2}")
    el(f"v_lshl_add_u32 v{L_VD}, v{hi}, 9, v{T+2}")
    el(f"v_lshl_add_u32 v{L_WD}, v{hi}, 13, v{T+2}")
    el(f"v_xor_b32 v{T+2}, v{p}, v{hi}")
    el(f"v_lshlrev_b32 v{T+2}, 4, v{T+2}")
    el(f"v_lshl_add_u32 v{T+3}, v{hi}, 9, v{T+2}")
    el(f"s_lshl_b32 s3, s{S_W}, 5")
    el(f"v_xor_b32 v{L_KD}, s3, v{T+3}")
    el(f"v_xor_b32 v{L_KD+1}, 0x80, v{L_KD}")
    el(f"v_lshrrev_b32 v{T+2}, 3, v{V_LANE}")
    el(f"v_mul_u32_u24 v{T+2}, 896, v{T+2}")
    el(f"v_lshrrev_b32 v{T+3}, 2, v{V_LANE}")
    el(f"v_lshrrev_b32 v{T+5}, 4, v{V_LANE}")
    el(f"v_xor_b32 v{T+3}, v{T+3}, v{T+5}")
    el(f"v_and_b32 v{T+3}, 1, v{T+3}")
    el(f"v_lshl_add_u32 v{T+2}, v{T+3}, 6, v{T+2}")
    el(f"v_and_b32 v{T+3}, 3, v{V_LANE}")
    el(f"v_lshl_add_u32 v{L_OD}, v{T+3}, 4, v{T+2}")
    el(f"s_mul_i32 s{S_W7168}, s{S_W}, 7168")

    if OPT["tlbw"]:
        el(f"v_lshlrev_b32 v{T+2}, 12, v{V_LANE}")
        el(f"s_cmp_eq_u32 s{S_W}, 0")
        el("s_cbranch_scc0 tlbw_1")
        el(f"buffer_load_dword v{T+6}, v{T+2}, s[{S_K}:{S_K+3}], 0 offen")
        el("s_branch tlbw_done")
        gl.lab("tlbw_1")
        el(f"s_cmp_eq_u32 s{S_W}, 1")
        el("s_cbranch_scc0 tlbw_2")
        el(f"buffer_load_dword v{T+6}, v{T+2}, s[{S_V}:{S_V+3}], 0 offen")
        el("s_branch tlbw_done")
        gl.lab("tlbw_2")
        el(f"s_cmp_eq_u32 s{S_W}, 2")
        el("s_cbranch_scc0 tlbw_done")
        el(f"buffer_load_dword v{T+6}, v{T+2}, s[{S_WO}:{S_WO+3}], 0 offen")
        gl.lab("tlbw_done")
        gl.vm("tlb")
    order = [("x", i) for i in range(4)]
    nwf = OPT["wq_first"]; ek = OPT["early_k"]
    for c in range(nwf): order.append(("wq", c))
    for s in range(ek): order += [("k", 2*s), ("k", 2*s+1)]
    for c in range(nwf, 14): order.append(("wq", c))
    order += [("qx", 0), ("qx", 1)]
    for s in range(ek, 8): order += [("k", 2*s), ("k", 2*s+1)]
    order.append(("st", 0))
    for s in range(8): order += [("v", 2*s), ("v", 2*s+1)]
    order += [("ox", 0), ("ox", 1)]
    for c in range(14): order.append(("wo", c))
    sched = {"next": 0, "free": list(range(NSLOT)), "slot": {}}
    cunits = set([("x", i) for i in range(4)] + [("k", i) for i in range(2 * OPT["early_k"])]) if OPT["cissue"] else set()
    def issue_unit(u, slot):
        kind, i = u
        tag = f"{kind}{i}"
        if kind in ("qx", "st", "ox"): return
        if u in cunits:
            for k in range(4):
                lds = slot * SLOT + k * 4096
                e(f"s_add_u32 m0, s{S_W1K}, {lds}")
                if kind == "k":
                    e(f"s_add_u32 s3, s{S_W1K}, {i*16384 + k*4096}")
                    e(f"buffer_load_dwordx4 v{C_KD+(k&1)}, s[{S_K}:{S_K+3}], s3 offen {OPT['pol_kv']}lds")
                else:
                    e(f"s_add_u32 s3, s{S_W896}, {(16*i + 4*k)*896}")
                    e(f"buffer_load_dwordx4 v{C_XD+k}, s[{S_X}:{S_X+3}], s3 offen {OPT['pol_x']}lds")
                g.vm(tag)
            return
        for k in range(4):
            lds = slot * SLOT + k * 4096
            el(f"s_add_u32 m0, s{S_W1K}, {lds}")
            if kind == "k":
                el(f"s_add_u32 s3, s{S_W1K}, {i*16384 + k*4096}")
                el(f"buffer_load_dwordx4 v{L_KD+(k&1)}, s[{S_K}:{S_K+3}], s3 offen {OPT['pol_kv']}lds")
            elif kind == "v":
                el(f"s_add_u32 s3, s{S_W1K}, {i*16384 + k*4096}")
                el(f"buffer_load_dwordx4 v{L_VD}, s[{S_V}:{S_V+3}], s3 offen {OPT['pol_kv']}lds")
            elif kind == "wq":
                if k == 0:
                    el(f"s_add_u32 s39, s{S_C0}, {i}")
                    el("s_sub_u32 s40, s39, 14")
                    el("s_cmp_ge_u32 s39, 14")
                    el("s_cselect_b32 s39, s40, s39")
                    el("s_lshl_b32 s39, s39, 18")
                    el(f"s_add_u32 s38, s39, s{S_WQOFF}")
                    el(f"s_add_u32 m0, s{S_W1K}, {lds}")
                el(f"s_add_u32 s3, s38, {k*65536}")
                el(f"buffer_load_dwordx4 v{L_WD}, s[{S_WQ}:{S_WQ+3}], s3 offen {OPT['pol_w']}lds")
            elif kind == "wo":
                if k == 0:
                    el(f"s_add_u32 s39, s{S_T0}, {i>>1}")
                    el("s_sub_u32 s40, s39, 7")
                    el("s_cmp_ge_u32 s39, 7")
                    el("s_cselect_b32 s39, s40, s39")
                    el("s_lshl_b32 s39, s39, 7")
                    el(f"s_add_u32 s38, s39, s{S_W7168}")
                    el(f"s_add_u32 m0, s{S_W1K}, {lds}")
                el(f"s_add_u32 s3, s38, {(128*(i&1) + 32*k)*896}")
                el(f"buffer_load_dwordx4 v{L_OD}, s[{S_WO}:{S_WO+3}], s3 offen {OPT['pol_w']}lds")
            elif kind == "x":
                el(f"s_add_u32 s3, s{S_W896}, {(16*i + 4*k)*896}")
                el(f"buffer_load_dwordx4 v{L_XD+k}, s[{S_X}:{S_X+3}], s3 offen {OPT['pol_x']}lds")
            gl.vm(tag)
    pending = []
    def alloc():
        while sched["free"] and sched["next"] < len(order):
            u = order[sched["next"]]; sched["next"] += 1
            s = sched["free"].pop(0)
            sched["slot"][u] = s
            if u[0] not in ("qx", "st", "ox"): pending.append(u)
    def flush(n=None, upto=None):
        k = 0
        while pending and (n is None or k < n):
            if upto is not None and not any(u in pending for u in upto): break
            u = pending.pop(0); issue_unit(u, sched["slot"][u]); k += 1
    def slot_of(u): return sched["slot"][u] * SLOT
    def barrier(needs=(), frees=(), maxb=None):
        flush(upto=list(needs)) if needs else None
        gl.wait_vm([f"{k}{i}" for (k, i) in needs])
        g.wait_vm([f"{k}{i}" for (k, i) in needs])
        el("s_barrier")
        e("s_barrier")
        for u in frees: sched["free"].append(sched["slot"][u])
        alloc()
        flush(n=OPT["maxb"] if maxb is None else maxb)
    if DEBUG.get("tl"): el("s_memtime s[62:63]")
    alloc()
    if OPT["cissue"]:
        for u in [u for u in pending if u in cunits]:
            pending.remove(u); issue_unit(u, sched["slot"][u])
        flush(n=2)
    else:
        flush(n=5)
    if DEBUG.get("tl"): el("s_memtime s[64:65]")
    assert [sched["slot"][("x", i)] for i in range(4)] == [0, 1, 2, 3]

    T = V_T
    hi, p = T, T + 1
    e(f"v_lshrrev_b32 v{hi}, 5, v{V_LANE}")
    e(f"v_and_b32 v{p}, 31, v{V_LANE}")
    e(f"v_lshlrev_b32 v{V_XA}, 4, v{V_LANE}")
    e(f"v_and_b32 v{T+2}, 15, v{p}")
    e(f"v_xor_b32 v{T+2}, v{T+2}, v{hi}")
    e(f"v_lshlrev_b32 v{V_KA}, 4, v{T+2}")
    e(f"s_lshl_b32 s3, s{S_QI}, 15")
    e(f"v_lshl_add_u32 v{V_KA+1}, v{p}, 10, s3")
    rr, dck = T + 2, T + 3
    e(f"v_bfe_u32 v{rr}, v{V_LANE}, 2, 2")
    e(f"v_bfe_u32 v{T+4}, v{V_LANE}, 4, 1")
    e(f"v_and_b32 v{T+5}, 1, v{V_LANE}")
    e(f"v_bfe_u32 v{T+6}, v{V_LANE}, 1, 1")
    e(f"v_lshlrev_b32 v{T+4}, 2, v{T+4}")
    e(f"v_lshlrev_b32 v{T+5}, 1, v{T+5}")
    e(f"v_or3_b32 v{dck}, v{T+4}, v{T+5}, v{T+6}")
    e(f"v_lshlrev_b32 v{dck}, 3, v{dck}")
    e(f"v_lshl_add_u32 v{T+4}, v{hi}, 3, v{rr}")
    e(f"v_lshl_add_u32 v{T+5}, v{T+4}, 9, v{dck}")
    e(f"v_lshl_add_u32 v{T+5}, v{rr}, 6, v{T+5}")
    e(f"s_lshl_b32 s48, s{S_J}, 8")
    e(f"v_add_u32 v{T+6}, s48, v{T+5}")
    e("s_xor_b32 s48, s48, 256")
    e(f"v_add_u32 v{T+7}, s48, v{T+5}")
    for t in range(4):
        e(f"v_xor_b32 v{V_VA+t}, {t<<6}, v{T+6}")
        e(f"v_xor_b32 v{V_VA+4+t}, {t<<6}, v{T+7}")
        e(f"v_xor_b32 v{V_WA+t}, {t<<6}, v{T+6}")
    e(f"v_lshl_add_u32 v{T+5}, v{T+4}, 7, v{dck}")
    e(f"v_lshrrev_b32 v{T+6}, 1, v{rr}")
    e(f"v_xor_b32 v{T+6}, s{S_J}, v{T+6}")
    e(f"v_lshl_add_u32 v{V_OA}, v{T+6}, 6, v{T+5}")
    stamp(g, "start")
    if DEBUG.get("tl"):
        gl.wait_vm(["x0"])
        el("s_memtime s[66:67]")
        gl.wait_vm(["x3"])
        el("s_memtime s[68:69]")
    barrier(needs=[("x", i) for i in range(4)])
    if DEBUG.get("t1"): stamp(g, "xbar")
    e(f"s_lshl_b32 s37, s{S_C0}, 1")
    for kk in range(28):
        e(f"s_add_u32 s3, s37, {kk}")
        e("s_sub_u32 s48, s3, 28")
        e("s_cmp_ge_u32 s3, 28")
        e("s_cselect_b32 s3, s48, s3")
        e("s_lshl_b32 s3, s3, 5")
        e(f"v_xor_b32 v{V_KA+2+(kk&3)}, s3, v{V_KA}")
        e(f"v_add_u32 v{V_KA+2+(kk&3)}, v{V_KA+2+(kk&3)}, v{V_KA+1}")
        e(f"ds_read_b128 {vr(BIGA+4*kk)}, v{V_KA+2+(kk&3)}")
        if kk % 12 == 11: e("s_waitcnt lgkmcnt(0)")
    e("s_waitcnt lgkmcnt(0)")
    e(f"v_and_b32 v{T+2}, 0x13, v{p}")
    e(f"v_and_b32 v{T+3}, 8, v{p}")
    e(f"v_lshrrev_b32 v{T+3}, 1, v{T+3}")
    e(f"v_and_b32 v{T+4}, 4, v{p}")
    e(f"v_lshlrev_b32 v{T+4}, 1, v{T+4}")
    e(f"v_or3_b32 v{T+2}, v{T+2}, v{T+3}, v{T+4}")
    e(f"v_and_b32 v{T+3}, 15, v{T+2}")
    e(f"v_xor_b32 v{T+3}, v{T+3}, v{hi}")
    e(f"v_lshlrev_b32 v{T+3}, 4, v{T+3}")
    e(f"v_lshl_add_u32 v{T+2}, v{T+2}, 9, v{T+3}")
    for k in range(8):
        e(f"v_xor_b32 v{V_KA+k}, {k<<5}, v{T+2}")

    bias = {"k": (0, 0), "v": (0, 0), "w": 0, "o": 0}
    def rebase_j(key, regs, b0, b1):
        o0, o1 = bias[key]
        d0, d1 = b0 - o0, b1 - o1
        if d0 == 0 and d1 == 0: return
        e(f"s_mov_b32 s49, {d1 & 0xffffffff}")
        e(f"s_cmp_eq_u32 s{S_J}, 0")
        e(f"s_cselect_b32 s3, {d0 & 0xffffffff}, s49")
        for r in regs: e(f"v_add_u32 v{r}, s3, v{r}")
        bias[key] = (b0, b1)
    def rebase(key, regs, lo, hi_):
        if lo - bias[key] < 0 or hi_ - bias[key] > 65535:
            d = lo - bias[key]
            e(f"s_mov_b32 s3, {d & 0xffffffff}")
            for r in regs: e(f"v_add_u32 v{r}, s3, v{r}")
            bias[key] = lo

    fb = {"n": 0}
    def run_steps(steps):
        n = len(steps)
        base = fb["n"]
        queue = []
        def do_reads(i):
            st = steps[i]
            if st.get("sync"): st["sync"]()
            buf = FB + 4 * ((base + i) % NB)
            for s in st["reads"](buf):
                e(s); g.ldsop(f"r{base+i}")
        for i in range(min(DEPTH, n)): do_reads(i)
        for i in range(n):
            if i + DEPTH < n: do_reads(i + DEPTH)
            g.wait_lds(f"r{base+i}")
            e(steps[i]["mfma"](FB + 4 * ((base + i) % NB)))
            if steps[i].get("post"): queue.extend(steps[i]["post"]())
            if queue:
                for s in queue.pop(0): e(s)
        while queue:
            for s in queue.pop(0): e(s)
        fb["n"] = base + n
    def mfma(acc, a, b, first=False):
        return f"v_mfma_f32_32x32x16_bf16 {vr(acc,16)}, {vr(a)}, {vr(b)}, " + ("0" if first else vr(acc,16))

    steps = []
    for c in range(14):
        for kk2 in range(2):
            for t in range(4):
                kk = 2 * c + kk2
                st = {}
                def reads(buf, c=c, kk2=kk2, t=t):
                    off = slot_of(("wq", c)) + kk2 * 8192 - bias["w"]
                    return [f"ds_read_b64_tr_b16 v[{buf}:{buf+1}], v{V_WA+t} offset:{off}",
                            f"ds_read_b64_tr_b16 v[{buf+2}:{buf+3}], v{V_WA+t} offset:{off+2048}"]
                st["reads"] = reads
                st["mfma"] = (lambda buf, t=t, kk=kk: mfma(QACC + 16 * t, buf, BIGA + 4 * kk, kk == 0))
                if kk2 == 0 and t == 0:
                    def sync(c=c):
                        fr = [("x", i) for i in range(4)] if c == 0 else ([("wq", c - 2)] if c >= 2 else [])
                        if DEBUG.get("t1") and c in (0, 1, 2, 3, 4, 6, 8, 10, 12): stamp(g, f"pre{c}")
                        barrier(needs=[("wq", c)], frees=fr)
                        if DEBUG.get("t1") and c in (0, 1, 2, 3, 4, 6, 8, 10, 12): stamp(g, f"bar{c}")
                        sb = slot_of(("wq", c))
                        rebase("w", range(V_WA, V_WA + 4), sb, sb + 8192 + 2048)
                    st["sync"] = sync
                steps.append(st)
    run_steps(steps)
    stamp(g, "p1end")
    e("s_nop 15")
    e("s_nop 3")
    for t in range(4):
        for a in range(2):
            for q in range(4):
                src = QACC + 16 * t + 8 * a + 2 * q
                e(f"v_cvt_pk_bf16_f32 v{BIGA + (2*t+a)*4 + q}, v{src}, v{src+1}")
    def xch_addr(u0, u1):
        e(f"s_mov_b32 s49, {slot_of(u1)}")
        e(f"s_cmp_eq_u32 s{S_QI}, 0")
        e(f"s_cselect_b32 s3, {slot_of(u0)}, s49")
        e(f"s_lshl_b32 s48, s{S_J}, 13")
        e("s_add_u32 s48, s48, s3")
        e(f"v_add_u32 v{T}, s48, v{V_XA}")
        e(f"v_add_u32 v{T+1}, s3, v{V_XA}")
    xch_addr(("qx", 0), ("qx", 1))
    for f in range(8):
        e(f"ds_write_b128 v{T}, {vr(BIGA+4*f)} offset:{f*1024}")
    e("s_waitcnt lgkmcnt(0)")
    barrier(frees=[("wq", 12), ("wq", 13)])
    for kk in range(16):
        e(f"ds_read_b128 {vr(BIGA+4*kk)}, v{T+1} offset:{kk*1024}")
    e("s_waitcnt lgkmcnt(0)")
    stamp(g, "qx_end")
    steps = []
    for s in range(8):
        for kk in range(16):
            st = {}
            st["reads"] = (lambda buf, kk=kk: [f"ds_read_b128 {vr(buf)}, v{V_KA+(kk&7)} offset:{(kk>>3)*256}"])
            st["mfma"] = (lambda buf, s=s, kk=kk: mfma(BIGC + 16 * s, buf, BIGA + 4 * kk, kk == 0))
            if kk == 0:
                def sync(s=s):
                    fr = [("qx", 0), ("qx", 1)] if s == 0 else ([("k", 2*s-4), ("k", 2*s-3)] if s >= 2 else [])
                    barrier(needs=[("k", 2*s), ("k", 2*s+1)], frees=fr)
                    rebase_j("k", range(V_KA, V_KA + 8), slot_of(("k", 2*s)), slot_of(("k", 2*s+1)))
                st["sync"] = sync
            steps.append(st)
    run_steps(steps)
    g.wait_lds_all()
    barrier(frees=[("k", 12), ("k", 13), ("k", 14), ("k", 15)], maxb=99)
    e("s_nop 7")
    stamp(g, "p2end")
    S = BIGC
    for i in range(64):
        a = S + 2 * i
        e(f"v_cvt_pk_bf16_f32 v{T + (i & 3)}, v{a}, v{a+1}")
        e(f"v_lshlrev_b32 v{a}, 16, v{T + (i & 3)}")
        e(f"v_and_b32 v{a+1}, 0xffff0000, v{T + (i & 3)}")
    for c4 in range(4):
        e(f"v_max_f32 v{T+c4}, v{S+32*c4}, v{S+32*c4+1}")
    for i in range(15):
        for c4 in range(4):
            a = S + 32 * c4 + 2 + 2 * i
            e(f"v_max3_f32 v{T+c4}, v{T+c4}, v{a}, v{a+1}")
    e(f"v_max3_f32 v{T}, v{T}, v{T+1}, v{T+2}")
    e(f"v_max_f32 v{T}, v{T}, v{T+3}")
    e(f"v_mov_b32 v{T+1}, v{T}")
    e("s_nop 1")
    e(f"v_permlane32_swap_b32 v{T}, v{T+1}")
    e("s_nop 1")
    e(f"v_max_f32 v{T}, v{T}, v{T+1}")
    MLOC = T
    e(f"v_mul_f32 v{T+6}, s{S_C}, v{MLOC}")
    e(f"v_sub_f32 v{T+6}, 0, v{T+6}")
    e(f"v_mov_b32 v{T+7}, v{T+6}")
    e(f"s_mov_b32 s{S_C+1}, s{S_C}") if False else None
    NMC = T + 6
    for c4 in range(4): e(f"v_mov_b32 v{T+2+c4}, 0")
    for i in range(0, 128, 4):
        for k in (0, 2): e(f"v_pk_fma_f32 v[{S+i+k}:{S+i+k+1}], v[{S+i+k}:{S+i+k+1}], s[{S_C2}:{S_C2+1}], v[{NMC}:{NMC+1}]")
        for k in range(4): e(f"v_exp_f32 v{S+i+k}, v{S+i+k}")
        if i >= 4:
            for k in (0, 2): e(f"v_pk_add_f32 v[{T+2+k}:{T+3+k}], v[{T+2+k}:{T+3+k}], v[{S+i-4+k}:{S+i-3+k}]")
    e("s_nop 0")
    for k in (0, 2): e(f"v_pk_add_f32 v[{T+2+k}:{T+3+k}], v[{T+2+k}:{T+3+k}], v[{S+124+k}:{S+125+k}]")
    e(f"v_add_f32 v{T+2}, v{T+2}, v{T+3}")
    e(f"v_add_f32 v{T+4}, v{T+4}, v{T+5}")
    e(f"v_add_f32 v{T+2}, v{T+2}, v{T+4}")
    e(f"v_mov_b32 v{T+3}, v{T+2}")
    e("s_nop 1")
    e(f"v_permlane32_swap_b32 v{T+2}, v{T+3}")
    e("s_nop 1")
    e(f"v_add_f32 v{T+2}, v{T+2}, v{T+3}")
    LLOC = T + 2
    MISC = slot_of(("st", 0))
    e(f"v_and_b32 v{T+3}, 31, v{V_LANE}")
    e(f"v_lshlrev_b32 v{T+3}, 3, v{T+3}")
    e(f"s_lshl_b32 s3, s{S_W}, 8")
    e(f"s_add_u32 s48, s3, {MISC}")
    e("s_xor_b32 s3, s3, 256")
    e(f"s_add_u32 s3, s3, {MISC}")
    e(f"v_add_u32 v{T+4}, s48, v{T+3}")
    e(f"v_add_u32 v{T+5}, s3, v{T+3}")
    e(f"ds_write_b32 v{T+4}, v{MLOC}")
    e(f"ds_write_b32 v{T+4}, v{LLOC} offset:4")
    e("s_waitcnt lgkmcnt(0)")
    barrier()
    e(f"ds_read_b64 v[{T+6}:{T+7}], v{T+5}")
    e("s_waitcnt lgkmcnt(0)")
    e(f"v_max_f32 v{T+3}, v{MLOC}, v{T+6}")
    e(f"v_sub_f32 v{T+4}, v{MLOC}, v{T+3}")
    e(f"v_sub_f32 v{T+5}, v{T+6}, v{T+3}")
    e(f"v_mul_f32 v{T+4}, s{S_C}, v{T+4}")
    e(f"v_mul_f32 v{T+5}, s{S_C}, v{T+5}")
    e(f"v_exp_f32 v{T+4}, v{T+4}")
    e(f"v_exp_f32 v{T+5}, v{T+5}")
    e("s_nop 0")
    e(f"v_mul_f32 v{T+3}, v{LLOC}, v{T+4}")
    e(f"v_fma_f32 v{T+3}, v{T+7}, v{T+5}, v{T+3}")
    e(f"v_rcp_f32 v{T+3}, v{T+3}")
    e("s_nop 0")
    e(f"v_mul_f32 v{T+3}, v{T+3}, v{T+4}")
    e(f"v_mov_b32 v{T+4}, v{T+3}")
    e(f"v_mov_b32 v{T+5}, v{T+3}")
    SC = T + 4
    for i in range(64):
        a = S + 2 * i
        e(f"v_pk_mul_f32 v[{a}:{a+1}], v[{a}:{a+1}], v[{SC}:{SC+1}]")
        if i >= 1:
            e(f"v_cvt_pk_bf16_f32 v{BIGA+i-1}, v{a-2}, v{a-1}")
    e(f"v_cvt_pk_bf16_f32 v{BIGA+63}, v{S+126}, v{S+127}")
    stamp(g, "sm_end")
    steps = []
    for s in range(8):
        for kk2 in range(2):
            for t in range(8):
                st = {}
                st["reads"] = (lambda buf, kk2=kk2, t=t: [
                    f"ds_read_b64_tr_b16 v[{buf}:{buf+1}], v{V_VA+t} offset:{kk2*8192}",
                    f"ds_read_b64_tr_b16 v[{buf+2}:{buf+3}], v{V_VA+t} offset:{kk2*8192+2048}"])
                st["mfma"] = (lambda buf, t=t, s=s, kk2=kk2: mfma(BIGC + 16 * t, buf, BIGA + 8 * s + 4 * kk2, s == 0 and kk2 == 0))
                if kk2 == 0 and t == 0:
                    def sync(s=s):
                        fr = [("st", 0)] if s == 0 else ([("v", 2*s-4), ("v", 2*s-3)] if s >= 2 else [])
                        barrier(needs=[("v", 2*s), ("v", 2*s+1)], frees=fr)
                        rebase_j("v", range(V_VA, V_VA + 8), slot_of(("v", 2*s)), slot_of(("v", 2*s+1)))
                    st["sync"] = sync
                steps.append(st)
    run_steps(steps)
    stamp(g, "p3end")
    g.wait_lds_all()
    e("s_nop 15")
    barrier()
    xs = [slot_of(("v", 12 + i)) for i in range(4)]
    e(f"s_mov_b32 s48, {xs[1]}")
    e(f"s_mov_b32 s49, {xs[3]}")
    e(f"s_cmp_eq_u32 s{S_J}, 0")
    e(f"s_cselect_b32 s37, {xs[0]}, s48")
    e(f"s_cselect_b32 s38, {xs[2]}, s49")
    e(f"s_cselect_b32 s39, s48, {xs[0]}")
    e(f"s_cselect_b32 s40, s49, {xs[2]}")
    e(f"s_cmp_eq_u32 s{S_QI}, 0")
    e("s_cselect_b32 s37, s37, s38")
    e("s_cselect_b32 s39, s39, s40")
    e(f"v_add_u32 v{T+2}, s37, v{V_XA}")
    e(f"v_add_u32 v{T+3}, s39, v{V_XA}")
    for i in range(16):
        e(f"ds_write_b128 v{T+2}, {vr(BIGC+64+4*i)} offset:{i*1024}")
    xch_addr(("ox", 0), ("ox", 1))
    e("s_waitcnt lgkmcnt(0)")
    barrier()
    for i in range(16):
        e(f"ds_read_b128 {vr(BIGC+64+4*i)}, v{T+3} offset:{i*1024}")
    for i in range(16):
        e(f"s_waitcnt lgkmcnt({15-i})")
        for r in range(4):
            e(f"v_add_f32 v{BIGC+4*i+r}, v{BIGC+4*i+r}, v{BIGC+64+4*i+r}")
    for t in range(4):
        for a in range(2):
            for q in range(4):
                src = BIGC + 16 * t + 8 * a + 2 * q
                e(f"v_cvt_pk_bf16_f32 v{BIGA + (2*t+a)*4 + q}, v{src}, v{src+1}")
    for f in range(8):
        e(f"ds_write_b128 v{T}, {vr(BIGA+4*f)} offset:{f*1024}")
    e("s_waitcnt lgkmcnt(0)")
    barrier(frees=[("v", 12), ("v", 13), ("v", 14), ("v", 15)])
    for kk in range(16):
        e(f"ds_read_b128 {vr(BIGA+4*kk)}, v{T+1} offset:{kk*1024}")
    e("s_waitcnt lgkmcnt(0)")
    stamp(g, "ox_end")
    def store_tile(tp):
        res = []
        if OPT["pbf16"]:
            for a in range(2):
                o = []
                for q in range(4):
                    src = BIGC + 16 * tp + 8 * a + 2 * q
                    o.append(f"v_cvt_pk_bf16_f32 v{BIGC + 16*tp + 8*a + q}, v{src}, v{src+1}")
                o.append(f"s_add_u32 s3, s{S_T0}, {tp}")
                o.append("s_sub_u32 s48, s3, 7")
                o.append("s_cmp_ge_u32 s3, 7")
                o.append("s_cselect_b32 s3, s48, s3")
                o.append("s_lshl_b32 s3, s3, 11")
                o.append(f"buffer_store_dwordx4 {vr(BIGC+16*tp+8*a)}, v{V_XA}, s[{S_WS}:{S_WS+3}], s3 offen offset:{a*1024} {OPT['pol_st']}")
                res.append(o)
            return res
        for gq in range(4):
            i = 4 * tp + gq
            res.append([f"s_mov_b32 s3, {tp*4096}",
                        f"buffer_store_dwordx4 {vr(BIGC+4*i)}, v{V_XA}, s[{S_WS}:{S_WS+3}], s3 offen offset:{gq*1024} {OPT['pol_st']}"])
        return res
    steps = []
    for tp in range(7):
        for c in range(16):
            def reads(buf, tp=tp, c=c):
                sb = slot_of(("wo", 2 * tp + (c >> 3)))
                rebase("o", [V_OA], sb, sb + 16384)
                off = sb + (c & 7) * 2048 - bias["o"]
                return [f"ds_read_b64_tr_b16 v[{buf}:{buf+1}], v{V_OA} offset:{off}",
                        f"ds_read_b64_tr_b16 v[{buf+2}:{buf+3}], v{V_OA} offset:{off+512}"]
            st = {"reads": reads, "mfma": (lambda buf, tp=tp, c=c: mfma(BIGC + 16 * tp, buf, BIGA + 4 * c, c == 0))}
            if c == 0:
                def sync(tp=tp):
                    fr = [("ox", 0), ("ox", 1)] if tp == 0 else ([("wo", 2*tp-4), ("wo", 2*tp-3)] if tp >= 2 else [])
                    if DEBUG.get("t4"): stamp(g, f"pre{tp}")
                    barrier(needs=[("wo", 2*tp), ("wo", 2*tp+1)], frees=fr)
                    if DEBUG.get("t4"): stamp(g, f"bar{tp}")
                st["sync"] = sync
            if tp >= 1 and c == 2:
                st["post"] = (lambda tp=tp: store_tile(tp - 1))
            steps.append(st)
    run_steps(steps)
    e("s_nop 15")
    e("s_nop 3")
    for d in store_tile(6):
        for s in d: e(s)
    stamp(g, "p4end")
    if DEBUG.get("t"): e("s_waitcnt vmcnt(0)")
    stamp(g, "end")
    stamp_dump(g)
    g.lab("attn_end")
    e("s_endpgm")
    if DEBUG.get("tl"):
        el("s_waitcnt lgkmcnt(0)")
        for i in range(5): el(f"v_mov_b32 v{64+i}, s{60+2*i}")
        el("s_lshl_b32 s3, s2, 2")
        el(f"s_add_u32 s3, s3, s{S_W}")
        el("s_lshl_b32 s3, s3, 7")
        el(f"s_add_u32 s3, s3, {(200<<20) + 64}")
        el("v_mov_b32 v100, 0")
        for i in range(5): el(f"buffer_store_dword v{64+i}, v100, s[52:55], s3 offen offset:{4*i}")
    el("s_endpgm")
    assert sched["next"] == len(order)
    return "\n".join(g.L) + "\n" + "\n".join(gl.L)

def gen_reduce_bf16(g):
    e = g.e
    g.lab("reduce_kernel")
    e("s_cmp_ge_u32 s2, 224")
    e("s_cbranch_scc1 reduce_end")
    e("s_load_dwordx2 s[4:5], s[0:1], 40")
    e("s_load_dwordx2 s[6:7], s[0:1], 56")
    e("v_and_b32 v1, 63, v0")
    e("v_lshrrev_b32 v2, 6, v0")
    e("s_nop 0")
    e("v_readfirstlane_b32 s3, v2")
    e("s_lshl_b32 s8, s2, 2")
    e("s_add_u32 s8, s8, s3")
    e("s_and_b32 s9, s8, 1")
    e("s_lshr_b32 s10, s8, 1")
    e("s_mul_i32 s11, s10, 9363")
    e("s_lshr_b32 s11, s11, 16")
    e("s_mul_i32 s12, s11, 7")
    e("s_sub_u32 s12, s10, s12")
    e("s_waitcnt lgkmcnt(0)")
    e("s_mov_b32 s16, s6")
    e("s_and_b32 s17, s7, 0xffff")
    e(f"s_mov_b32 s18, {16*16*4*14336}")
    e("s_mov_b32 s19, 0x20000")
    e("s_mov_b32 s20, s4")
    e("s_and_b32 s21, s5, 0xffff")
    e(f"s_mov_b32 s22, {8*128*448*2}")
    e("s_mov_b32 s23, 0x20000")
    e("s_lshl_b32 s13, s8, 10")
    e("v_lshlrev_b32 v3, 4, v1")
    for h in range(16):
        e(f"buffer_load_dwordx4 v[{8+4*h}:{11+4*h}], v3, s[16:19], s13 offen {OPT['pol_rd']}")
        if h < 15: e(f"s_add_u32 s13, s13, {64*14336}")
    e("s_lshr_b32 s24, s11, 1")
    e("s_lshl_b32 s24, s24, 5")
    e("s_and_b32 s25, s11, 1")
    e("s_lshl_b32 s26, s12, 1")
    e("s_add_u32 s26, s26, s25")
    e("s_lshl_b32 s26, s26, 5")
    e("s_lshl_b32 s27, s9, 4")
    e("s_add_u32 s26, s26, s27")
    e("s_mul_i32 s24, s24, 896")
    e("s_lshl_b32 s26, s26, 1")
    e("s_add_u32 s24, s24, s26")
    e("v_and_b32 v4, 31, v1")
    e("v_mul_u32_u24 v4, 896, v4")
    e("v_lshrrev_b32 v5, 5, v1")
    e("v_lshl_add_u32 v4, v5, 4, v4")
    A = 80
    for h in range(16):
        e(f"s_waitcnt vmcnt({15-h})")
        for k in range(4):
            src = 8 + 4 * h + k
            if h == 0:
                e(f"v_lshlrev_b32 v{A+2*k}, 16, v{src}")
                e(f"v_and_b32 v{A+2*k+1}, 0xffff0000, v{src}")
            else:
                e(f"v_lshlrev_b32 v{A+8}, 16, v{src}")
                e(f"v_and_b32 v{A+9}, 0xffff0000, v{src}")
                e(f"v_add_f32 v{A+2*k}, v{A+2*k}, v{A+8}")
                e(f"v_add_f32 v{A+2*k+1}, v{A+2*k+1}, v{A+9}")
    for k in range(4): e(f"v_cvt_pk_bf16_f32 v{A+12+k}, v{A+2*k}, v{A+2*k+1}")
    e(f"buffer_store_dwordx4 v[{A+12}:{A+15}], v4, s[20:23], s24 offen")
    g.lab("reduce_end")
    e("s_endpgm")

def gen_reduce(g):
    if OPT["pbf16"]: return gen_reduce_bf16(g)
    e = g.e
    g.lab("reduce_kernel")
    e("s_cmp_ge_u32 s2, 224")
    e("s_cbranch_scc1 reduce_end")
    e("s_load_dwordx2 s[4:5], s[0:1], 40")
    e("s_load_dwordx2 s[6:7], s[0:1], 56")
    e("v_and_b32 v1, 63, v0")
    e("v_lshrrev_b32 v2, 6, v0")
    e("s_nop 0")
    e("v_readfirstlane_b32 s3, v2")
    e("s_lshl_b32 s8, s2, 2")
    e("s_add_u32 s8, s8, s3")
    e("s_and_b32 s9, s8, 1")
    e("s_lshr_b32 s10, s8, 1")
    e("s_mul_i32 s11, s10, 9363")
    e("s_lshr_b32 s11, s11, 16")
    e("s_mul_i32 s12, s11, 7")
    e("s_sub_u32 s12, s10, s12")
    e("s_waitcnt lgkmcnt(0)")
    e("s_mov_b32 s16, s6")
    e("s_and_b32 s17, s7, 0xffff")
    e(f"s_mov_b32 s18, {16*16*4*28672}")
    e("s_mov_b32 s19, 0x20000")
    e("s_mov_b32 s20, s4")
    e("s_and_b32 s21, s5, 0xffff")
    e(f"s_mov_b32 s22, {8*128*448*2}")
    e("s_mov_b32 s23, 0x20000")
    e("s_mul_i32 s13, s11, 28672")
    e("s_lshl_b32 s14, s12, 2")
    e("s_lshl_b32 s15, s9, 1")
    e("s_add_u32 s14, s14, s15")
    e("s_lshl_b32 s14, s14, 10")
    e("s_add_u32 s13, s13, s14")
    e("v_lshlrev_b32 v3, 4, v1")
    for h in range(16):
        e(f"buffer_load_dwordx4 v[{8+8*h}:{11+8*h}], v3, s[16:19], s13 offen {OPT['pol_rd']}")
        e(f"buffer_load_dwordx4 v[{12+8*h}:{15+8*h}], v3, s[16:19], s13 offen offset:1024 {OPT['pol_rd']}")
        if h < 15: e(f"s_add_u32 s13, s13, {64*28672}")
    e("s_lshr_b32 s24, s11, 1")
    e("s_lshl_b32 s24, s24, 5")
    e("s_and_b32 s25, s11, 1")
    e("s_lshl_b32 s26, s12, 1")
    e("s_add_u32 s26, s26, s25")
    e("s_lshl_b32 s26, s26, 5")
    e("s_lshl_b32 s27, s9, 4")
    e("s_add_u32 s26, s26, s27")
    e("s_mul_i32 s24, s24, 896")
    e("s_lshl_b32 s26, s26, 1")
    e("s_add_u32 s24, s24, s26")
    e("v_and_b32 v4, 31, v1")
    e("v_mul_u32_u24 v4, 896, v4")
    e("v_lshrrev_b32 v5, 5, v1")
    e("v_lshl_add_u32 v4, v5, 4, v4")
    for h in range(1, 16):
        e(f"s_waitcnt vmcnt({2*(15-h)})")
        for k in range(8): e(f"v_add_f32 v{8+k}, v{8+k}, v{8+8*h+k}")
    for k in range(4): e(f"v_cvt_pk_bf16_f32 v{8+k}, v{8+2*k}, v{9+2*k}")
    e("buffer_store_dwordx4 v[8:11], v4, s[20:23], s24 offen")
    g.lab("reduce_end")
    e("s_endpgm")

def kd(name, vgpr, sgpr):
    return f""".p2align 6
.amdhsa_kernel {name}
  .amdhsa_next_free_vgpr {vgpr}
  .amdhsa_next_free_sgpr {sgpr}
  .amdhsa_accum_offset {vgpr}
  .amdhsa_group_segment_fixed_size 0
  .amdhsa_kernarg_size 64
  .amdhsa_user_sgpr_count 2
  .amdhsa_user_sgpr_kernarg_segment_ptr 1
  .amdhsa_system_sgpr_workgroup_id_x 1
.end_amdhsa_kernel
"""

def main():
    out = sys.argv[1]
    only = None
    for a in sys.argv[2:]:
        if "=" in a:
            k, v = a.split("=", 1)
            if k == "only": only = v
            elif k.startswith("pol"): OPT[k] = (v.replace("_", " ") + " ") if v else ""
            else: OPT[k] = int(v)
        else:
            DEBUG[a] = 1
    a = gen_attn()
    g2 = G(); gen_reduce(g2); r = "\n".join(g2.L)
    txt = HEADER
    if only != "reduce":
        txt += f"; @launch kernel=attn_kernel grid=(256,1,1) block=(512,1,1) lds={LDS_TOTAL}\n"
    if only != "attn":
        txt += "; @launch kernel=reduce_kernel grid=(224,1,1) block=(256,1,1) lds=0\n"
    txt += '.amdgcn_target "amdgcn-amd-amdhsa--gfx950"\n.text\n'
    txt += ".globl attn_kernel\n.p2align 8\n.type attn_kernel,@function\n" + a + "\n"
    txt += ".globl reduce_kernel\n.p2align 8\n.type reduce_kernel,@function\n" + r + "\n"
    txt += '.section .rodata,"a"\n' + kd("attn_kernel", 256, 100) + kd("reduce_kernel", 136, 32)
    open(out, "w").write(txt)
main()
```

```python
import sys

HEADER = """; Kernarg layout for this problem (64 bytes, ptrs only, base s[0:1]):
;   offset   0: d_in[0] x  shape=(8, 128, 448) dtype=bfloat16 strides=(114688, 896, 2) contiguous=True
;   offset   8: d_in[1] k_cache  shape=(8, 16, 512, 256) dtype=bfloat16 strides=(4194304, 262144, 512, 2) contiguous=True
;   offset  16: d_in[2] v_cache  shape=(8, 16, 512, 256) dtype=bfloat16 strides=(4194304, 262144, 512, 2) contiguous=True
;   offset  24: d_in[3] wq  shape=(448, 4096) dtype=bfloat16 strides=(8192, 2) contiguous=True
;   offset  32: d_in[4] wo  shape=(4096, 448) dtype=bfloat16 strides=(896, 2) contiguous=True
;   offset  56: d_ws      268435456 bytes workspace
"""
SLOT = 16384
NSLOT = 10
LDS_TOTAL = SLOT * NSLOT
DEBUG = {}
OPT = {"pol_kv": "nt ", "pol_w": "", "pol_x": "", "pol_st": "", "pol_rd": "", "depth": 5, "early_k": 1, "wq_first": 4, "tm": 6, "prio": 0, "pbf16": 1, "maxb": 2, "rot_o": 1, "rot_q": 1, "cissue": 1, "tlbw": 0}

class G:
    def __init__(self):
        self.L = []
        self.vml = []
        self.lds = []
    def e(self, s): self.L.append("    " + s)
    def lab(self, s): self.L.append(s + ":")
    def vm(self, tag): self.vml.append(tag)
    def wait_vm(self, tags):
        idx = [i for i, t in enumerate(self.vml) if t in tags]
        if not idx: return
        n = len(self.vml) - 1 - idx[-1]
        assert n <= 63
        self.e(f"s_waitcnt vmcnt({n})")
        self.vml = self.vml[len(self.vml) - n:] if n > 0 else []
    def ldsop(self, tag): self.lds.append(tag)
    def wait_lds(self, tag):
        idx = [i for i, t in enumerate(self.lds) if t == tag]
        if not idx: return
        n = len(self.lds) - 1 - idx[-1]
        assert n <= 15, n
        self.e(f"s_waitcnt lgkmcnt({n})")
        self.lds = self.lds[len(self.lds) - n:] if n > 0 else []
    def wait_lds_all(self):
        if self.lds: self.e("s_waitcnt lgkmcnt(0)")
        self.lds = []

def vr(a, n=4): return f"v[{a}:{a+n-1}]"

V_LANE = 1
V_KA = 2
V_VA = 10
V_WA = 18
V_OA = 22
V_XA = 30
V_T = 32
FB = 40
NB = 6
BIGA = 64
QACC = 176
BIGC = 128
L_KD = 2
L_VD = 4
L_WD = 5
L_OD = 6
L_XD = 8
C_XD = 64
C_KD = 68
C_T = 72
S_X, S_K, S_V, S_WQ, S_WO, S_WS = 4, 8, 12, 16, 20, 24
S_W, S_QI, S_J, S_H, S_B, S_QH, S_W1K, S_WL = 28, 29, 30, 31, 32, 33, 34, 35
S_W896 = 36
S_WQOFF = 51
S_W7168 = 37
S_C2 = 42
S_T0 = 97
S_C0 = 98
S_C = 50

STAMPS = []
def stamp(g, name):
    if not DEBUG.get("t"): return
    if len(STAMPS) >= 20: return
    if DEBUG.get("t4") and name in ("p1end", "qx_end", "p2end", "sm_end"): return
    i = len(STAMPS); STAMPS.append(name)
    g.e(f"s_memtime s[{56+2*i}:{57+2*i}]")
def stamp_dump(g):
    if not DEBUG.get("t"): return
    e = g.e
    e("s_waitcnt lgkmcnt(0)")
    n = len(STAMPS)
    for i in range(n): e(f"v_mov_b32 v{64+i}, s{56+2*i}")
    if DEBUG.get("dbg"):
        for i in range(1, n): e(f"v_sub_u32 v{64+i}, v{64+i}, v64")
        e("s_load_dwordx2 s[52:53], s[0:1], 48")
        e("s_waitcnt lgkmcnt(0)")
        e("s_and_b32 s53, s53, 0xffff")
        e("s_mov_b32 s54, 256")
        e("s_mov_b32 s55, 0x20000")
        e("s_lshl_b32 s3, s2, 2")
        e(f"s_add_u32 s3, s3, s{S_W}")
        e("s_cmp_eq_u32 s3, 400")
        e("s_cbranch_scc0 attn_end")
        e("v_mov_b32 v100, 0")
        for i in range(1, n): e(f"buffer_store_dword v{64+i}, v100, s[52:55], 0 offen offset:{4*i}")
        print("stamps:", len(STAMPS), STAMPS)
        return
    e("s_lshl_b32 s3, s2, 2")
    e(f"s_add_u32 s3, s3, s{S_W}")
    e("s_lshl_b32 s3, s3, 7")
    e(f"s_add_u32 s3, s3, {200<<20}")
    e("v_mov_b32 v100, 0")
    for i in range(n): e(f"buffer_store_dword v{64+i}, v100, s[52:55], s3 offen offset:{4*i}")
    print("stamps:", len(STAMPS), STAMPS)

def gen_attn():
    g = G()
    gl = G()
    e = g.e
    el = gl.e
    DEPTH = OPT["depth"]
    g.lab("attn_kernel")
    e("s_cmp_ge_u32 s2, 256")
    e("s_cbranch_scc1 attn_end")
    e("s_load_dwordx8 s[36:43], s[0:1], 0")
    e("s_load_dwordx2 s[44:45], s[0:1], 32")
    e("s_load_dwordx2 s[46:47], s[0:1], 56")
    e(f"v_and_b32 v{V_LANE}, 63, v0")
    e(f"v_lshrrev_b32 v{V_T}, 6, v0")
    e("s_nop 0")
    e(f"v_readfirstlane_b32 s49, v{V_T}")
    e("s_and_b32 s3, s2, 7")
    e(f"s_lshr_b32 s{S_QH}, s2, 3")
    e(f"s_lshr_b32 s{S_B}, s{S_QH}, 2")
    e(f"s_lshr_b32 s{S_H}, s{S_QH}, 1")
    e(f"s_and_b32 s{S_H}, s{S_H}, 1")
    e(f"s_and_b32 s{S_QH}, s{S_QH}, 1")
    e("s_lshl_b32 s3, s3, 1")
    e(f"s_add_u32 s{S_H}, s{S_H}, s3")
    e(f"s_and_b32 s{S_W}, s49, 3")
    e(f"s_lshr_b32 s{S_QI}, s{S_W}, 1")
    e(f"s_and_b32 s{S_J}, s{S_W}, 1")
    e(f"s_lshl_b32 s{S_W1K}, s{S_W}, 10")
    e(f"s_mov_b32 s{S_WL}, s{S_J}")
    e(f"s_lshl_b32 s3, s{S_B}, 1")
    e(f"s_add_u32 s3, s3, s{S_QH}")
    e("s_mul_i32 s48, s3, 37")
    e("s_lshr_b32 s48, s48, 8")
    e("s_mul_i32 s48, s48, 7")
    e(f"s_sub_u32 s{S_T0}, s3, s48")
    if not OPT["rot_o"]: e(f"s_mov_b32 s{S_T0}, 0")
    e("s_sub_u32 s48, s3, 14")
    e("s_cmp_ge_u32 s3, 14")
    e(f"s_cselect_b32 s{S_C0}, s48, s3")
    if not OPT["rot_q"]: e(f"s_mov_b32 s{S_C0}, 0")
    e("s_cmp_ge_u32 s49, 4")
    e("s_waitcnt lgkmcnt(0)")
    e("s_cbranch_scc1 attn_loader")
    e(f"s_lshl_b32 s3, s{S_H}, 4")
    e(f"s_lshl_b32 s48, s{S_B}, 1")
    e("s_add_u32 s3, s3, s48")
    e(f"s_add_u32 s3, s3, s{S_QH}")
    e("s_lshl_b32 s3, s3, 2")
    e(f"s_add_u32 s3, s3, s{S_W}")
    WB = 14336 if OPT["pbf16"] else 28672
    e(f"s_mul_i32 s3, s3, {WB}")
    if DEBUG:
        e("s_mov_b32 s52, s46")
        e("s_and_b32 s53, s47, 0xffff")
        e("s_mov_b32 s54, 0x10000000")
        e("s_mov_b32 s55, 0x20000")
    e(f"s_add_u32 s{S_WS}, s46, s3")
    e(f"s_addc_u32 s{S_WS+1}, s47, 0")
    e(f"s_and_b32 s{S_WS+1}, s{S_WS+1}, 0xffff")
    e(f"s_mov_b32 s{S_WS+2}, {WB}")
    e(f"s_mov_b32 s{S_WS+3}, 0x20000")
    e(f"s_mov_b32 s{S_C}, 0x3db8aa3b")
    e(f"s_mov_b32 s{S_C2}, 0x3db8aa3b")
    e(f"s_mov_b32 s{S_C2+1}, 0x3db8aa3b")
    e(f"s_lshl_b32 s3, s{S_B}, 1")
    e(f"s_add_u32 s3, s3, s{S_QH}")
    e("s_mul_i32 s3, s3, 57344")
    e(f"s_add_u32 s{S_X}, s36, s3")
    e(f"s_addc_u32 s{S_X+1}, s37, 0")
    e(f"s_and_b32 s{S_X+1}, s{S_X+1}, 0xffff")
    e(f"s_mov_b32 s{S_X+2}, 57344")
    e(f"s_mov_b32 s{S_X+3}, 0x20000")
    e(f"s_lshl_b32 s3, s{S_B}, 4")
    e(f"s_add_u32 s3, s3, s{S_H}")
    e("s_lshl_b32 s3, s3, 18")
    e(f"s_add_u32 s{S_K}, s38, s3")
    e(f"s_addc_u32 s{S_K+1}, s39, 0")
    e(f"s_and_b32 s{S_K+1}, s{S_K+1}, 0xffff")
    e(f"s_mov_b32 s{S_K+2}, 262144")
    e(f"s_mov_b32 s{S_K+3}, 0x20000")
    e(f"s_mul_i32 s{S_W896}, s{S_W}, 896")
    e(f"v_mov_b32 v{C_T+2}, 0x40000000")
    for k in range(4):
        e(f"s_add_u32 s3, s{S_W}, {4*k}")
        e(f"v_xor_b32 v{C_T}, s3, v{V_LANE}")
        e(f"v_lshlrev_b32 v{C_T+1}, 4, v{C_T}")
        e(f"v_cmp_gt_u32 vcc, 56, v{C_T}")
        e("s_nop 1")
        e(f"v_cndmask_b32 v{C_XD+k}, v{C_T+2}, v{C_T+1}, vcc")
    e(f"v_lshrrev_b32 v{C_T}, 5, v{V_LANE}")
    e(f"v_and_b32 v{C_T+1}, 31, v{V_LANE}")
    e(f"v_xor_b32 v{C_T+1}, v{C_T+1}, v{C_T}")
    e(f"v_lshlrev_b32 v{C_T+1}, 4, v{C_T+1}")
    e(f"v_lshl_add_u32 v{C_T+1}, v{C_T}, 9, v{C_T+1}")
    e(f"s_lshl_b32 s3, s{S_W}, 5")
    e(f"v_xor_b32 v{C_KD}, s3, v{C_T+1}")
    e(f"v_xor_b32 v{C_KD+1}, 0x80, v{C_KD}")
    gl.lab("attn_loader")
    if DEBUG.get("tl"):
        el("s_memtime s[60:61]")
        el("s_mov_b32 s52, s46")
        el("s_and_b32 s53, s47, 0xffff")
        el("s_mov_b32 s54, 0x10000000")
        el("s_mov_b32 s55, 0x20000")
    if OPT["prio"]: el(f"s_setprio {OPT['prio']}")
    el(f"s_lshl_b32 s3, s{S_B}, 1")
    el(f"s_add_u32 s3, s3, s{S_QH}")
    el("s_mul_i32 s3, s3, 57344")
    el(f"s_add_u32 s{S_X}, s36, s3")
    el(f"s_addc_u32 s{S_X+1}, s37, 0")
    el(f"s_and_b32 s{S_X+1}, s{S_X+1}, 0xffff")
    el(f"s_mov_b32 s{S_X+2}, 57344")
    el(f"s_mov_b32 s{S_X+3}, 0x20000")
    el(f"s_mov_b32 s{S_WQ}, s42")
    el(f"s_and_b32 s{S_WQ+1}, s43, 0xffff")
    el(f"s_mov_b32 s{S_WQ+2}, {448*8192}")
    el(f"s_mov_b32 s{S_WQ+3}, 0x20000")
    el(f"s_lshl_b32 s3, s{S_B}, 4")
    el(f"s_add_u32 s3, s3, s{S_H}")
    el("s_lshl_b32 s3, s3, 18")
    el(f"s_add_u32 s{S_K}, s38, s3")
    el(f"s_addc_u32 s{S_K+1}, s39, 0")
    el(f"s_and_b32 s{S_K+1}, s{S_K+1}, 0xffff")
    el(f"s_mov_b32 s{S_K+2}, 262144")
    el(f"s_mov_b32 s{S_K+3}, 0x20000")
    el(f"s_add_u32 s{S_V}, s40, s3")
    el(f"s_addc_u32 s{S_V+1}, s41, 0")
    el(f"s_and_b32 s{S_V+1}, s{S_V+1}, 0xffff")
    el(f"s_mov_b32 s{S_V+2}, 262144")
    el(f"s_mov_b32 s{S_V+3}, 0x20000")
    el(f"s_mul_i32 s3, s{S_H}, {256*896}")
    el(f"s_add_u32 s{S_WO}, s44, s3")
    el(f"s_addc_u32 s{S_WO+1}, s45, 0")
    el(f"s_and_b32 s{S_WO+1}, s{S_WO+1}, 0xffff")
    el(f"s_mov_b32 s{S_WO+2}, {256*896}")
    el(f"s_mov_b32 s{S_WO+3}, 0x20000")
    el(f"s_lshl_b32 s{S_WQOFF}, s{S_H}, 9")
    el(f"s_lshl_b32 s3, s{S_W}, 14")
    el(f"s_add_u32 s{S_WQOFF}, s{S_WQOFF}, s3")
    el(f"s_mul_i32 s{S_W896}, s{S_W}, 896")
    T = 16
    hi, p = T, T + 1
    el(f"v_lshrrev_b32 v{hi}, 5, v{V_LANE}")
    el(f"v_and_b32 v{p}, 31, v{V_LANE}")
    el(f"v_mov_b32 v{T+4}, 0x40000000")
    for k in range(4):
        el(f"s_add_u32 s3, s{S_W}, {4*k}")
        el(f"v_xor_b32 v{T+2}, s3, v{V_LANE}")
        el(f"v_lshlrev_b32 v{T+3}, 4, v{T+2}")
        el(f"v_cmp_gt_u32 vcc, 56, v{T+2}")
        el("s_nop 1")
        el(f"v_cndmask_b32 v{L_XD+k}, v{T+4}, v{T+3}, vcc")
    el(f"s_lshl_b32 s3, s{S_WL}, 1")
    el(f"v_add_u32 v{T+2}, s3, v{hi}")
    el(f"v_lshlrev_b32 v{T+2}, 2, v{T+2}")
    el(f"v_xor_b32 v{T+2}, v{p}, v{T+2}")
    el(f"v_lshlrev_b32 v{T+2}, 4, v{T+2}")
    el(f"v_lshl_add_u32 v{L_VD}, v{hi}, 9, v{T+2}")
    el(f"v_lshl_add_u32 v{L_WD}, v{hi}, 13, v{T+2}")
    el(f"v_xor_b32 v{T+2}, v{p}, v{hi}")
    el(f"v_lshlrev_b32 v{T+2}, 4, v{T+2}")
    el(f"v_lshl_add_u32 v{T+3}, v{hi}, 9, v{T+2}")
    el(f"s_lshl_b32 s3, s{S_W}, 5")
    el(f"v_xor_b32 v{L_KD}, s3, v{T+3}")
    el(f"v_xor_b32 v{L_KD+1}, 0x80, v{L_KD}")
    el(f"v_lshrrev_b32 v{T+2}, 3, v{V_LANE}")
    el(f"v_mul_u32_u24 v{T+2}, 896, v{T+2}")
    el(f"v_lshrrev_b32 v{T+3}, 2, v{V_LANE}")
    el(f"v_lshrrev_b32 v{T+5}, 4, v{V_LANE}")
    el(f"v_xor_b32 v{T+3}, v{T+3}, v{T+5}")
    el(f"v_and_b32 v{T+3}, 1, v{T+3}")
    el(f"v_lshl_add_u32 v{T+2}, v{T+3}, 6, v{T+2}")
    el(f"v_and_b32 v{T+3}, 3, v{V_LANE}")
    el(f"v_lshl_add_u32 v{L_OD}, v{T+3}, 4, v{T+2}")
    el(f"s_mul_i32 s{S_W7168}, s{S_W}, 7168")

    if OPT["tlbw"]:
        el(f"v_lshlrev_b32 v{T+2}, 12, v{V_LANE}")
        el(f"s_cmp_eq_u32 s{S_W}, 0")
        el("s_cbranch_scc0 tlbw_1")
        el(f"buffer_load_dword v{T+6}, v{T+2}, s[{S_K}:{S_K+3}], 0 offen")
        el("s_branch tlbw_done")
        gl.lab("tlbw_1")
        el(f"s_cmp_eq_u32 s{S_W}, 1")
        el("s_cbranch_scc0 tlbw_2")
        el(f"buffer_load_dword v{T+6}, v{T+2}, s[{S_V}:{S_V+3}], 0 offen")
        el("s_branch tlbw_done")
        gl.lab("tlbw_2")
        el(f"s_cmp_eq_u32 s{S_W}, 2")
        el("s_cbranch_scc0 tlbw_done")
        el(f"buffer_load_dword v{T+6}, v{T+2}, s[{S_WO}:{S_WO+3}], 0 offen")
        gl.lab("tlbw_done")
        gl.vm("tlb")
    order = [("x", i) for i in range(4)]
    nwf = OPT["wq_first"]; ek = OPT["early_k"]
    for c in range(nwf): order.append(("wq", c))
    for s in range(ek): order += [("k", 2*s), ("k", 2*s+1)]
    for c in range(nwf, 14): order.append(("wq", c))
    order += [("qx", 0), ("qx", 1)]
    for s in range(ek, 8): order += [("k", 2*s), ("k", 2*s+1)]
    order.append(("st", 0))
    for s in range(8): order += [("v", 2*s), ("v", 2*s+1)]
    order += [("ox", 0), ("ox", 1)]
    for c in range(14): order.append(("wo", c))
    sched = {"next": 0, "free": list(range(NSLOT)), "slot": {}}
    cunits = set([("x", i) for i in range(4)] + [("k", i) for i in range(2 * OPT["early_k"])]) if OPT["cissue"] else set()
    def issue_unit(u, slot):
        kind, i = u
        tag = f"{kind}{i}"
        if kind in ("qx", "st", "ox"): return
        if u in cunits:
            for k in range(4):
                lds = slot * SLOT + k * 4096
                e(f"s_add_u32 m0, s{S_W1K}, {lds}")
                if kind == "k":
                    e(f"s_add_u32 s3, s{S_W1K}, {i*16384 + k*4096}")
                    e(f"buffer_load_dwordx4 v{C_KD+(k&1)}, s[{S_K}:{S_K+3}], s3 offen {OPT['pol_kv']}lds")
                else:
                    e(f"s_add_u32 s3, s{S_W896}, {(16*i + 4*k)*896}")
                    e(f"buffer_load_dwordx4 v{C_XD+k}, s[{S_X}:{S_X+3}], s3 offen {OPT['pol_x']}lds")
                g.vm(tag)
            return
        for k in range(4):
            lds = slot * SLOT + k * 4096
            el(f"s_add_u32 m0, s{S_W1K}, {lds}")
            if kind == "k":
                el(f"s_add_u32 s3, s{S_W1K}, {i*16384 + k*4096}")
                el(f"buffer_load_dwordx4 v{L_KD+(k&1)}, s[{S_K}:{S_K+3}], s3 offen {OPT['pol_kv']}lds")
            elif kind == "v":
                el(f"s_add_u32 s3, s{S_W1K}, {i*16384 + k*4096}")
                el(f"buffer_load_dwordx4 v{L_VD}, s[{S_V}:{S_V+3}], s3 offen {OPT['pol_kv']}lds")
            elif kind == "wq":
                if k == 0:
                    el(f"s_add_u32 s39, s{S_C0}, {i}")
                    el("s_sub_u32 s40, s39, 14")
                    el("s_cmp_ge_u32 s39, 14")
                    el("s_cselect_b32 s39, s40, s39")
                    el("s_lshl_b32 s39, s39, 18")
                    el(f"s_add_u32 s38, s39, s{S_WQOFF}")
                    el(f"s_add_u32 m0, s{S_W1K}, {lds}")
                el(f"s_add_u32 s3, s38, {k*65536}")
                el(f"buffer_load_dwordx4 v{L_WD}, s[{S_WQ}:{S_WQ+3}], s3 offen {OPT['pol_w']}lds")
            elif kind == "wo":
                if k == 0:
                    el(f"s_add_u32 s39, s{S_T0}, {i>>1}")
                    el("s_sub_u32 s40, s39, 7")
                    el("s_cmp_ge_u32 s39, 7")
                    el("s_cselect_b32 s39, s40, s39")
                    el("s_lshl_b32 s39, s39, 7")
                    el(f"s_add_u32 s38, s39, s{S_W7168}")
                    el(f"s_add_u32 m0, s{S_W1K}, {lds}")
                el(f"s_add_u32 s3, s38, {(128*(i&1) + 32*k)*896}")
                el(f"buffer_load_dwordx4 v{L_OD}, s[{S_WO}:{S_WO+3}], s3 offen {OPT['pol_w']}lds")
            elif kind == "x":
                el(f"s_add_u32 s3, s{S_W896}, {(16*i + 4*k)*896}")
                el(f"buffer_load_dwordx4 v{L_XD+k}, s[{S_X}:{S_X+3}], s3 offen {OPT['pol_x']}lds")
            gl.vm(tag)
    pending = []
    def alloc():
        while sched["free"] and sched["next"] < len(order):
            u = order[sched["next"]]; sched["next"] += 1
            s = sched["free"].pop(0)
            sched["slot"][u] = s
            if u[0] not in ("qx", "st", "ox"): pending.append(u)
    def flush(n=None, upto=None):
        k = 0
        while pending and (n is None or k < n):
            if upto is not None and not any(u in pending for u in upto): break
            u = pending.pop(0); issue_unit(u, sched["slot"][u]); k += 1
    def slot_of(u): return sched["slot"][u] * SLOT
    def barrier(needs=(), frees=(), maxb=None):
        flush(upto=list(needs)) if needs else None
        gl.wait_vm([f"{k}{i}" for (k, i) in needs])
        g.wait_vm([f"{k}{i}" for (k, i) in needs])
        el("s_barrier")
        e("s_barrier")
        for u in frees: sched["free"].append(sched["slot"][u])
        alloc()
        flush(n=OPT["maxb"] if maxb is None else maxb)
    if DEBUG.get("tl"): el("s_memtime s[62:63]")
    alloc()
    if OPT["cissue"]:
        for u in [u for u in pending if u in cunits]:
            pending.remove(u); issue_unit(u, sched["slot"][u])
        flush(n=2)
    else:
        flush(n=5)
    if DEBUG.get("tl"): el("s_memtime s[64:65]")
    assert [sched["slot"][("x", i)] for i in range(4)] == [0, 1, 2, 3]

    T = V_T
    hi, p = T, T + 1
    e(f"v_lshrrev_b32 v{hi}, 5, v{V_LANE}")
    e(f"v_and_b32 v{p}, 31, v{V_LANE}")
    e(f"v_lshlrev_b32 v{V_XA}, 4, v{V_LANE}")
    e(f"v_and_b32 v{T+2}, 15, v{p}")
    e(f"v_xor_b32 v{T+2}, v{T+2}, v{hi}")
    e(f"v_lshlrev_b32 v{V_KA}, 4, v{T+2}")
    e(f"s_lshl_b32 s3, s{S_QI}, 15")
    e(f"v_lshl_add_u32 v{V_KA+1}, v{p}, 10, s3")
    rr, dck = T + 2, T + 3
    e(f"v_bfe_u32 v{rr}, v{V_LANE}, 2, 2")
    e(f"v_bfe_u32 v{T+4}, v{V_LANE}, 4, 1")
    e(f"v_and_b32 v{T+5}, 1, v{V_LANE}")
    e(f"v_bfe_u32 v{T+6}, v{V_LANE}, 1, 1")
    e(f"v_lshlrev_b32 v{T+4}, 2, v{T+4}")
    e(f"v_lshlrev_b32 v{T+5}, 1, v{T+5}")
    e(f"v_or3_b32 v{dck}, v{T+4}, v{T+5}, v{T+6}")
    e(f"v_lshlrev_b32 v{dck}, 3, v{dck}")
    e(f"v_lshl_add_u32 v{T+4}, v{hi}, 3, v{rr}")
    e(f"v_lshl_add_u32 v{T+5}, v{T+4}, 9, v{dck}")
    e(f"v_lshl_add_u32 v{T+5}, v{rr}, 6, v{T+5}")
    e(f"s_lshl_b32 s48, s{S_J}, 8")
    e(f"v_add_u32 v{T+6}, s48, v{T+5}")
    e("s_xor_b32 s48, s48, 256")
    e(f"v_add_u32 v{T+7}, s48, v{T+5}")
    for t in range(4):
        e(f"v_xor_b32 v{V_VA+t}, {t<<6}, v{T+6}")
        e(f"v_xor_b32 v{V_VA+4+t}, {t<<6}, v{T+7}")
        e(f"v_xor_b32 v{V_WA+t}, {t<<6}, v{T+6}")
    e(f"v_lshl_add_u32 v{T+5}, v{T+4}, 7, v{dck}")
    e(f"v_lshrrev_b32 v{T+6}, 1, v{rr}")
    e(f"v_xor_b32 v{T+6}, s{S_J}, v{T+6}")
    e(f"v_lshl_add_u32 v{V_OA}, v{T+6}, 6, v{T+5}")
    stamp(g, "start")
    if DEBUG.get("tl"):
        gl.wait_vm(["x0"])
        el("s_memtime s[66:67]")
        gl.wait_vm(["x3"])
        el("s_memtime s[68:69]")
    barrier(needs=[("x", i) for i in range(4)])
    if DEBUG.get("t1"): stamp(g, "xbar")
    e(f"s_lshl_b32 s37, s{S_C0}, 1")
    for kk in range(28):
        e(f"s_add_u32 s3, s37, {kk}")
        e("s_sub_u32 s48, s3, 28")
        e("s_cmp_ge_u32 s3, 28")
        e("s_cselect_b32 s3, s48, s3")
        e("s_lshl_b32 s3, s3, 5")
        e(f"v_xor_b32 v{V_KA+2+(kk&3)}, s3, v{V_KA}")
        e(f"v_add_u32 v{V_KA+2+(kk&3)}, v{V_KA+2+(kk&3)}, v{V_KA+1}")
        e(f"ds_read_b128 {vr(BIGA+4*kk)}, v{V_KA+2+(kk&3)}")
        if kk % 12 == 11: e("s_waitcnt lgkmcnt(0)")
    e("s_waitcnt lgkmcnt(0)")
    e(f"v_and_b32 v{T+2}, 0x13, v{p}")
    e(f"v_and_b32 v{T+3}, 8, v{p}")
    e(f"v_lshrrev_b32 v{T+3}, 1, v{T+3}")
    e(f"v_and_b32 v{T+4}, 4, v{p}")
    e(f"v_lshlrev_b32 v{T+4}, 1, v{T+4}")
    e(f"v_or3_b32 v{T+2}, v{T+2}, v{T+3}, v{T+4}")
    e(f"v_and_b32 v{T+3}, 15, v{T+2}")
    e(f"v_xor_b32 v{T+3}, v{T+3}, v{hi}")
    e(f"v_lshlrev_b32 v{T+3}, 4, v{T+3}")
    e(f"v_lshl_add_u32 v{T+2}, v{T+2}, 9, v{T+3}")
    for k in range(8):
        e(f"v_xor_b32 v{V_KA+k}, {k<<5}, v{T+2}")

    bias = {"k": (0, 0), "v": (0, 0), "w": 0, "o": 0}
    def rebase_j(key, regs, b0, b1):
        o0, o1 = bias[key]
        d0, d1 = b0 - o0, b1 - o1
        if d0 == 0 and d1 == 0: return
        e(f"s_mov_b32 s49, {d1 & 0xffffffff}")
        e(f"s_cmp_eq_u32 s{S_J}, 0")
        e(f"s_cselect_b32 s3, {d0 & 0xffffffff}, s49")
        for r in regs: e(f"v_add_u32 v{r}, s3, v{r}")
        bias[key] = (b0, b1)
    def rebase(key, regs, lo, hi_):
        if lo - bias[key] < 0 or hi_ - bias[key] > 65535:
            d = lo - bias[key]
            e(f"s_mov_b32 s3, {d & 0xffffffff}")
            for r in regs: e(f"v_add_u32 v{r}, s3, v{r}")
            bias[key] = lo

    fb = {"n": 0}
    def run_steps(steps):
        n = len(steps)
        base = fb["n"]
        queue = []
        def do_reads(i):
            st = steps[i]
            if st.get("sync"): st["sync"]()
            buf = FB + 4 * ((base + i) % NB)
            for s in st["reads"](buf):
                e(s); g.ldsop(f"r{base+i}")
        for i in range(min(DEPTH, n)): do_reads(i)
        for i in range(n):
            if i + DEPTH < n: do_reads(i + DEPTH)
            g.wait_lds(f"r{base+i}")
            e(steps[i]["mfma"](FB + 4 * ((base + i) % NB)))
            if steps[i].get("post"): queue.extend(steps[i]["post"]())
            if queue:
                for s in queue.pop(0): e(s)
        while queue:
            for s in queue.pop(0): e(s)
        fb["n"] = base + n
    def mfma(acc, a, b, first=False):
        return f"v_mfma_f32_32x32x16_bf16 {vr(acc,16)}, {vr(a)}, {vr(b)}, " + ("0" if first else vr(acc,16))

    steps = []
    for c in range(14):
        for kk2 in range(2):
            for t in range(4):
                kk = 2 * c + kk2
                st = {}
                def reads(buf, c=c, kk2=kk2, t=t):
                    off = slot_of(("wq", c)) + kk2 * 8192 - bias["w"]
                    return [f"ds_read_b64_tr_b16 v[{buf}:{buf+1}], v{V_WA+t} offset:{off}",
                            f"ds_read_b64_tr_b16 v[{buf+2}:{buf+3}], v{V_WA+t} offset:{off+2048}"]
                st["reads"] = reads
                st["mfma"] = (lambda buf, t=t, kk=kk: mfma(QACC + 16 * t, buf, BIGA + 4 * kk, kk == 0))
                if kk2 == 0 and t == 0:
                    def sync(c=c):
                        fr = [("x", i) for i in range(4)] if c == 0 else ([("wq", c - 2)] if c >= 2 else [])
                        if DEBUG.get("t1") and c in (0, 1, 2, 3, 4, 6, 8, 10, 12): stamp(g, f"pre{c}")
                        barrier(needs=[("wq", c)], frees=fr)
                        if DEBUG.get("t1") and c in (0, 1, 2, 3, 4, 6, 8, 10, 12): stamp(g, f"bar{c}")
                        sb = slot_of(("wq", c))
                        rebase("w", range(V_WA, V_WA + 4), sb, sb + 8192 + 2048)
                    st["sync"] = sync
                steps.append(st)
    run_steps(steps)
    stamp(g, "p1end")
    e("s_nop 15")
    e("s_nop 3")
    for t in range(4):
        for a in range(2):
            for q in range(4):
                src = QACC + 16 * t + 8 * a + 2 * q
                e(f"v_cvt_pk_bf16_f32 v{BIGA + (2*t+a)*4 + q}, v{src}, v{src+1}")
    def xch_addr(u0, u1):
        e(f"s_mov_b32 s49, {slot_of(u1)}")
        e(f"s_cmp_eq_u32 s{S_QI}, 0")
        e(f"s_cselect_b32 s3, {slot_of(u0)}, s49")
        e(f"s_lshl_b32 s48, s{S_J}, 13")
        e("s_add_u32 s48, s48, s3")
        e(f"v_add_u32 v{T}, s48, v{V_XA}")
        e(f"v_add_u32 v{T+1}, s3, v{V_XA}")
    xch_addr(("qx", 0), ("qx", 1))
    for f in range(8):
        e(f"ds_write_b128 v{T}, {vr(BIGA+4*f)} offset:{f*1024}")
    e("s_waitcnt lgkmcnt(0)")
    barrier(frees=[("wq", 12), ("wq", 13)])
    for kk in range(16):
        e(f"ds_read_b128 {vr(BIGA+4*kk)}, v{T+1} offset:{kk*1024}")
    e("s_waitcnt lgkmcnt(0)")
    stamp(g, "qx_end")
    steps = []
    for s in range(8):
        for kk in range(16):
            st = {}
            st["reads"] = (lambda buf, kk=kk: [f"ds_read_b128 {vr(buf)}, v{V_KA+(kk&7)} offset:{(kk>>3)*256}"])
            st["mfma"] = (lambda buf, s=s, kk=kk: mfma(BIGC + 16 * s, buf, BIGA + 4 * kk, kk == 0))
            if kk == 0:
                def sync(s=s):
                    fr = [("qx", 0), ("qx", 1)] if s == 0 else ([("k", 2*s-4), ("k", 2*s-3)] if s >= 2 else [])
                    barrier(needs=[("k", 2*s), ("k", 2*s+1)], frees=fr)
                    rebase_j("k", range(V_KA, V_KA + 8), slot_of(("k", 2*s)), slot_of(("k", 2*s+1)))
                st["sync"] = sync
            steps.append(st)
    run_steps(steps)
    g.wait_lds_all()
    barrier(frees=[("k", 12), ("k", 13), ("k", 14), ("k", 15)], maxb=99)
    e("s_nop 7")
    stamp(g, "p2end")
    S = BIGC
    for i in range(64):
        a = S + 2 * i
        e(f"v_cvt_pk_bf16_f32 v{T + (i & 3)}, v{a}, v{a+1}")
        e(f"v_lshlrev_b32 v{a}, 16, v{T + (i & 3)}")
        e(f"v_and_b32 v{a+1}, 0xffff0000, v{T + (i & 3)}")
    for c4 in range(4):
        e(f"v_max_f32 v{T+c4}, v{S+32*c4}, v{S+32*c4+1}")
    for i in range(15):
        for c4 in range(4):
            a = S + 32 * c4 + 2 + 2 * i
            e(f"v_max3_f32 v{T+c4}, v{T+c4}, v{a}, v{a+1}")
    e(f"v_max3_f32 v{T}, v{T}, v{T+1}, v{T+2}")
    e(f"v_max_f32 v{T}, v{T}, v{T+3}")
    e(f"v_mov_b32 v{T+1}, v{T}")
    e("s_nop 1")
    e(f"v_permlane32_swap_b32 v{T}, v{T+1}")
    e("s_nop 1")
    e(f"v_max_f32 v{T}, v{T}, v{T+1}")
    MLOC = T
    e(f"v_mul_f32 v{T+6}, s{S_C}, v{MLOC}")
    e(f"v_sub_f32 v{T+6}, 0, v{T+6}")
    e(f"v_mov_b32 v{T+7}, v{T+6}")
    e(f"s_mov_b32 s{S_C+1}, s{S_C}") if False else None
    NMC = T + 6
    for c4 in range(4): e(f"v_mov_b32 v{T+2+c4}, 0")
    for i in range(0, 128, 4):
        for k in (0, 2): e(f"v_pk_fma_f32 v[{S+i+k}:{S+i+k+1}], v[{S+i+k}:{S+i+k+1}], s[{S_C2}:{S_C2+1}], v[{NMC}:{NMC+1}]")
        for k in range(4): e(f"v_exp_f32 v{S+i+k}, v{S+i+k}")
        if i >= 4:
            for k in (0, 2): e(f"v_pk_add_f32 v[{T+2+k}:{T+3+k}], v[{T+2+k}:{T+3+k}], v[{S+i-4+k}:{S+i-3+k}]")
    e("s_nop 0")
    for k in (0, 2): e(f"v_pk_add_f32 v[{T+2+k}:{T+3+k}], v[{T+2+k}:{T+3+k}], v[{S+124+k}:{S+125+k}]")
    e(f"v_add_f32 v{T+2}, v{T+2}, v{T+3}")
    e(f"v_add_f32 v{T+4}, v{T+4}, v{T+5}")
    e(f"v_add_f32 v{T+2}, v{T+2}, v{T+4}")
    e(f"v_mov_b32 v{T+3}, v{T+2}")
    e("s_nop 1")
    e(f"v_permlane32_swap_b32 v{T+2}, v{T+3}")
    e("s_nop 1")
    e(f"v_add_f32 v{T+2}, v{T+2}, v{T+3}")
    LLOC = T + 2
    MISC = slot_of(("st", 0))
    e(f"v_and_b32 v{T+3}, 31, v{V_LANE}")
    e(f"v_lshlrev_b32 v{T+3}, 3, v{T+3}")
    e(f"s_lshl_b32 s3, s{S_W}, 8")
    e(f"s_add_u32 s48, s3, {MISC}")
    e("s_xor_b32 s3, s3, 256")
    e(f"s_add_u32 s3, s3, {MISC}")
    e(f"v_add_u32 v{T+4}, s48, v{T+3}")
    e(f"v_add_u32 v{T+5}, s3, v{T+3}")
    e(f"ds_write_b32 v{T+4}, v{MLOC}")
    e(f"ds_write_b32 v{T+4}, v{LLOC} offset:4")
    e("s_waitcnt lgkmcnt(0)")
    barrier()
    e(f"ds_read_b64 v[{T+6}:{T+7}], v{T+5}")
    e("s_waitcnt lgkmcnt(0)")
    e(f"v_max_f32 v{T+3}, v{MLOC}, v{T+6}")
    e(f"v_sub_f32 v{T+4}, v{MLOC}, v{T+3}")
    e(f"v_sub_f32 v{T+5}, v{T+6}, v{T+3}")
    e(f"v_mul_f32 v{T+4}, s{S_C}, v{T+4}")
    e(f"v_mul_f32 v{T+5}, s{S_C}, v{T+5}")
    e(f"v_exp_f32 v{T+4}, v{T+4}")
    e(f"v_exp_f32 v{T+5}, v{T+5}")
    e("s_nop 0")
    e(f"v_mul_f32 v{T+3}, v{LLOC}, v{T+4}")
    e(f"v_fma_f32 v{T+3}, v{T+7}, v{T+5}, v{T+3}")
    e(f"v_rcp_f32 v{T+3}, v{T+3}")
    e("s_nop 0")
    e(f"v_mul_f32 v{T+3}, v{T+3}, v{T+4}")
    e(f"v_mov_b32 v{T+4}, v{T+3}")
    e(f"v_mov_b32 v{T+5}, v{T+3}")
    SC = T + 4
    for i in range(64):
        a = S + 2 * i
        e(f"v_pk_mul_f32 v[{a}:{a+1}], v[{a}:{a+1}], v[{SC}:{SC+1}]")
        if i >= 1:
            e(f"v_cvt_pk_bf16_f32 v{BIGA+i-1}, v{a-2}, v{a-1}")
    e(f"v_cvt_pk_bf16_f32 v{BIGA+63}, v{S+126}, v{S+127}")
    stamp(g, "sm_end")
    steps = []
    for s in range(8):
        for kk2 in range(2):
            for t in range(8):
                st = {}
                st["reads"] = (lambda buf, kk2=kk2, t=t: [
                    f"ds_read_b64_tr_b16 v[{buf}:{buf+1}], v{V_VA+t} offset:{kk2*8192}",
                    f"ds_read_b64_tr_b16 v[{buf+2}:{buf+3}], v{V_VA+t} offset:{kk2*8192+2048}"])
                st["mfma"] = (lambda buf, t=t, s=s, kk2=kk2: mfma(BIGC + 16 * t, buf, BIGA + 8 * s + 4 * kk2, s == 0 and kk2 == 0))
                if kk2 == 0 and t == 0:
                    def sync(s=s):
                        fr = [("st", 0)] if s == 0 else ([("v", 2*s-4), ("v", 2*s-3)] if s >= 2 else [])
                        barrier(needs=[("v", 2*s), ("v", 2*s+1)], frees=fr)
                        rebase_j("v", range(V_VA, V_VA + 8), slot_of(("v", 2*s)), slot_of(("v", 2*s+1)))
                    st["sync"] = sync
                steps.append(st)
    run_steps(steps)
    stamp(g, "p3end")
    g.wait_lds_all()
    e("s_nop 15")
    barrier()
    xs = [slot_of(("v", 12 + i)) for i in range(4)]
    e(f"s_mov_b32 s48, {xs[1]}")
    e(f"s_mov_b32 s49, {xs[3]}")
    e(f"s_cmp_eq_u32 s{S_J}, 0")
    e(f"s_cselect_b32 s37, {xs[0]}, s48")
    e(f"s_cselect_b32 s38, {xs[2]}, s49")
    e(f"s_cselect_b32 s39, s48, {xs[0]}")
    e(f"s_cselect_b32 s40, s49, {xs[2]}")
    e(f"s_cmp_eq_u32 s{S_QI}, 0")
    e("s_cselect_b32 s37, s37, s38")
    e("s_cselect_b32 s39, s39, s40")
    e(f"v_add_u32 v{T+2}, s37, v{V_XA}")
    e(f"v_add_u32 v{T+3}, s39, v{V_XA}")
    for i in range(16):
        e(f"ds_write_b128 v{T+2}, {vr(BIGC+64+4*i)} offset:{i*1024}")
    xch_addr(("ox", 0), ("ox", 1))
    e("s_waitcnt lgkmcnt(0)")
    barrier()
    for i in range(16):
        e(f"ds_read_b128 {vr(BIGC+64+4*i)}, v{T+3} offset:{i*1024}")
    for i in range(16):
        e(f"s_waitcnt lgkmcnt({15-i})")
        for r in range(4):
            e(f"v_add_f32 v{BIGC+4*i+r}, v{BIGC+4*i+r}, v{BIGC+64+4*i+r}")
    for t in range(4):
        for a in range(2):
            for q in range(4):
                src = BIGC + 16 * t + 8 * a + 2 * q
                e(f"v_cvt_pk_bf16_f32 v{BIGA + (2*t+a)*4 + q}, v{src}, v{src+1}")
    for f in range(8):
        e(f"ds_write_b128 v{T}, {vr(BIGA+4*f)} offset:{f*1024}")
    e("s_waitcnt lgkmcnt(0)")
    barrier(frees=[("v", 12), ("v", 13), ("v", 14), ("v", 15)])
    for kk in range(16):
        e(f"ds_read_b128 {vr(BIGA+4*kk)}, v{T+1} offset:{kk*1024}")
    e("s_waitcnt lgkmcnt(0)")
    stamp(g, "ox_end")
    def store_tile(tp):
        res = []
        if OPT["pbf16"]:
            for a in range(2):
                o = []
                for q in range(4):
                    src = BIGC + 16 * tp + 8 * a + 2 * q
                    o.append(f"v_cvt_pk_bf16_f32 v{BIGC + 16*tp + 8*a + q}, v{src}, v{src+1}")
                o.append(f"s_add_u32 s3, s{S_T0}, {tp}")
                o.append("s_sub_u32 s48, s3, 7")
                o.append("s_cmp_ge_u32 s3, 7")
                o.append("s_cselect_b32 s3, s48, s3")
                o.append("s_lshl_b32 s3, s3, 11")
                o.append(f"buffer_store_dwordx4 {vr(BIGC+16*tp+8*a)}, v{V_XA}, s[{S_WS}:{S_WS+3}], s3 offen offset:{a*1024} {OPT['pol_st']}")
                res.append(o)
            return res
        for gq in range(4):
            i = 4 * tp + gq
            res.append([f"s_mov_b32 s3, {tp*4096}",
                        f"buffer_store_dwordx4 {vr(BIGC+4*i)}, v{V_XA}, s[{S_WS}:{S_WS+3}], s3 offen offset:{gq*1024} {OPT['pol_st']}"])
        return res
    steps = []
    for tp in range(7):
        for c in range(16):
            def reads(buf, tp=tp, c=c):
                sb = slot_of(("wo", 2 * tp + (c >> 3)))
                rebase("o", [V_OA], sb, sb + 16384)
                off = sb + (c & 7) * 2048 - bias["o"]
                return [f"ds_read_b64_tr_b16 v[{buf}:{buf+1}], v{V_OA} offset:{off}",
                        f"ds_read_b64_tr_b16 v[{buf+2}:{buf+3}], v{V_OA} offset:{off+512}"]
            st = {"reads": reads, "mfma": (lambda buf, tp=tp, c=c: mfma(BIGC + 16 * tp, buf, BIGA + 4 * c, c == 0))}
            if c == 0:
                def sync(tp=tp):
                    fr = [("ox", 0), ("ox", 1)] if tp == 0 else ([("wo", 2*tp-4), ("wo", 2*tp-3)] if tp >= 2 else [])
                    if DEBUG.get("t4"): stamp(g, f"pre{tp}")
                    barrier(needs=[("wo", 2*tp), ("wo", 2*tp+1)], frees=fr)
                    if DEBUG.get("t4"): stamp(g, f"bar{tp}")
                st["sync"] = sync
            if tp >= 1 and c == 2:
                st["post"] = (lambda tp=tp: store_tile(tp - 1))
            steps.append(st)
    run_steps(steps)
    e("s_nop 15")
    e("s_nop 3")
    for d in store_tile(6):
        for s in d: e(s)
    stamp(g, "p4end")
    if DEBUG.get("t"): e("s_waitcnt vmcnt(0)")
    stamp(g, "end")
    stamp_dump(g)
    g.lab("attn_end")
    e("s_endpgm")
    if DEBUG.get("tl"):
        el("s_waitcnt lgkmcnt(0)")
        for i in range(5): el(f"v_mov_b32 v{64+i}, s{60+2*i}")
        el("s_lshl_b32 s3, s2, 2")
        el(f"s_add_u32 s3, s3, s{S_W}")
        el("s_lshl_b32 s3, s3, 7")
        el(f"s_add_u32 s3, s3, {(200<<20) + 64}")
        el("v_mov_b32 v100, 0")
        for i in range(5): el(f"buffer_store_dword v{64+i}, v100, s[52:55], s3 offen offset:{4*i}")
    el("s_endpgm")
    assert sched["next"] == len(order)
    return "\n".join(g.L) + "\n" + "\n".join(gl.L)

def gen_reduce_bf16(g):
    e = g.e
    g.lab("reduce_kernel")
    e("s_cmp_ge_u32 s2, 224")
    e("s_cbranch_scc1 reduce_end")
    e("s_load_dwordx2 s[4:5], s[0:1], 40")
    e("s_load_dwordx2 s[6:7], s[0:1], 56")
    e("v_and_b32 v1, 63, v0")
    e("v_lshrrev_b32 v2, 6, v0")
    e("s_nop 0")
    e("v_readfirstlane_b32 s3, v2")
    e("s_lshl_b32 s8, s2, 2")
    e("s_add_u32 s8, s8, s3")
    e("s_and_b32 s9, s8, 1")
    e("s_lshr_b32 s10, s8, 1")
    e("s_mul_i32 s11, s10, 9363")
    e("s_lshr_b32 s11, s11, 16")
    e("s_mul_i32 s12, s11, 7")
    e("s_sub_u32 s12, s10, s12")
    e("s_waitcnt lgkmcnt(0)")
    e("s_mov_b32 s16, s6")
    e("s_and_b32 s17, s7, 0xffff")
    e(f"s_mov_b32 s18, {16*16*4*14336}")
    e("s_mov_b32 s19, 0x20000")
    e("s_mov_b32 s20, s4")
    e("s_and_b32 s21, s5, 0xffff")
    e(f"s_mov_b32 s22, {8*128*448*2}")
    e("s_mov_b32 s23, 0x20000")
    e("s_lshl_b32 s13, s8, 10")
    e("v_lshlrev_b32 v3, 4, v1")
    for h in range(16):
        e(f"buffer_load_dwordx4 v[{8+4*h}:{11+4*h}], v3, s[16:19], s13 offen {OPT['pol_rd']}")
        if h < 15: e(f"s_add_u32 s13, s13, {64*14336}")
    e("s_lshr_b32 s24, s11, 1")
    e("s_lshl_b32 s24, s24, 5")
    e("s_and_b32 s25, s11, 1")
    e("s_lshl_b32 s26, s12, 1")
    e("s_add_u32 s26, s26, s25")
    e("s_lshl_b32 s26, s26, 5")
    e("s_lshl_b32 s27, s9, 4")
    e("s_add_u32 s26, s26, s27")
    e("s_mul_i32 s24, s24, 896")
    e("s_lshl_b32 s26, s26, 1")
    e("s_add_u32 s24, s24, s26")
    e("v_and_b32 v4, 31, v1")
    e("v_mul_u32_u24 v4, 896, v4")
    e("v_lshrrev_b32 v5, 5, v1")
    e("v_lshl_add_u32 v4, v5, 4, v4")
    A = 80
    for h in range(16):
        e(f"s_waitcnt vmcnt({15-h})")
        for k in range(4):
            src = 8 + 4 * h + k
            if h == 0:
                e(f"v_lshlrev_b32 v{A+2*k}, 16, v{src}")
                e(f"v_and_b32 v{A+2*k+1}, 0xffff0000, v{src}")
            else:
                e(f"v_lshlrev_b32 v{A+8}, 16, v{src}")
                e(f"v_and_b32 v{A+9}, 0xffff0000, v{src}")
                e(f"v_add_f32 v{A+2*k}, v{A+2*k}, v{A+8}")
                e(f"v_add_f32 v{A+2*k+1}, v{A+2*k+1}, v{A+9}")
    for k in range(4): e(f"v_cvt_pk_bf16_f32 v{A+12+k}, v{A+2*k}, v{A+2*k+1}")
    e(f"buffer_store_dwordx4 v[{A+12}:{A+15}], v4, s[20:23], s24 offen")
    g.lab("reduce_end")
    e("s_endpgm")

def gen_reduce(g):
    if OPT["pbf16"]: return gen_reduce_bf16(g)
    e = g.e
    g.lab("reduce_kernel")
    e("s_cmp_ge_u32 s2, 224")
    e("s_cbranch_scc1 reduce_end")
    e("s_load_dwordx2 s[4:5], s[0:1], 40")
    e("s_load_dwordx2 s[6:7], s[0:1], 56")
    e("v_and_b32 v1, 63, v0")
    e("v_lshrrev_b32 v2, 6, v0")
    e("s_nop 0")
    e("v_readfirstlane_b32 s3, v2")
    e("s_lshl_b32 s8, s2, 2")
    e("s_add_u32 s8, s8, s3")
    e("s_and_b32 s9, s8, 1")
    e("s_lshr_b32 s10, s8, 1")
    e("s_mul_i32 s11, s10, 9363")
    e("s_lshr_b32 s11, s11, 16")
    e("s_mul_i32 s12, s11, 7")
    e("s_sub_u32 s12, s10, s12")
    e("s_waitcnt lgkmcnt(0)")
    e("s_mov_b32 s16, s6")
    e("s_and_b32 s17, s7, 0xffff")
    e(f"s_mov_b32 s18, {16*16*4*28672}")
    e("s_mov_b32 s19, 0x20000")
    e("s_mov_b32 s20, s4")
    e("s_and_b32 s21, s5, 0xffff")
    e(f"s_mov_b32 s22, {8*128*448*2}")
    e("s_mov_b32 s23, 0x20000")
    e("s_mul_i32 s13, s11, 28672")
    e("s_lshl_b32 s14, s12, 2")
    e("s_lshl_b32 s15, s9, 1")
    e("s_add_u32 s14, s14, s15")
    e("s_lshl_b32 s14, s14, 10")
    e("s_add_u32 s13, s13, s14")
    e("v_lshlrev_b32 v3, 4, v1")
    for h in range(16):
        e(f"buffer_load_dwordx4 v[{8+8*h}:{11+8*h}], v3, s[16:19], s13 offen {OPT['pol_rd']}")
        e(f"buffer_load_dwordx4 v[{12+8*h}:{15+8*h}], v3, s[16:19], s13 offen offset:1024 {OPT['pol_rd']}")
        if h < 15: e(f"s_add_u32 s13, s13, {64*28672}")
    e("s_lshr_b32 s24, s11, 1")
    e("s_lshl_b32 s24, s24, 5")
    e("s_and_b32 s25, s11, 1")
    e("s_lshl_b32 s26, s12, 1")
    e("s_add_u32 s26, s26, s25")
    e("s_lshl_b32 s26, s26, 5")
    e("s_lshl_b32 s27, s9, 4")
    e("s_add_u32 s26, s26, s27")
    e("s_mul_i32 s24, s24, 896")
    e("s_lshl_b32 s26, s26, 1")
    e("s_add_u32 s24, s24, s26")
    e("v_and_b32 v4, 31, v1")
    e("v_mul_u32_u24 v4, 896, v4")
    e("v_lshrrev_b32 v5, 5, v1")
    e("v_lshl_add_u32 v4, v5, 4, v4")
    for h in range(1, 16):
        e(f"s_waitcnt vmcnt({2*(15-h)})")
        for k in range(8): e(f"v_add_f32 v{8+k}, v{8+k}, v{8+8*h+k}")
    for k in range(4): e(f"v_cvt_pk_bf16_f32 v{8+k}, v{8+2*k}, v{9+2*k}")
    e("buffer_store_dwordx4 v[8:11], v4, s[20:23], s24 offen")
    g.lab("reduce_end")
    e("s_endpgm")

def kd(name, vgpr, sgpr):
    return f""".p2align 6
.amdhsa_kernel {name}
  .amdhsa_next_free_vgpr {vgpr}
  .amdhsa_next_free_sgpr {sgpr}
  .amdhsa_accum_offset {vgpr}
  .amdhsa_group_segment_fixed_size 0
  .amdhsa_kernarg_size 64
  .amdhsa_user_sgpr_count 2
  .amdhsa_user_sgpr_kernarg_segment_ptr 1
  .amdhsa_system_sgpr_workgroup_id_x 1
.end_amdhsa_kernel
"""

def main():
    out = sys.argv[1]
    only = None
    for a in sys.argv[2:]:
        if "=" in a:
            k, v = a.split("=", 1)
            if k == "only": only = v
            elif k.startswith("pol"): OPT[k] = (v.replace("_", " ") + " ") if v else ""
            else: OPT[k] = int(v)
        else:
            DEBUG[a] = 1
    a = gen_attn()
    g2 = G(); gen_reduce(g2); r = "\n".join(g2.L)
    txt = HEADER
    if only != "reduce":
        txt += f"; @launch kernel=attn_kernel grid=(256,1,1) block=(512,1,1) lds={LDS_TOTAL}\n"
    if only != "attn":
        txt += "; @launch kernel=reduce_kernel grid=(224,1,1) block=(256,1,1) lds=0\n"
    txt += '.amdgcn_target "amdgcn-amd-amdhsa--gfx950"\n.text\n'
    txt += ".globl attn_kernel\n.p2align 8\n.type attn_kernel,@function\n" + a + "\n"
    txt += ".globl reduce_kernel\n.p2align 8\n.type reduce_kernel,@function\n" + r + "\n"
    txt += '.section .rodata,"a"\n' + kd("attn_kernel", 256, 100) + kd("reduce_kernel", 136, 32)
    open(out, "w").write(txt)
main()
```

```python
import sys

HEADER = """; Kernarg layout for this problem (64 bytes, ptrs only, base s[0:1]):
;   offset   0: d_in[0] x  shape=(8, 128, 448) dtype=bfloat16 strides=(114688, 896, 2) contiguous=True
;   offset   8: d_in[1] k_cache  shape=(8, 16, 512, 256) dtype=bfloat16 strides=(4194304, 262144, 512, 2) contiguous=True
;   offset  16: d_in[2] v_cache  shape=(8, 16, 512, 256) dtype=bfloat16 strides=(4194304, 262144, 512, 2) contiguous=True
;   offset  24: d_in[3] wq  shape=(448, 4096) dtype=bfloat16 strides=(8192, 2) contiguous=True
;   offset  32: d_in[4] wo  shape=(4096, 448) dtype=bfloat16 strides=(896, 2) contiguous=True
;   offset  56: d_ws      268435456 bytes workspace
"""
SLOT = 16384
NSLOT = 10
LDS_TOTAL = SLOT * NSLOT
DEBUG = {}
OPT = {"pol_kv": "nt ", "pol_w": "", "pol_x": "", "pol_st": "", "pol_rd": "", "depth": 5, "early_k": 1, "wq_first": 4, "tm": 6, "prio": 0, "pbf16": 1, "maxb": 2, "rot_o": 1, "rot_q": 1, "cissue": 1, "tlbw": 0}

class G:
    def __init__(self):
        self.L = []
        self.vml = []
        self.lds = []
    def e(self, s): self.L.append("    " + s)
    def lab(self, s): self.L.append(s + ":")
    def vm(self, tag): self.vml.append(tag)
    def wait_vm(self, tags):
        idx = [i for i, t in enumerate(self.vml) if t in tags]
        if not idx: return
        n = len(self.vml) - 1 - idx[-1]
        assert n <= 63
        self.e(f"s_waitcnt vmcnt({n})")
        self.vml = self.vml[len(self.vml) - n:] if n > 0 else []
    def ldsop(self, tag): self.lds.append(tag)
    def wait_lds(self, tag):
        idx = [i for i, t in enumerate(self.lds) if t == tag]
        if not idx: return
        n = len(self.lds) - 1 - idx[-1]
        assert n <= 15, n
        self.e(f"s_waitcnt lgkmcnt({n})")
        self.lds = self.lds[len(self.lds) - n:] if n > 0 else []
    def wait_lds_all(self):
        if self.lds: self.e("s_waitcnt lgkmcnt(0)")
        self.lds = []

def vr(a, n=4): return f"v[{a}:{a+n-1}]"

V_LANE = 1
V_KA = 2
V_VA = 10
V_WA = 18
V_OA = 22
V_XA = 30
V_T = 32
FB = 40
NB = 6
BIGA = 64
QACC = 176
BIGC = 128
L_KD = 2
L_VD = 4
L_WD = 5
L_OD = 6
L_XD = 8
C_XD = 64
C_KD = 68
C_T = 72
S_X, S_K, S_V, S_WQ, S_WO, S_WS = 4, 8, 12, 16, 20, 24
S_W, S_QI, S_J, S_H, S_B, S_QH, S_W1K, S_WL = 28, 29, 30, 31, 32, 33, 34, 35
S_W896 = 36
S_WQOFF = 51
S_W7168 = 37
S_C2 = 42
S_T0 = 97
S_C0 = 98
S_C = 50

STAMPS = []
def stamp(g, name):
    if not DEBUG.get("t"): return
    if len(STAMPS) >= 20: return
    if DEBUG.get("t4") and name in ("p1end", "qx_end", "p2end", "sm_end"): return
    i = len(STAMPS); STAMPS.append(name)
    g.e(f"s_memtime s[{56+2*i}:{57+2*i}]")
def stamp_dump(g):
    if not DEBUG.get("t"): return
    e = g.e
    e("s_waitcnt lgkmcnt(0)")
    n = len(STAMPS)
    for i in range(n): e(f"v_mov_b32 v{64+i}, s{56+2*i}")
    if DEBUG.get("dbg"):
        for i in range(1, n): e(f"v_sub_u32 v{64+i}, v{64+i}, v64")
        e("s_load_dwordx2 s[52:53], s[0:1], 48")
        e("s_waitcnt lgkmcnt(0)")
        e("s_and_b32 s53, s53, 0xffff")
        e("s_mov_b32 s54, 256")
        e("s_mov_b32 s55, 0x20000")
        e("s_lshl_b32 s3, s2, 2")
        e(f"s_add_u32 s3, s3, s{S_W}")
        e("s_cmp_eq_u32 s3, 400")
        e("s_cbranch_scc0 attn_end")
        e("v_mov_b32 v100, 0")
        for i in range(1, n): e(f"buffer_store_dword v{64+i}, v100, s[52:55], 0 offen offset:{4*i}")
        print("stamps:", len(STAMPS), STAMPS)
        return
    e("s_lshl_b32 s3, s2, 2")
    e(f"s_add_u32 s3, s3, s{S_W}")
    e("s_lshl_b32 s3, s3, 7")
    e(f"s_add_u32 s3, s3, {200<<20}")
    e("v_mov_b32 v100, 0")
    for i in range(n): e(f"buffer_store_dword v{64+i}, v100, s[52:55], s3 offen offset:{4*i}")
    print("stamps:", len(STAMPS), STAMPS)

def gen_attn():
    g = G()
    gl = G()
    e = g.e
    el = gl.e
    DEPTH = OPT["depth"]
    g.lab("attn_kernel")
    e("s_cmp_ge_u32 s2, 256")
    e("s_cbranch_scc1 attn_end")
    e("s_load_dwordx8 s[36:43], s[0:1], 0")
    e("s_load_dwordx2 s[44:45], s[0:1], 32")
    e("s_load_dwordx2 s[46:47], s[0:1], 56")
    e(f"v_and_b32 v{V_LANE}, 63, v0")
    e(f"v_lshrrev_b32 v{V_T}, 6, v0")
    e("s_nop 0")
    e(f"v_readfirstlane_b32 s49, v{V_T}")
    e("s_and_b32 s3, s2, 7")
    e(f"s_lshr_b32 s{S_QH}, s2, 3")
    e(f"s_lshr_b32 s{S_B}, s{S_QH}, 2")
    e(f"s_lshr_b32 s{S_H}, s{S_QH}, 1")
    e(f"s_and_b32 s{S_H}, s{S_H}, 1")
    e(f"s_and_b32 s{S_QH}, s{S_QH}, 1")
    e("s_lshl_b32 s3, s3, 1")
    e(f"s_add_u32 s{S_H}, s{S_H}, s3")
    e(f"s_and_b32 s{S_W}, s49, 3")
    e(f"s_lshr_b32 s{S_QI}, s{S_W}, 1")
    e(f"s_and_b32 s{S_J}, s{S_W}, 1")
    e(f"s_lshl_b32 s{S_W1K}, s{S_W}, 10")
    e(f"s_mov_b32 s{S_WL}, s{S_J}")
    e(f"s_lshl_b32 s3, s{S_B}, 1")
    e(f"s_add_u32 s3, s3, s{S_QH}")
    e("s_mul_i32 s48, s3, 37")
    e("s_lshr_b32 s48, s48, 8")
    e("s_mul_i32 s48, s48, 7")
    e(f"s_sub_u32 s{S_T0}, s3, s48")
    if not OPT["rot_o"]: e(f"s_mov_b32 s{S_T0}, 0")
    e("s_sub_u32 s48, s3, 14")
    e("s_cmp_ge_u32 s3, 14")
    e(f"s_cselect_b32 s{S_C0}, s48, s3")
    if not OPT["rot_q"]: e(f"s_mov_b32 s{S_C0}, 0")
    e("s_cmp_ge_u32 s49, 4")
    e("s_waitcnt lgkmcnt(0)")
    e("s_cbranch_scc1 attn_loader")
    e(f"s_lshl_b32 s3, s{S_H}, 4")
    e(f"s_lshl_b32 s48, s{S_B}, 1")
    e("s_add_u32 s3, s3, s48")
    e(f"s_add_u32 s3, s3, s{S_QH}")
    e("s_lshl_b32 s3, s3, 2")
    e(f"s_add_u32 s3, s3, s{S_W}")
    WB = 14336 if OPT["pbf16"] else 28672
    e(f"s_mul_i32 s3, s3, {WB}")
    if DEBUG:
        e("s_mov_b32 s52, s46")
        e("s_and_b32 s53, s47, 0xffff")
        e("s_mov_b32 s54, 0x10000000")
        e("s_mov_b32 s55, 0x20000")
    e(f"s_add_u32 s{S_WS}, s46, s3")
    e(f"s_addc_u32 s{S_WS+1}, s47, 0")
    e(f"s_and_b32 s{S_WS+1}, s{S_WS+1}, 0xffff")
    e(f"s_mov_b32 s{S_WS+2}, {WB}")
    e(f"s_mov_b32 s{S_WS+3}, 0x20000")
    e(f"s_mov_b32 s{S_C}, 0x3db8aa3b")
    e(f"s_mov_b32 s{S_C2}, 0x3db8aa3b")
    e(f"s_mov_b32 s{S_C2+1}, 0x3db8aa3b")
    e(f"s_lshl_b32 s3, s{S_B}, 1")
    e(f"s_add_u32 s3, s3, s{S_QH}")
    e("s_mul_i32 s3, s3, 57344")
    e(f"s_add_u32 s{S_X}, s36, s3")
    e(f"s_addc_u32 s{S_X+1}, s37, 0")
    e(f"s_and_b32 s{S_X+1}, s{S_X+1}, 0xffff")
    e(f"s_mov_b32 s{S_X+2}, 57344")
    e(f"s_mov_b32 s{S_X+3}, 0x20000")
    e(f"s_lshl_b32 s3, s{S_B}, 4")
    e(f"s_add_u32 s3, s3, s{S_H}")
    e("s_lshl_b32 s3, s3, 18")
    e(f"s_add_u32 s{S_K}, s38, s3")
    e(f"s_addc_u32 s{S_K+1}, s39, 0")
    e(f"s_and_b32 s{S_K+1}, s{S_K+1}, 0xffff")
    e(f"s_mov_b32 s{S_K+2}, 262144")
    e(f"s_mov_b32 s{S_K+3}, 0x20000")
    e(f"s_mul_i32 s{S_W896}, s{S_W}, 896")
    e(f"v_mov_b32 v{C_T+2}, 0x40000000")
    for k in range(4):
        e(f"s_add_u32 s3, s{S_W}, {4*k}")
        e(f"v_xor_b32 v{C_T}, s3, v{V_LANE}")
        e(f"v_lshlrev_b32 v{C_T+1}, 4, v{C_T}")
        e(f"v_cmp_gt_u32 vcc, 56, v{C_T}")
        e("s_nop 1")
        e(f"v_cndmask_b32 v{C_XD+k}, v{C_T+2}, v{C_T+1}, vcc")
    e(f"v_lshrrev_b32 v{C_T}, 5, v{V_LANE}")
    e(f"v_and_b32 v{C_T+1}, 31, v{V_LANE}")
    e(f"v_xor_b32 v{C_T+1}, v{C_T+1}, v{C_T}")
    e(f"v_lshlrev_b32 v{C_T+1}, 4, v{C_T+1}")
    e(f"v_lshl_add_u32 v{C_T+1}, v{C_T}, 9, v{C_T+1}")
    e(f"s_lshl_b32 s3, s{S_W}, 5")
    e(f"v_xor_b32 v{C_KD}, s3, v{C_T+1}")
    e(f"v_xor_b32 v{C_KD+1}, 0x80, v{C_KD}")
    gl.lab("attn_loader")
    if DEBUG.get("tl"):
        el("s_memtime s[60:61]")
        el("s_mov_b32 s52, s46")
        el("s_and_b32 s53, s47, 0xffff")
        el("s_mov_b32 s54, 0x10000000")
        el("s_mov_b32 s55, 0x20000")
    if OPT["prio"]: el(f"s_setprio {OPT['prio']}")
    el(f"s_lshl_b32 s3, s{S_B}, 1")
    el(f"s_add_u32 s3, s3, s{S_QH}")
    el("s_mul_i32 s3, s3, 57344")
    el(f"s_add_u32 s{S_X}, s36, s3")
    el(f"s_addc_u32 s{S_X+1}, s37, 0")
    el(f"s_and_b32 s{S_X+1}, s{S_X+1}, 0xffff")
    el(f"s_mov_b32 s{S_X+2}, 57344")
    el(f"s_mov_b32 s{S_X+3}, 0x20000")
    el(f"s_mov_b32 s{S_WQ}, s42")
    el(f"s_and_b32 s{S_WQ+1}, s43, 0xffff")
    el(f"s_mov_b32 s{S_WQ+2}, {448*8192}")
    el(f"s_mov_b32 s{S_WQ+3}, 0x20000")
    el(f"s_lshl_b32 s3, s{S_B}, 4")
    el(f"s_add_u32 s3, s3, s{S_H}")
    el("s_lshl_b32 s3, s3, 18")
    el(f"s_add_u32 s{S_K}, s38, s3")
    el(f"s_addc_u32 s{S_K+1}, s39, 0")
    el(f"s_and_b32 s{S_K+1}, s{S_K+1}, 0xffff")
    el(f"s_mov_b32 s{S_K+2}, 262144")
    el(f"s_mov_b32 s{S_K+3}, 0x20000")
    el(f"s_add_u32 s{S_V}, s40, s3")
    el(f"s_addc_u32 s{S_V+1}, s41, 0")
    el(f"s_and_b32 s{S_V+1}, s{S_V+1}, 0xffff")
    el(f"s_mov_b32 s{S_V+2}, 262144")
    el(f"s_mov_b32 s{S_V+3}, 0x20000")
    el(f"s_mul_i32 s3, s{S_H}, {256*896}")
    el(f"s_add_u32 s{S_WO}, s44, s3")
    el(f"s_addc_u32 s{S_WO+1}, s45, 0")
    el(f"s_and_b32 s{S_WO+1}, s{S_WO+1}, 0xffff")
    el(f"s_mov_b32 s{S_WO+2}, {256*896}")
    el(f"s_mov_b32 s{S_WO+3}, 0x20000")
    el(f"s_lshl_b32 s{S_WQOFF}, s{S_H}, 9")
    el(f"s_lshl_b32 s3, s{S_W}, 14")
    el(f"s_add_u32 s{S_WQOFF}, s{S_WQOFF}, s3")
    el(f"s_mul_i32 s{S_W896}, s{S_W}, 896")
    T = 16
    hi, p = T, T + 1
    el(f"v_lshrrev_b32 v{hi}, 5, v{V_LANE}")
    el(f"v_and_b32 v{p}, 31, v{V_LANE}")
    el(f"v_mov_b32 v{T+4}, 0x40000000")
    for k in range(4):
        el(f"s_add_u32 s3, s{S_W}, {4*k}")
        el(f"v_xor_b32 v{T+2}, s3, v{V_LANE}")
        el(f"v_lshlrev_b32 v{T+3}, 4, v{T+2}")
        el(f"v_cmp_gt_u32 vcc, 56, v{T+2}")
        el("s_nop 1")
        el(f"v_cndmask_b32 v{L_XD+k}, v{T+4}, v{T+3}, vcc")
    el(f"s_lshl_b32 s3, s{S_WL}, 1")
    el(f"v_add_u32 v{T+2}, s3, v{hi}")
    el(f"v_lshlrev_b32 v{T+2}, 2, v{T+2}")
    el(f"v_xor_b32 v{T+2}, v{p}, v{T+2}")
    el(f"v_lshlrev_b32 v{T+2}, 4, v{T+2}")
    el(f"v_lshl_add_u32 v{L_VD}, v{hi}, 9, v{T+2}")
    el(f"v_lshl_add_u32 v{L_WD}, v{hi}, 13, v{T+2}")
    el(f"v_xor_b32 v{T+2}, v{p}, v{hi}")
    el(f"v_lshlrev_b32 v{T+2}, 4, v{T+2}")
    el(f"v_lshl_add_u32 v{T+3}, v{hi}, 9, v{T+2}")
    el(f"s_lshl_b32 s3, s{S_W}, 5")
    el(f"v_xor_b32 v{L_KD}, s3, v{T+3}")
    el(f"v_xor_b32 v{L_KD+1}, 0x80, v{L_KD}")
    el(f"v_lshrrev_b32 v{T+2}, 3, v{V_LANE}")
    el(f"v_mul_u32_u24 v{T+2}, 896, v{T+2}")
    el(f"v_lshrrev_b32 v{T+3}, 2, v{V_LANE}")
    el(f"v_lshrrev_b32 v{T+5}, 4, v{V_LANE}")
    el(f"v_xor_b32 v{T+3}, v{T+3}, v{T+5}")
    el(f"v_and_b32 v{T+3}, 1, v{T+3}")
    el(f"v_lshl_add_u32 v{T+2}, v{T+3}, 6, v{T+2}")
    el(f"v_and_b32 v{T+3}, 3, v{V_LANE}")
    el(f"v_lshl_add_u32 v{L_OD}, v{T+3}, 4, v{T+2}")
    el(f"s_mul_i32 s{S_W7168}, s{S_W}, 7168")

    if OPT["tlbw"]:
        el(f"v_lshlrev_b32 v{T+2}, 12, v{V_LANE}")
        el(f"s_cmp_eq_u32 s{S_W}, 0")
        el("s_cbranch_scc0 tlbw_1")
        el(f"buffer_load_dword v{T+6}, v{T+2}, s[{S_K}:{S_K+3}], 0 offen")
        el("s_branch tlbw_done")
        gl.lab("tlbw_1")
        el(f"s_cmp_eq_u32 s{S_W}, 1")
        el("s_cbranch_scc0 tlbw_2")
        el(f"buffer_load_dword v{T+6}, v{T+2}, s[{S_V}:{S_V+3}], 0 offen")
        el("s_branch tlbw_done")
        gl.lab("tlbw_2")
        el(f"s_cmp_eq_u32 s{S_W}, 2")
        el("s_cbranch_scc0 tlbw_done")
        el(f"buffer_load_dword v{T+6}, v{T+2}, s[{S_WO}:{S_WO+3}], 0 offen")
        gl.lab("tlbw_done")
        gl.vm("tlb")
    order = [("x", i) for i in range(4)]
    nwf = OPT["wq_first"]; ek = OPT["early_k"]
    for c in range(nwf): order.append(("wq", c))
    for s in range(ek): order += [("k", 2*s), ("k", 2*s+1)]
    for c in range(nwf, 14): order.append(("wq", c))
    order += [("qx", 0), ("qx", 1)]
    for s in range(ek, 8): order += [("k", 2*s), ("k", 2*s+1)]
    order.append(("st", 0))
    for s in range(8): order += [("v", 2*s), ("v", 2*s+1)]
    order += [("ox", 0), ("ox", 1)]
    for c in range(14): order.append(("wo", c))
    sched = {"next": 0, "free": list(range(NSLOT)), "slot": {}}
    cunits = set([("x", i) for i in range(4)] + [("k", i) for i in range(2 * OPT["early_k"])]) if OPT["cissue"] else set()
    def issue_unit(u, slot):
        kind, i = u
        tag = f"{kind}{i}"
        if kind in ("qx", "st", "ox"): return
        if u in cunits:
            for k in range(4):
                lds = slot * SLOT + k * 4096
                e(f"s_add_u32 m0, s{S_W1K}, {lds}")
                if kind == "k":
                    e(f"s_add_u32 s3, s{S_W1K}, {i*16384 + k*4096}")
                    e(f"buffer_load_dwordx4 v{C_KD+(k&1)}, s[{S_K}:{S_K+3}], s3 offen {OPT['pol_kv']}lds")
                else:
                    e(f"s_add_u32 s3, s{S_W896}, {(16*i + 4*k)*896}")
                    e(f"buffer_load_dwordx4 v{C_XD+k}, s[{S_X}:{S_X+3}], s3 offen {OPT['pol_x']}lds")
                g.vm(tag)
            return
        for k in range(4):
            lds = slot * SLOT + k * 4096
            el(f"s_add_u32 m0, s{S_W1K}, {lds}")
            if kind == "k":
                el(f"s_add_u32 s3, s{S_W1K}, {i*16384 + k*4096}")
                el(f"buffer_load_dwordx4 v{L_KD+(k&1)}, s[{S_K}:{S_K+3}], s3 offen {OPT['pol_kv']}lds")
            elif kind == "v":
                el(f"s_add_u32 s3, s{S_W1K}, {i*16384 + k*4096}")
                el(f"buffer_load_dwordx4 v{L_VD}, s[{S_V}:{S_V+3}], s3 offen {OPT['pol_kv']}lds")
            elif kind == "wq":
                if k == 0:
                    el(f"s_add_u32 s39, s{S_C0}, {i}")
                    el("s_sub_u32 s40, s39, 14")
                    el("s_cmp_ge_u32 s39, 14")
                    el("s_cselect_b32 s39, s40, s39")
                    el("s_lshl_b32 s39, s39, 18")
                    el(f"s_add_u32 s38, s39, s{S_WQOFF}")
                    el(f"s_add_u32 m0, s{S_W1K}, {lds}")
                el(f"s_add_u32 s3, s38, {k*65536}")
                el(f"buffer_load_dwordx4 v{L_WD}, s[{S_WQ}:{S_WQ+3}], s3 offen {OPT['pol_w']}lds")
            elif kind == "wo":
                if k == 0:
                    el(f"s_add_u32 s39, s{S_T0}, {i>>1}")
                    el("s_sub_u32 s40, s39, 7")
                    el("s_cmp_ge_u32 s39, 7")
                    el("s_cselect_b32 s39, s40, s39")
                    el("s_lshl_b32 s39, s39, 7")
                    el(f"s_add_u32 s38, s39, s{S_W7168}")
                    el(f"s_add_u32 m0, s{S_W1K}, {lds}")
                el(f"s_add_u32 s3, s38, {(128*(i&1) + 32*k)*896}")
                el(f"buffer_load_dwordx4 v{L_OD}, s[{S_WO}:{S_WO+3}], s3 offen {OPT['pol_w']}lds")
            elif kind == "x":
                el(f"s_add_u32 s3, s{S_W896}, {(16*i + 4*k)*896}")
                el(f"buffer_load_dwordx4 v{L_XD+k}, s[{S_X}:{S_X+3}], s3 offen {OPT['pol_x']}lds")
            gl.vm(tag)
    pending = []
    def alloc():
        while sched["free"] and sched["next"] < len(order):
            u = order[sched["next"]]; sched["next"] += 1
            s = sched["free"].pop(0)
            sched["slot"][u] = s
            if u[0] not in ("qx", "st", "ox"): pending.append(u)
    def flush(n=None, upto=None):
        k = 0
        while pending and (n is None or k < n):
            if upto is not None and not any(u in pending for u in upto): break
            u = pending.pop(0); issue_unit(u, sched["slot"][u]); k += 1
    def slot_of(u): return sched["slot"][u] * SLOT
    def barrier(needs=(), frees=(), maxb=None):
        flush(upto=list(needs)) if needs else None
        gl.wait_vm([f"{k}{i}" for (k, i) in needs])
        g.wait_vm([f"{k}{i}" for (k, i) in needs])
        el("s_barrier")
        e("s_barrier")
        for u in frees: sched["free"].append(sched["slot"][u])
        alloc()
        flush(n=OPT["maxb"] if maxb is None else maxb)
    if DEBUG.get("tl"): el("s_memtime s[62:63]")
    alloc()
    if OPT["cissue"]:
        for u in [u for u in pending if u in cunits]:
            pending.remove(u); issue_unit(u, sched["slot"][u])
        flush(n=2)
    else:
        flush(n=5)
    if DEBUG.get("tl"): el("s_memtime s[64:65]")
    assert [sched["slot"][("x", i)] for i in range(4)] == [0, 1, 2, 3]

    T = V_T
    hi, p = T, T + 1
    e(f"v_lshrrev_b32 v{hi}, 5, v{V_LANE}")
    e(f"v_and_b32 v{p}, 31, v{V_LANE}")
    e(f"v_lshlrev_b32 v{V_XA}, 4, v{V_LANE}")
    e(f"v_and_b32 v{T+2}, 15, v{p}")
    e(f"v_xor_b32 v{T+2}, v{T+2}, v{hi}")
    e(f"v_lshlrev_b32 v{V_KA}, 4, v{T+2}")
    e(f"s_lshl_b32 s3, s{S_QI}, 15")
    e(f"v_lshl_add_u32 v{V_KA+1}, v{p}, 10, s3")
    rr, dck = T + 2, T + 3
    e(f"v_bfe_u32 v{rr}, v{V_LANE}, 2, 2")
    e(f"v_bfe_u32 v{T+4}, v{V_LANE}, 4, 1")
    e(f"v_and_b32 v{T+5}, 1, v{V_LANE}")
    e(f"v_bfe_u32 v{T+6}, v{V_LANE}, 1, 1")
    e(f"v_lshlrev_b32 v{T+4}, 2, v{T+4}")
    e(f"v_lshlrev_b32 v{T+5}, 1, v{T+5}")
    e(f"v_or3_b32 v{dck}, v{T+4}, v{T+5}, v{T+6}")
    e(f"v_lshlrev_b32 v{dck}, 3, v{dck}")
    e(f"v_lshl_add_u32 v{T+4}, v{hi}, 3, v{rr}")
    e(f"v_lshl_add_u32 v{T+5}, v{T+4}, 9, v{dck}")
    e(f"v_lshl_add_u32 v{T+5}, v{rr}, 6, v{T+5}")
    e(f"s_lshl_b32 s48, s{S_J}, 8")
    e(f"v_add_u32 v{T+6}, s48, v{T+5}")
    e("s_xor_b32 s48, s48, 256")
    e(f"v_add_u32 v{T+7}, s48, v{T+5}")
    for t in range(4):
        e(f"v_xor_b32 v{V_VA+t}, {t<<6}, v{T+6}")
        e(f"v_xor_b32 v{V_VA+4+t}, {t<<6}, v{T+7}")
        e(f"v_xor_b32 v{V_WA+t}, {t<<6}, v{T+6}")
    e(f"v_lshl_add_u32 v{T+5}, v{T+4}, 7, v{dck}")
    e(f"v_lshrrev_b32 v{T+6}, 1, v{rr}")
    e(f"v_xor_b32 v{T+6}, s{S_J}, v{T+6}")
    e(f"v_lshl_add_u32 v{V_OA}, v{T+6}, 6, v{T+5}")
    stamp(g, "start")
    if DEBUG.get("tl"):
        gl.wait_vm(["x0"])
        el("s_memtime s[66:67]")
        gl.wait_vm(["x3"])
        el("s_memtime s[68:69]")
    barrier(needs=[("x", i) for i in range(4)])
    if DEBUG.get("t1"): stamp(g, "xbar")
    e(f"s_lshl_b32 s37, s{S_C0}, 1")
    for kk in range(28):
        e(f"s_add_u32 s3, s37, {kk}")
        e("s_sub_u32 s48, s3, 28")
        e("s_cmp_ge_u32 s3, 28")
        e("s_cselect_b32 s3, s48, s3")
        e("s_lshl_b32 s3, s3, 5")
        e(f"v_xor_b32 v{V_KA+2+(kk&3)}, s3, v{V_KA}")
        e(f"v_add_u32 v{V_KA+2+(kk&3)}, v{V_KA+2+(kk&3)}, v{V_KA+1}")
        e(f"ds_read_b128 {vr(BIGA+4*kk)}, v{V_KA+2+(kk&3)}")
        if kk % 12 == 11: e("s_waitcnt lgkmcnt(0)")
    e("s_waitcnt lgkmcnt(0)")
    e(f"v_and_b32 v{T+2}, 0x13, v{p}")
    e(f"v_and_b32 v{T+3}, 8, v{p}")
    e(f"v_lshrrev_b32 v{T+3}, 1, v{T+3}")
    e(f"v_and_b32 v{T+4}, 4, v{p}")
    e(f"v_lshlrev_b32 v{T+4}, 1, v{T+4}")
    e(f"v_or3_b32 v{T+2}, v{T+2}, v{T+3}, v{T+4}")
    e(f"v_and_b32 v{T+3}, 15, v{T+2}")
    e(f"v_xor_b32 v{T+3}, v{T+3}, v{hi}")
    e(f"v_lshlrev_b32 v{T+3}, 4, v{T+3}")
    e(f"v_lshl_add_u32 v{T+2}, v{T+2}, 9, v{T+3}")
    for k in range(8):
        e(f"v_xor_b32 v{V_KA+k}, {k<<5}, v{T+2}")

    bias = {"k": (0, 0), "v": (0, 0), "w": 0, "o": 0}
    def rebase_j(key, regs, b0, b1):
        o0, o1 = bias[key]
        d0, d1 = b0 - o0, b1 - o1
        if d0 == 0 and d1 == 0: return
        e(f"s_mov_b32 s49, {d1 & 0xffffffff}")
        e(f"s_cmp_eq_u32 s{S_J}, 0")
        e(f"s_cselect_b32 s3, {d0 & 0xffffffff}, s49")
        for r in regs: e(f"v_add_u32 v{r}, s3, v{r}")
        bias[key] = (b0, b1)
    def rebase(key, regs, lo, hi_):
        if lo - bias[key] < 0 or hi_ - bias[key] > 65535:
            d = lo - bias[key]
            e(f"s_mov_b32 s3, {d & 0xffffffff}")
            for r in regs: e(f"v_add_u32 v{r}, s3, v{r}")
            bias[key] = lo

    fb = {"n": 0}
    def run_steps(steps):
        n = len(steps)
        base = fb["n"]
        queue = []
        def do_reads(i):
            st = steps[i]
            if st.get("sync"): st["sync"]()
            buf = FB + 4 * ((base + i) % NB)
            for s in st["reads"](buf):
                e(s); g.ldsop(f"r{base+i}")
        for i in range(min(DEPTH, n)): do_reads(i)
        for i in range(n):
            if i + DEPTH < n: do_reads(i + DEPTH)
            g.wait_lds(f"r{base+i}")
            e(steps[i]["mfma"](FB + 4 * ((base + i) % NB)))
            if steps[i].get("post"): queue.extend(steps[i]["post"]())
            if queue:
                for s in queue.pop(0): e(s)
        while queue:
            for s in queue.pop(0): e(s)
        fb["n"] = base + n
    def mfma(acc, a, b, first=False):
        return f"v_mfma_f32_32x32x16_bf16 {vr(acc,16)}, {vr(a)}, {vr(b)}, " + ("0" if first else vr(acc,16))

    steps = []
    for c in range(14):
        for kk2 in range(2):
            for t in range(4):
                kk = 2 * c + kk2
                st = {}
                def reads(buf, c=c, kk2=kk2, t=t):
                    off = slot_of(("wq", c)) + kk2 * 8192 - bias["w"]
                    return [f"ds_read_b64_tr_b16 v[{buf}:{buf+1}], v{V_WA+t} offset:{off}",
                            f"ds_read_b64_tr_b16 v[{buf+2}:{buf+3}], v{V_WA+t} offset:{off+2048}"]
                st["reads"] = reads
                st["mfma"] = (lambda buf, t=t, kk=kk: mfma(QACC + 16 * t, buf, BIGA + 4 * kk, kk == 0))
                if kk2 == 0 and t == 0:
                    def sync(c=c):
                        fr = [("x", i) for i in range(4)] if c == 0 else ([("wq", c - 2)] if c >= 2 else [])
                        if DEBUG.get("t1") and c in (0, 1, 2, 3, 4, 6, 8, 10, 12): stamp(g, f"pre{c}")
                        barrier(needs=[("wq", c)], frees=fr)
                        if DEBUG.get("t1") and c in (0, 1, 2, 3, 4, 6, 8, 10, 12): stamp(g, f"bar{c}")
                        sb = slot_of(("wq", c))
                        rebase("w", range(V_WA, V_WA + 4), sb, sb + 8192 + 2048)
                    st["sync"] = sync
                steps.append(st)
    run_steps(steps)
    stamp(g, "p1end")
    e("s_nop 15")
    e("s_nop 3")
    for t in range(4):
        for a in range(2):
            for q in range(4):
                src = QACC + 16 * t + 8 * a + 2 * q
                e(f"v_cvt_pk_bf16_f32 v{BIGA + (2*t+a)*4 + q}, v{src}, v{src+1}")
    def xch_addr(u0, u1):
        e(f"s_mov_b32 s49, {slot_of(u1)}")
        e(f"s_cmp_eq_u32 s{S_QI}, 0")
        e(f"s_cselect_b32 s3, {slot_of(u0)}, s49")
        e(f"s_lshl_b32 s48, s{S_J}, 13")
        e("s_add_u32 s48, s48, s3")
        e(f"v_add_u32 v{T}, s48, v{V_XA}")
        e(f"v_add_u32 v{T+1}, s3, v{V_XA}")
    xch_addr(("qx", 0), ("qx", 1))
    for f in range(8):
        e(f"ds_write_b128 v{T}, {vr(BIGA+4*f)} offset:{f*1024}")
    e("s_waitcnt lgkmcnt(0)")
    barrier(frees=[("wq", 12), ("wq", 13)])
    for kk in range(16):
        e(f"ds_read_b128 {vr(BIGA+4*kk)}, v{T+1} offset:{kk*1024}")
    e("s_waitcnt lgkmcnt(0)")
    stamp(g, "qx_end")
    steps = []
    for s in range(8):
        for kk in range(16):
            st = {}
            st["reads"] = (lambda buf, kk=kk: [f"ds_read_b128 {vr(buf)}, v{V_KA+(kk&7)} offset:{(kk>>3)*256}"])
            st["mfma"] = (lambda buf, s=s, kk=kk: mfma(BIGC + 16 * s, buf, BIGA + 4 * kk, kk == 0))
            if kk == 0:
                def sync(s=s):
                    fr = [("qx", 0), ("qx", 1)] if s == 0 else ([("k", 2*s-4), ("k", 2*s-3)] if s >= 2 else [])
                    barrier(needs=[("k", 2*s), ("k", 2*s+1)], frees=fr)
                    rebase_j("k", range(V_KA, V_KA + 8), slot_of(("k", 2*s)), slot_of(("k", 2*s+1)))
                st["sync"] = sync
            steps.append(st)
    run_steps(steps)
    g.wait_lds_all()
    barrier(frees=[("k", 12), ("k", 13), ("k", 14), ("k", 15)], maxb=99)
    e("s_nop 7")
    stamp(g, "p2end")
    S = BIGC
    for i in range(64):
        a = S + 2 * i
        e(f"v_cvt_pk_bf16_f32 v{T + (i & 3)}, v{a}, v{a+1}")
        e(f"v_lshlrev_b32 v{a}, 16, v{T + (i & 3)}")
        e(f"v_and_b32 v{a+1}, 0xffff0000, v{T + (i & 3)}")
    for c4 in range(4):
        e(f"v_max_f32 v{T+c4}, v{S+32*c4}, v{S+32*c4+1}")
    for i in range(15):
        for c4 in range(4):
            a = S + 32 * c4 + 2 + 2 * i
            e(f"v_max3_f32 v{T+c4}, v{T+c4}, v{a}, v{a+1}")
    e(f"v_max3_f32 v{T}, v{T}, v{T+1}, v{T+2}")
    e(f"v_max_f32 v{T}, v{T}, v{T+3}")
    e(f"v_mov_b32 v{T+1}, v{T}")
    e("s_nop 1")
    e(f"v_permlane32_swap_b32 v{T}, v{T+1}")
    e("s_nop 1")
    e(f"v_max_f32 v{T}, v{T}, v{T+1}")
    MLOC = T
    e(f"v_mul_f32 v{T+6}, s{S_C}, v{MLOC}")
    e(f"v_sub_f32 v{T+6}, 0, v{T+6}")
    e(f"v_mov_b32 v{T+7}, v{T+6}")
    e(f"s_mov_b32 s{S_C+1}, s{S_C}") if False else None
    NMC = T + 6
    for c4 in range(4): e(f"v_mov_b32 v{T+2+c4}, 0")
    for i in range(0, 128, 4):
        for k in (0, 2): e(f"v_pk_fma_f32 v[{S+i+k}:{S+i+k+1}], v[{S+i+k}:{S+i+k+1}], s[{S_C2}:{S_C2+1}], v[{NMC}:{NMC+1}]")
        for k in range(4): e(f"v_exp_f32 v{S+i+k}, v{S+i+k}")
        if i >= 4:
            for k in (0, 2): e(f"v_pk_add_f32 v[{T+2+k}:{T+3+k}], v[{T+2+k}:{T+3+k}], v[{S+i-4+k}:{S+i-3+k}]")
    e("s_nop 0")
    for k in (0, 2): e(f"v_pk_add_f32 v[{T+2+k}:{T+3+k}], v[{T+2+k}:{T+3+k}], v[{S+124+k}:{S+125+k}]")
    e(f"v_add_f32 v{T+2}, v{T+2}, v{T+3}")
    e(f"v_add_f32 v{T+4}, v{T+4}, v{T+5}")
    e(f"v_add_f32 v{T+2}, v{T+2}, v{T+4}")
    e(f"v_mov_b32 v{T+3}, v{T+2}")
    e("s_nop 1")
    e(f"v_permlane32_swap_b32 v{T+2}, v{T+3}")
    e("s_nop 1")
    e(f"v_add_f32 v{T+2}, v{T+2}, v{T+3}")
    LLOC = T + 2
    MISC = slot_of(("st", 0))
    e(f"v_and_b32 v{T+3}, 31, v{V_LANE}")
    e(f"v_lshlrev_b32 v{T+3}, 3, v{T+3}")
    e(f"s_lshl_b32 s3, s{S_W}, 8")
    e(f"s_add_u32 s48, s3, {MISC}")
    e("s_xor_b32 s3, s3, 256")
    e(f"s_add_u32 s3, s3, {MISC}")
    e(f"v_add_u32 v{T+4}, s48, v{T+3}")
    e(f"v_add_u32 v{T+5}, s3, v{T+3}")
    e(f"ds_write_b32 v{T+4}, v{MLOC}")
    e(f"ds_write_b32 v{T+4}, v{LLOC} offset:4")
    e("s_waitcnt lgkmcnt(0)")
    barrier()
    e(f"ds_read_b64 v[{T+6}:{T+7}], v{T+5}")
    e("s_waitcnt lgkmcnt(0)")
    e(f"v_max_f32 v{T+3}, v{MLOC}, v{T+6}")
    e(f"v_sub_f32 v{T+4}, v{MLOC}, v{T+3}")
    e(f"v_sub_f32 v{T+5}, v{T+6}, v{T+3}")
    e(f"v_mul_f32 v{T+4}, s{S_C}, v{T+4}")
    e(f"v_mul_f32 v{T+5}, s{S_C}, v{T+5}")
    e(f"v_exp_f32 v{T+4}, v{T+4}")
    e(f"v_exp_f32 v{T+5}, v{T+5}")
    e("s_nop 0")
    e(f"v_mul_f32 v{T+3}, v{LLOC}, v{T+4}")
    e(f"v_fma_f32 v{T+3}, v{T+7}, v{T+5}, v{T+3}")
    e(f"v_rcp_f32 v{T+3}, v{T+3}")
    e("s_nop 0")
    e(f"v_mul_f32 v{T+3}, v{T+3}, v{T+4}")
    e(f"v_mov_b32 v{T+4}, v{T+3}")
    e(f"v_mov_b32 v{T+5}, v{T+3}")
    SC = T + 4
    for i in range(64):
        a = S + 2 * i
        e(f"v_pk_mul_f32 v[{a}:{a+1}], v[{a}:{a+1}], v[{SC}:{SC+1}]")
        if i >= 1:
            e(f"v_cvt_pk_bf16_f32 v{BIGA+i-1}, v{a-2}, v{a-1}")
    e(f"v_cvt_pk_bf16_f32 v{BIGA+63}, v{S+126}, v{S+127}")
    stamp(g, "sm_end")
    steps = []
    for s in range(8):
        for kk2 in range(2):
            for t in range(8):
                st = {}
                st["reads"] = (lambda buf, kk2=kk2, t=t: [
                    f"ds_read_b64_tr_b16 v[{buf}:{buf+1}], v{V_VA+t} offset:{kk2*8192}",
                    f"ds_read_b64_tr_b16 v[{buf+2}:{buf+3}], v{V_VA+t} offset:{kk2*8192+2048}"])
                st["mfma"] = (lambda buf, t=t, s=s, kk2=kk2: mfma(BIGC + 16 * t, buf, BIGA + 8 * s + 4 * kk2, s == 0 and kk2 == 0))
                if kk2 == 0 and t == 0:
                    def sync(s=s):
                        fr = [("st", 0)] if s == 0 else ([("v", 2*s-4), ("v", 2*s-3)] if s >= 2 else [])
                        barrier(needs=[("v", 2*s), ("v", 2*s+1)], frees=fr)
                        rebase_j("v", range(V_VA, V_VA + 8), slot_of(("v", 2*s)), slot_of(("v", 2*s+1)))
                    st["sync"] = sync
                steps.append(st)
    run_steps(steps)
    stamp(g, "p3end")
    g.wait_lds_all()
    e("s_nop 15")
    barrier()
    xs = [slot_of(("v", 12 + i)) for i in range(4)]
    e(f"s_mov_b32 s48, {xs[1]}")
    e(f"s_mov_b32 s49, {xs[3]}")
    e(f"s_cmp_eq_u32 s{S_J}, 0")
    e(f"s_cselect_b32 s37, {xs[0]}, s48")
    e(f"s_cselect_b32 s38, {xs[2]}, s49")
    e(f"s_cselect_b32 s39, s48, {xs[0]}")
    e(f"s_cselect_b32 s40, s49, {xs[2]}")
    e(f"s_cmp_eq_u32 s{S_QI}, 0")
    e("s_cselect_b32 s37, s37, s38")
    e("s_cselect_b32 s39, s39, s40")
    e(f"v_add_u32 v{T+2}, s37, v{V_XA}")
    e(f"v_add_u32 v{T+3}, s39, v{V_XA}")
    for i in range(16):
        e(f"ds_write_b128 v{T+2}, {vr(BIGC+64+4*i)} offset:{i*1024}")
    xch_addr(("ox", 0), ("ox", 1))
    e("s_waitcnt lgkmcnt(0)")
    barrier()
    for i in range(16):
        e(f"ds_read_b128 {vr(BIGC+64+4*i)}, v{T+3} offset:{i*1024}")
    for i in range(16):
        e(f"s_waitcnt lgkmcnt({15-i})")
        for r in range(4):
            e(f"v_add_f32 v{BIGC+4*i+r}, v{BIGC+4*i+r}, v{BIGC+64+4*i+r}")
    for t in range(4):
        for a in range(2):
            for q in range(4):
                src = BIGC + 16 * t + 8 * a + 2 * q
                e(f"v_cvt_pk_bf16_f32 v{BIGA + (2*t+a)*4 + q}, v{src}, v{src+1}")
    for f in range(8):
        e(f"ds_write_b128 v{T}, {vr(BIGA+4*f)} offset:{f*1024}")
    e("s_waitcnt lgkmcnt(0)")
    barrier(frees=[("v", 12), ("v", 13), ("v", 14), ("v", 15)])
    for kk in range(16):
        e(f"ds_read_b128 {vr(BIGA+4*kk)}, v{T+1} offset:{kk*1024}")
    e("s_waitcnt lgkmcnt(0)")
    stamp(g, "ox_end")
    def store_tile(tp):
        res = []
        if OPT["pbf16"]:
            for a in range(2):
                o = []
                for q in range(4):
                    src = BIGC + 16 * tp + 8 * a + 2 * q
                    o.append(f"v_cvt_pk_bf16_f32 v{BIGC + 16*tp + 8*a + q}, v{src}, v{src+1}")
                o.append(f"s_add_u32 s3, s{S_T0}, {tp}")
                o.append("s_sub_u32 s48, s3, 7")
                o.append("s_cmp_ge_u32 s3, 7")
                o.append("s_cselect_b32 s3, s48, s3")
                o.append("s_lshl_b32 s3, s3, 11")
                o.append(f"buffer_store_dwordx4 {vr(BIGC+16*tp+8*a)}, v{V_XA}, s[{S_WS}:{S_WS+3}], s3 offen offset:{a*1024} {OPT['pol_st']}")
                res.append(o)
            return res
        for gq in range(4):
            i = 4 * tp + gq
            res.append([f"s_mov_b32 s3, {tp*4096}",
                        f"buffer_store_dwordx4 {vr(BIGC+4*i)}, v{V_XA}, s[{S_WS}:{S_WS+3}], s3 offen offset:{gq*1024} {OPT['pol_st']}"])
        return res
    steps = []
    for tp in range(7):
        for c in range(16):
            def reads(buf, tp=tp, c=c):
                sb = slot_of(("wo", 2 * tp + (c >> 3)))
                rebase("o", [V_OA], sb, sb + 16384)
                off = sb + (c & 7) * 2048 - bias["o"]
                return [f"ds_read_b64_tr_b16 v[{buf}:{buf+1}], v{V_OA} offset:{off}",
                        f"ds_read_b64_tr_b16 v[{buf+2}:{buf+3}], v{V_OA} offset:{off+512}"]
            st = {"reads": reads, "mfma": (lambda buf, tp=tp, c=c: mfma(BIGC + 16 * tp, buf, BIGA + 4 * c, c == 0))}
            if c == 0:
                def sync(tp=tp):
                    fr = [("ox", 0), ("ox", 1)] if tp == 0 else ([("wo", 2*tp-4), ("wo", 2*tp-3)] if tp >= 2 else [])
                    if DEBUG.get("t4"): stamp(g, f"pre{tp}")
                    barrier(needs=[("wo", 2*tp), ("wo", 2*tp+1)], frees=fr)
                    if DEBUG.get("t4"): stamp(g, f"bar{tp}")
                st["sync"] = sync
            if tp >= 1 and c == 2:
                st["post"] = (lambda tp=tp: store_tile(tp - 1))
            steps.append(st)
    run_steps(steps)
    e("s_nop 15")
    e("s_nop 3")
    for d in store_tile(6):
        for s in d: e(s)
    stamp(g, "p4end")
    if DEBUG.get("t"): e("s_waitcnt vmcnt(0)")
    stamp(g, "end")
    stamp_dump(g)
    g.lab("attn_end")
    e("s_endpgm")
    if DEBUG.get("tl"):
        el("s_waitcnt lgkmcnt(0)")
        for i in range(5): el(f"v_mov_b32 v{64+i}, s{60+2*i}")
        el("s_lshl_b32 s3, s2, 2")
        el(f"s_add_u32 s3, s3, s{S_W}")
        el("s_lshl_b32 s3, s3, 7")
        el(f"s_add_u32 s3, s3, {(200<<20) + 64}")
        el("v_mov_b32 v100, 0")
        for i in range(5): el(f"buffer_store_dword v{64+i}, v100, s[52:55], s3 offen offset:{4*i}")
    el("s_endpgm")
    assert sched["next"] == len(order)
    return "\n".join(g.L) + "\n" + "\n".join(gl.L)

def gen_reduce_bf16(g):
    e = g.e
    g.lab("reduce_kernel")
    e("s_cmp_ge_u32 s2, 224")
    e("s_cbranch_scc1 reduce_end")
    e("s_load_dwordx2 s[4:5], s[0:1], 40")
    e("s_load_dwordx2 s[6:7], s[0:1], 56")
    e("v_and_b32 v1, 63, v0")
    e("v_lshrrev_b32 v2, 6, v0")
    e("s_nop 0")
    e("v_readfirstlane_b32 s3, v2")
    e("s_lshl_b32 s8, s2, 2")
    e("s_add_u32 s8, s8, s3")
    e("s_and_b32 s9, s8, 1")
    e("s_lshr_b32 s10, s8, 1")
    e("s_mul_i32 s11, s10, 9363")
    e("s_lshr_b32 s11, s11, 16")
    e("s_mul_i32 s12, s11, 7")
    e("s_sub_u32 s12, s10, s12")
    e("s_waitcnt lgkmcnt(0)")
    e("s_mov_b32 s16, s6")
    e("s_and_b32 s17, s7, 0xffff")
    e(f"s_mov_b32 s18, {16*16*4*14336}")
    e("s_mov_b32 s19, 0x20000")
    e("s_mov_b32 s20, s4")
    e("s_and_b32 s21, s5, 0xffff")
    e(f"s_mov_b32 s22, {8*128*448*2}")
    e("s_mov_b32 s23, 0x20000")
    e("s_lshl_b32 s13, s8, 10")
    e("v_lshlrev_b32 v3, 4, v1")
    for h in range(16):
        e(f"buffer_load_dwordx4 v[{8+4*h}:{11+4*h}], v3, s[16:19], s13 offen {OPT['pol_rd']}")
        if h < 15: e(f"s_add_u32 s13, s13, {64*14336}")
    e("s_lshr_b32 s24, s11, 1")
    e("s_lshl_b32 s24, s24, 5")
    e("s_and_b32 s25, s11, 1")
    e("s_lshl_b32 s26, s12, 1")
    e("s_add_u32 s26, s26, s25")
    e("s_lshl_b32 s26, s26, 5")
    e("s_lshl_b32 s27, s9, 4")
    e("s_add_u32 s26, s26, s27")
    e("s_mul_i32 s24, s24, 896")
    e("s_lshl_b32 s26, s26, 1")
    e("s_add_u32 s24, s24, s26")
    e("v_and_b32 v4, 31, v1")
    e("v_mul_u32_u24 v4, 896, v4")
    e("v_lshrrev_b32 v5, 5, v1")
    e("v_lshl_add_u32 v4, v5, 4, v4")
    A = 80
    for h in range(16):
        e(f"s_waitcnt vmcnt({15-h})")
        for k in range(4):
            src = 8 + 4 * h + k
            if h == 0:
                e(f"v_lshlrev_b32 v{A+2*k}, 16, v{src}")
                e(f"v_and_b32 v{A+2*k+1}, 0xffff0000, v{src}")
            else:
                e(f"v_lshlrev_b32 v{A+8}, 16, v{src}")
                e(f"v_and_b32 v{A+9}, 0xffff0000, v{src}")
                e(f"v_add_f32 v{A+2*k}, v{A+2*k}, v{A+8}")
                e(f"v_add_f32 v{A+2*k+1}, v{A+2*k+1}, v{A+9}")
    for k in range(4): e(f"v_cvt_pk_bf16_f32 v{A+12+k}, v{A+2*k}, v{A+2*k+1}")
    e(f"buffer_store_dwordx4 v[{A+12}:{A+15}], v4, s[20:23], s24 offen")
    if DEBUG.get("dbg2"):
        e("s_cmp_eq_u32 s2, 0")
        e("s_cbranch_scc0 reduce_end")
        e("s_load_dwordx2 s[28:29], s[0:1], 48")
        e("s_waitcnt lgkmcnt(0)")
        e("s_and_b32 s29, s29, 0xffff")
        e("s_mov_b32 s30, 256")
        e("s_mov_b32 s31, 0x20000")
        e("s_mov_b32 s32, s6")
        e("s_and_b32 s33, s7, 0xffff")
        e("s_mov_b32 s34, 0x10000000")
        e("s_mov_b32 s35, 0x20000")
        e("v_lshlrev_b32 v6, 2, v0")
        e(f"s_mov_b32 s3, {(200<<20) + 400*128}")
        e("buffer_load_dword v7, v6, s[32:35], s3 offen")
        e("s_waitcnt vmcnt(0)")
        e("v_readfirstlane_b32 s3, v7")
        e("s_nop 3")
        e("v_subrev_u32 v7, s3, v7")
        e("buffer_store_dword v7, v6, s[28:31], 0 offen")
    g.lab("reduce_end")
    e("s_endpgm")

def gen_reduce(g):
    if OPT["pbf16"]: return gen_reduce_bf16(g)
    e = g.e
    g.lab("reduce_kernel")
    e("s_cmp_ge_u32 s2, 224")
    e("s_cbranch_scc1 reduce_end")
    e("s_load_dwordx2 s[4:5], s[0:1], 40")
    e("s_load_dwordx2 s[6:7], s[0:1], 56")
    e("v_and_b32 v1, 63, v0")
    e("v_lshrrev_b32 v2, 6, v0")
    e("s_nop 0")
    e("v_readfirstlane_b32 s3, v2")
    e("s_lshl_b32 s8, s2, 2")
    e("s_add_u32 s8, s8, s3")
    e("s_and_b32 s9, s8, 1")
    e("s_lshr_b32 s10, s8, 1")
    e("s_mul_i32 s11, s10, 9363")
    e("s_lshr_b32 s11, s11, 16")
    e("s_mul_i32 s12, s11, 7")
    e("s_sub_u32 s12, s10, s12")
    e("s_waitcnt lgkmcnt(0)")
    e("s_mov_b32 s16, s6")
    e("s_and_b32 s17, s7, 0xffff")
    e(f"s_mov_b32 s18, {16*16*4*28672}")
    e("s_mov_b32 s19, 0x20000")
    e("s_mov_b32 s20, s4")
    e("s_and_b32 s21, s5, 0xffff")
    e(f"s_mov_b32 s22, {8*128*448*2}")
    e("s_mov_b32 s23, 0x20000")
    e("s_mul_i32 s13, s11, 28672")
    e("s_lshl_b32 s14, s12, 2")
    e("s_lshl_b32 s15, s9, 1")
    e("s_add_u32 s14, s14, s15")
    e("s_lshl_b32 s14, s14, 10")
    e("s_add_u32 s13, s13, s14")
    e("v_lshlrev_b32 v3, 4, v1")
    for h in range(16):
        e(f"buffer_load_dwordx4 v[{8+8*h}:{11+8*h}], v3, s[16:19], s13 offen {OPT['pol_rd']}")
        e(f"buffer_load_dwordx4 v[{12+8*h}:{15+8*h}], v3, s[16:19], s13 offen offset:1024 {OPT['pol_rd']}")
        if h < 15: e(f"s_add_u32 s13, s13, {64*28672}")
    e("s_lshr_b32 s24, s11, 1")
    e("s_lshl_b32 s24, s24, 5")
    e("s_and_b32 s25, s11, 1")
    e("s_lshl_b32 s26, s12, 1")
    e("s_add_u32 s26, s26, s25")
    e("s_lshl_b32 s26, s26, 5")
    e("s_lshl_b32 s27, s9, 4")
    e("s_add_u32 s26, s26, s27")
    e("s_mul_i32 s24, s24, 896")
    e("s_lshl_b32 s26, s26, 1")
    e("s_add_u32 s24, s24, s26")
    e("v_and_b32 v4, 31, v1")
    e("v_mul_u32_u24 v4, 896, v4")
    e("v_lshrrev_b32 v5, 5, v1")
    e("v_lshl_add_u32 v4, v5, 4, v4")
    for h in range(1, 16):
        e(f"s_waitcnt vmcnt({2*(15-h)})")
        for k in range(8): e(f"v_add_f32 v{8+k}, v{8+k}, v{8+8*h+k}")
    for k in range(4): e(f"v_cvt_pk_bf16_f32 v{8+k}, v{8+2*k}, v{9+2*k}")
    e("buffer_store_dwordx4 v[8:11], v4, s[20:23], s24 offen")
    g.lab("reduce_end")
    e("s_endpgm")

def kd(name, vgpr, sgpr):
    return f""".p2align 6
.amdhsa_kernel {name}
  .amdhsa_next_free_vgpr {vgpr}
  .amdhsa_next_free_sgpr {sgpr}
  .amdhsa_accum_offset {vgpr}
  .amdhsa_group_segment_fixed_size 0
  .amdhsa_kernarg_size 64
  .amdhsa_user_sgpr_count 2
  .amdhsa_user_sgpr_kernarg_segment_ptr 1
  .amdhsa_system_sgpr_workgroup_id_x 1
.end_amdhsa_kernel
"""

def main():
    out = sys.argv[1]
    only = None
    for a in sys.argv[2:]:
        if "=" in a:
            k, v = a.split("=", 1)
            if k == "only": only = v
            elif k.startswith("pol"): OPT[k] = (v.replace("_", " ") + " ") if v else ""
            else: OPT[k] = int(v)
        else:
            DEBUG[a] = 1
    a = gen_attn()
    g2 = G(); gen_reduce(g2); r = "\n".join(g2.L)
    txt = HEADER
    if only != "reduce":
        txt += f"; @launch kernel=attn_kernel grid=(256,1,1) block=(512,1,1) lds={LDS_TOTAL}\n"
    if only != "attn":
        txt += "; @launch kernel=reduce_kernel grid=(224,1,1) block=(256,1,1) lds=0\n"
    txt += '.amdgcn_target "amdgcn-amd-amdhsa--gfx950"\n.text\n'
    txt += ".globl attn_kernel\n.p2align 8\n.type attn_kernel,@function\n" + a + "\n"
    txt += ".globl reduce_kernel\n.p2align 8\n.type reduce_kernel,@function\n" + r + "\n"
    txt += '.section .rodata,"a"\n' + kd("attn_kernel", 256, 100) + kd("reduce_kernel", 136, 40)
    open(out, "w").write(txt)
main()
```

```python
import sys

HEADER = """; Kernarg layout for this problem (64 bytes, ptrs only, base s[0:1]):
;   offset   0: d_in[0] x  shape=(8, 128, 448) dtype=bfloat16 strides=(114688, 896, 2) contiguous=True
;   offset   8: d_in[1] k_cache  shape=(8, 16, 512, 256) dtype=bfloat16 strides=(4194304, 262144, 512, 2) contiguous=True
;   offset  16: d_in[2] v_cache  shape=(8, 16, 512, 256) dtype=bfloat16 strides=(4194304, 262144, 512, 2) contiguous=True
;   offset  24: d_in[3] wq  shape=(448, 4096) dtype=bfloat16 strides=(8192, 2) contiguous=True
;   offset  32: d_in[4] wo  shape=(4096, 448) dtype=bfloat16 strides=(896, 2) contiguous=True
;   offset  56: d_ws      268435456 bytes workspace
"""
SLOT = 16384
NSLOT = 10
LDS_TOTAL = SLOT * NSLOT
DEBUG = {}
OPT = {"pol_kv": "nt ", "pol_w": "", "pol_x": "", "pol_st": "", "pol_rd": "", "depth": 5, "early_k": 1, "wq_first": 4, "tm": 6, "prio": 0, "pbf16": 1, "maxb": 2, "rot_o": 1, "rot_q": 1, "cissue": 1, "tlbw": 0, "rot_kv": 0}

class G:
    def __init__(self):
        self.L = []
        self.vml = []
        self.lds = []
    def e(self, s): self.L.append("    " + s)
    def lab(self, s): self.L.append(s + ":")
    def vm(self, tag): self.vml.append(tag)
    def wait_vm(self, tags):
        idx = [i for i, t in enumerate(self.vml) if t in tags]
        if not idx: return
        n = len(self.vml) - 1 - idx[-1]
        assert n <= 63
        self.e(f"s_waitcnt vmcnt({n})")
        self.vml = self.vml[len(self.vml) - n:] if n > 0 else []
    def ldsop(self, tag): self.lds.append(tag)
    def wait_lds(self, tag):
        idx = [i for i, t in enumerate(self.lds) if t == tag]
        if not idx: return
        n = len(self.lds) - 1 - idx[-1]
        assert n <= 15, n
        self.e(f"s_waitcnt lgkmcnt({n})")
        self.lds = self.lds[len(self.lds) - n:] if n > 0 else []
    def wait_lds_all(self):
        if self.lds: self.e("s_waitcnt lgkmcnt(0)")
        self.lds = []

def vr(a, n=4): return f"v[{a}:{a+n-1}]"

V_LANE = 1
V_KA = 2
V_VA = 10
V_WA = 18
V_OA = 22
V_XA = 30
V_T = 32
FB = 40
NB = 6
BIGA = 64
QACC = 176
BIGC = 128
L_KD = 2
L_VD = 4
L_WD = 5
L_OD = 6
L_XD = 8
C_XD = 64
C_KD = 68
C_T = 72
S_X, S_K, S_V, S_WQ, S_WO, S_WS = 4, 8, 12, 16, 20, 24
S_W, S_QI, S_J, S_H, S_B, S_QH, S_W1K, S_WL = 28, 29, 30, 31, 32, 33, 34, 35
S_W896 = 36
S_WQOFF = 51
S_W7168 = 37
S_C2 = 42
S_NC = 44
S_KVA = 95
S_KVB = 96
S_T0 = 97
S_C0 = 98
S_C = 50

STAMPS = []
def stamp(g, name):
    if not DEBUG.get("t"): return
    if len(STAMPS) >= 19: return
    if DEBUG.get("t4") and name in ("p1end", "qx_end", "p2end", "sm_end"): return
    i = len(STAMPS); STAMPS.append(name)
    g.e(f"s_memtime s[{56+2*i}:{57+2*i}]")
def stamp_dump(g):
    if not DEBUG.get("t"): return
    e = g.e
    e("s_waitcnt lgkmcnt(0)")
    n = len(STAMPS)
    for i in range(n): e(f"v_mov_b32 v{64+i}, s{56+2*i}")
    if DEBUG.get("dbg"):
        for i in range(1, n): e(f"v_sub_u32 v{64+i}, v{64+i}, v64")
        e("s_load_dwordx2 s[52:53], s[0:1], 48")
        e("s_waitcnt lgkmcnt(0)")
        e("s_and_b32 s53, s53, 0xffff")
        e("s_mov_b32 s54, 256")
        e("s_mov_b32 s55, 0x20000")
        e("s_lshl_b32 s3, s2, 2")
        e(f"s_add_u32 s3, s3, s{S_W}")
        e("s_cmp_eq_u32 s3, 400")
        e("s_cbranch_scc0 attn_end")
        e("v_mov_b32 v100, 0")
        for i in range(1, n): e(f"buffer_store_dword v{64+i}, v100, s[52:55], 0 offen offset:{4*i}")
        print("stamps:", len(STAMPS), STAMPS)
        return
    e("s_lshl_b32 s3, s2, 2")
    e(f"s_add_u32 s3, s3, s{S_W}")
    e("s_lshl_b32 s3, s3, 7")
    e(f"s_add_u32 s3, s3, {200<<20}")
    e("v_mov_b32 v100, 0")
    for i in range(n): e(f"buffer_store_dword v{64+i}, v100, s[52:55], s3 offen offset:{4*i}")
    print("stamps:", len(STAMPS), STAMPS)

def gen_attn():
    g = G()
    gl = G()
    e = g.e
    el = gl.e
    DEPTH = OPT["depth"]
    g.lab("attn_kernel")
    e("s_cmp_ge_u32 s2, 256")
    e("s_cbranch_scc1 attn_end")
    e("s_load_dwordx8 s[36:43], s[0:1], 0")
    e("s_load_dwordx2 s[44:45], s[0:1], 32")
    e("s_load_dwordx2 s[46:47], s[0:1], 56")
    e(f"v_and_b32 v{V_LANE}, 63, v0")
    e(f"v_lshrrev_b32 v{V_T}, 6, v0")
    e("s_nop 0")
    e(f"v_readfirstlane_b32 s49, v{V_T}")
    e("s_and_b32 s3, s2, 7")
    e(f"s_lshr_b32 s{S_QH}, s2, 3")
    e(f"s_lshr_b32 s{S_B}, s{S_QH}, 2")
    e(f"s_lshr_b32 s{S_H}, s{S_QH}, 1")
    e(f"s_and_b32 s{S_H}, s{S_H}, 1")
    e(f"s_and_b32 s{S_QH}, s{S_QH}, 1")
    e("s_lshl_b32 s3, s3, 1")
    e(f"s_add_u32 s{S_H}, s{S_H}, s3")
    e(f"s_and_b32 s{S_W}, s49, 3")
    e(f"s_lshr_b32 s{S_QI}, s{S_W}, 1")
    e(f"s_and_b32 s{S_J}, s{S_W}, 1")
    e(f"s_lshl_b32 s{S_W1K}, s{S_W}, 10")
    e(f"s_mov_b32 s{S_WL}, s{S_J}")
    e(f"s_lshl_b32 s3, s{S_B}, 1")
    e(f"s_add_u32 s3, s3, s{S_QH}")
    e("s_mul_i32 s48, s3, 37")
    e("s_lshr_b32 s48, s48, 8")
    e("s_mul_i32 s48, s48, 7")
    e(f"s_sub_u32 s{S_T0}, s3, s48")
    if not OPT["rot_o"]: e(f"s_mov_b32 s{S_T0}, 0")
    e("s_sub_u32 s48, s3, 14")
    e("s_cmp_ge_u32 s3, 14")
    e(f"s_cselect_b32 s{S_C0}, s48, s3")
    if not OPT["rot_q"]: e(f"s_mov_b32 s{S_C0}, 0")
    e(f"s_lshl_b32 s3, s{S_QH}, 17")
    if not OPT["rot_kv"]: e("s_mov_b32 s3, 0")
    e(f"s_add_u32 s{S_KVA}, s{S_W1K}, s3")
    e(f"s_sub_u32 s{S_KVB}, s{S_W1K}, s3")
    e("s_cmp_ge_u32 s49, 4")
    e("s_waitcnt lgkmcnt(0)")
    e("s_cbranch_scc1 attn_loader")
    e(f"s_lshl_b32 s3, s{S_H}, 4")
    e(f"s_lshl_b32 s48, s{S_B}, 1")
    e("s_add_u32 s3, s3, s48")
    e(f"s_add_u32 s3, s3, s{S_QH}")
    e("s_lshl_b32 s3, s3, 2")
    e(f"s_add_u32 s3, s3, s{S_W}")
    WB = 14336 if OPT["pbf16"] else 28672
    e(f"s_mul_i32 s3, s3, {WB}")
    if DEBUG:
        e("s_mov_b32 s52, s46")
        e("s_and_b32 s53, s47, 0xffff")
        e("s_mov_b32 s54, 0x10000000")
        e("s_mov_b32 s55, 0x20000")
    e(f"s_add_u32 s{S_WS}, s46, s3")
    e(f"s_addc_u32 s{S_WS+1}, s47, 0")
    e(f"s_and_b32 s{S_WS+1}, s{S_WS+1}, 0xffff")
    e(f"s_mov_b32 s{S_WS+2}, {WB}")
    e(f"s_mov_b32 s{S_WS+3}, 0x20000")
    e(f"s_mov_b32 s{S_C}, 0x3db8aa3b")
    e(f"s_mov_b32 s{S_C2}, 0x3db8aa3b")
    e(f"s_mov_b32 s{S_NC}, 0xbdb8aa3b")
    e(f"s_mov_b32 s{S_C2+1}, 0x3db8aa3b")
    e(f"s_lshl_b32 s3, s{S_B}, 1")
    e(f"s_add_u32 s3, s3, s{S_QH}")
    e("s_mul_i32 s3, s3, 57344")
    e(f"s_add_u32 s{S_X}, s36, s3")
    e(f"s_addc_u32 s{S_X+1}, s37, 0")
    e(f"s_and_b32 s{S_X+1}, s{S_X+1}, 0xffff")
    e(f"s_mov_b32 s{S_X+2}, 57344")
    e(f"s_mov_b32 s{S_X+3}, 0x20000")
    e(f"s_lshl_b32 s3, s{S_B}, 4")
    e(f"s_add_u32 s3, s3, s{S_H}")
    e("s_lshl_b32 s3, s3, 18")
    e(f"s_add_u32 s{S_K}, s38, s3")
    e(f"s_addc_u32 s{S_K+1}, s39, 0")
    e(f"s_and_b32 s{S_K+1}, s{S_K+1}, 0xffff")
    e(f"s_mov_b32 s{S_K+2}, 262144")
    e(f"s_mov_b32 s{S_K+3}, 0x20000")
    e(f"s_mul_i32 s{S_W896}, s{S_W}, 896")
    e(f"v_mov_b32 v{C_T+2}, 0x40000000")
    for k in range(4):
        e(f"s_add_u32 s3, s{S_W}, {4*k}")
        e(f"v_xor_b32 v{C_T}, s3, v{V_LANE}")
        e(f"v_lshlrev_b32 v{C_T+1}, 4, v{C_T}")
        e(f"v_cmp_gt_u32 vcc, 56, v{C_T}")
        e("s_nop 1")
        e(f"v_cndmask_b32 v{C_XD+k}, v{C_T+2}, v{C_T+1}, vcc")
    e(f"v_lshrrev_b32 v{C_T}, 5, v{V_LANE}")
    e(f"v_and_b32 v{C_T+1}, 31, v{V_LANE}")
    e(f"v_xor_b32 v{C_T+1}, v{C_T+1}, v{C_T}")
    e(f"v_lshlrev_b32 v{C_T+1}, 4, v{C_T+1}")
    e(f"v_lshl_add_u32 v{C_T+1}, v{C_T}, 9, v{C_T+1}")
    e(f"s_lshl_b32 s3, s{S_W}, 5")
    e(f"v_xor_b32 v{C_KD}, s3, v{C_T+1}")
    e(f"v_xor_b32 v{C_KD+1}, 0x80, v{C_KD}")
    gl.lab("attn_loader")
    if DEBUG.get("tl"):
        el("s_memtime s[60:61]")
        el("s_mov_b32 s52, s46")
        el("s_and_b32 s53, s47, 0xffff")
        el("s_mov_b32 s54, 0x10000000")
        el("s_mov_b32 s55, 0x20000")
    if OPT["prio"]: el(f"s_setprio {OPT['prio']}")
    el(f"s_lshl_b32 s3, s{S_B}, 1")
    el(f"s_add_u32 s3, s3, s{S_QH}")
    el("s_mul_i32 s3, s3, 57344")
    el(f"s_add_u32 s{S_X}, s36, s3")
    el(f"s_addc_u32 s{S_X+1}, s37, 0")
    el(f"s_and_b32 s{S_X+1}, s{S_X+1}, 0xffff")
    el(f"s_mov_b32 s{S_X+2}, 57344")
    el(f"s_mov_b32 s{S_X+3}, 0x20000")
    el(f"s_mov_b32 s{S_WQ}, s42")
    el(f"s_and_b32 s{S_WQ+1}, s43, 0xffff")
    el(f"s_mov_b32 s{S_WQ+2}, {448*8192}")
    el(f"s_mov_b32 s{S_WQ+3}, 0x20000")
    el(f"s_lshl_b32 s3, s{S_B}, 4")
    el(f"s_add_u32 s3, s3, s{S_H}")
    el("s_lshl_b32 s3, s3, 18")
    el(f"s_add_u32 s{S_K}, s38, s3")
    el(f"s_addc_u32 s{S_K+1}, s39, 0")
    el(f"s_and_b32 s{S_K+1}, s{S_K+1}, 0xffff")
    el(f"s_mov_b32 s{S_K+2}, 262144")
    el(f"s_mov_b32 s{S_K+3}, 0x20000")
    el(f"s_add_u32 s{S_V}, s40, s3")
    el(f"s_addc_u32 s{S_V+1}, s41, 0")
    el(f"s_and_b32 s{S_V+1}, s{S_V+1}, 0xffff")
    el(f"s_mov_b32 s{S_V+2}, 262144")
    el(f"s_mov_b32 s{S_V+3}, 0x20000")
    el(f"s_mul_i32 s3, s{S_H}, {256*896}")
    el(f"s_add_u32 s{S_WO}, s44, s3")
    el(f"s_addc_u32 s{S_WO+1}, s45, 0")
    el(f"s_and_b32 s{S_WO+1}, s{S_WO+1}, 0xffff")
    el(f"s_mov_b32 s{S_WO+2}, {256*896}")
    el(f"s_mov_b32 s{S_WO+3}, 0x20000")
    el(f"s_lshl_b32 s{S_WQOFF}, s{S_H}, 9")
    el(f"s_lshl_b32 s3, s{S_W}, 14")
    el(f"s_add_u32 s{S_WQOFF}, s{S_WQOFF}, s3")
    el(f"s_mul_i32 s{S_W896}, s{S_W}, 896")
    T = 16
    hi, p = T, T + 1
    el(f"v_lshrrev_b32 v{hi}, 5, v{V_LANE}")
    el(f"v_and_b32 v{p}, 31, v{V_LANE}")
    el(f"v_mov_b32 v{T+4}, 0x40000000")
    for k in range(4):
        el(f"s_add_u32 s3, s{S_W}, {4*k}")
        el(f"v_xor_b32 v{T+2}, s3, v{V_LANE}")
        el(f"v_lshlrev_b32 v{T+3}, 4, v{T+2}")
        el(f"v_cmp_gt_u32 vcc, 56, v{T+2}")
        el("s_nop 1")
        el(f"v_cndmask_b32 v{L_XD+k}, v{T+4}, v{T+3}, vcc")
    el(f"s_lshl_b32 s3, s{S_WL}, 1")
    el(f"v_add_u32 v{T+2}, s3, v{hi}")
    el(f"v_lshlrev_b32 v{T+2}, 2, v{T+2}")
    el(f"v_xor_b32 v{T+2}, v{p}, v{T+2}")
    el(f"v_lshlrev_b32 v{T+2}, 4, v{T+2}")
    el(f"v_lshl_add_u32 v{L_VD}, v{hi}, 9, v{T+2}")
    el(f"v_lshl_add_u32 v{L_WD}, v{hi}, 13, v{T+2}")
    el(f"v_xor_b32 v{T+2}, v{p}, v{hi}")
    el(f"v_lshlrev_b32 v{T+2}, 4, v{T+2}")
    el(f"v_lshl_add_u32 v{T+3}, v{hi}, 9, v{T+2}")
    el(f"s_lshl_b32 s3, s{S_W}, 5")
    el(f"v_xor_b32 v{L_KD}, s3, v{T+3}")
    el(f"v_xor_b32 v{L_KD+1}, 0x80, v{L_KD}")
    el(f"v_lshrrev_b32 v{T+2}, 3, v{V_LANE}")
    el(f"v_mul_u32_u24 v{T+2}, 896, v{T+2}")
    el(f"v_lshrrev_b32 v{T+3}, 2, v{V_LANE}")
    el(f"v_lshrrev_b32 v{T+5}, 4, v{V_LANE}")
    el(f"v_xor_b32 v{T+3}, v{T+3}, v{T+5}")
    el(f"v_and_b32 v{T+3}, 1, v{T+3}")
    el(f"v_lshl_add_u32 v{T+2}, v{T+3}, 6, v{T+2}")
    el(f"v_and_b32 v{T+3}, 3, v{V_LANE}")
    el(f"v_lshl_add_u32 v{L_OD}, v{T+3}, 4, v{T+2}")
    el(f"s_mul_i32 s{S_W7168}, s{S_W}, 7168")

    if OPT["tlbw"]:
        el(f"v_lshlrev_b32 v{T+2}, 12, v{V_LANE}")
        el(f"s_cmp_eq_u32 s{S_W}, 0")
        el("s_cbranch_scc0 tlbw_1")
        el(f"buffer_load_dword v{T+6}, v{T+2}, s[{S_K}:{S_K+3}], 0 offen")
        el("s_branch tlbw_done")
        gl.lab("tlbw_1")
        el(f"s_cmp_eq_u32 s{S_W}, 1")
        el("s_cbranch_scc0 tlbw_2")
        el(f"buffer_load_dword v{T+6}, v{T+2}, s[{S_V}:{S_V+3}], 0 offen")
        el("s_branch tlbw_done")
        gl.lab("tlbw_2")
        el(f"s_cmp_eq_u32 s{S_W}, 2")
        el("s_cbranch_scc0 tlbw_done")
        el(f"buffer_load_dword v{T+6}, v{T+2}, s[{S_WO}:{S_WO+3}], 0 offen")
        gl.lab("tlbw_done")
        gl.vm("tlb")
    order = [("x", i) for i in range(4)]
    nwf = OPT["wq_first"]; ek = OPT["early_k"]
    for c in range(nwf): order.append(("wq", c))
    for s in range(ek): order += [("k", 2*s), ("k", 2*s+1)]
    for c in range(nwf, 14): order.append(("wq", c))
    order += [("qx", 0), ("qx", 1)]
    for s in range(ek, 8): order += [("k", 2*s), ("k", 2*s+1)]
    order.append(("st", 0))
    for s in range(8): order += [("v", 2*s), ("v", 2*s+1)]
    order += [("ox", 0), ("ox", 1)]
    for c in range(14): order.append(("wo", c))
    sched = {"next": 0, "free": list(range(NSLOT)), "slot": {}}
    cunits = set([("x", i) for i in range(4)] + [("k", i) for i in range(2 * OPT["early_k"])]) if OPT["cissue"] else set()
    def issue_unit(u, slot):
        kind, i = u
        tag = f"{kind}{i}"
        if kind in ("qx", "st", "ox"): return
        if u in cunits:
            for k in range(4):
                lds = slot * SLOT + k * 4096
                e(f"s_add_u32 m0, s{S_W1K}, {lds}")
                if kind == "k":
                    e(f"s_add_u32 s3, s{S_KVA if i < 8 else S_KVB}, {i*16384 + k*4096}")
                    e(f"buffer_load_dwordx4 v{C_KD+(k&1)}, s[{S_K}:{S_K+3}], s3 offen {OPT['pol_kv']}lds")
                else:
                    e(f"s_add_u32 s3, s{S_W896}, {(16*i + 4*k)*896}")
                    e(f"buffer_load_dwordx4 v{C_XD+k}, s[{S_X}:{S_X+3}], s3 offen {OPT['pol_x']}lds")
                g.vm(tag)
            return
        for k in range(4):
            lds = slot * SLOT + k * 4096
            el(f"s_add_u32 m0, s{S_W1K}, {lds}")
            if kind == "k":
                el(f"s_add_u32 s3, s{S_KVA if i < 8 else S_KVB}, {i*16384 + k*4096}")
                el(f"buffer_load_dwordx4 v{L_KD+(k&1)}, s[{S_K}:{S_K+3}], s3 offen {OPT['pol_kv']}lds")
            elif kind == "v":
                el(f"s_add_u32 s3, s{S_KVA if i < 8 else S_KVB}, {i*16384 + k*4096}")
                el(f"buffer_load_dwordx4 v{L_VD}, s[{S_V}:{S_V+3}], s3 offen {OPT['pol_kv']}lds")
            elif kind == "wq":
                if k == 0:
                    el(f"s_add_u32 s39, s{S_C0}, {i}")
                    el("s_sub_u32 s40, s39, 14")
                    el("s_cmp_ge_u32 s39, 14")
                    el("s_cselect_b32 s39, s40, s39")
                    el("s_lshl_b32 s39, s39, 18")
                    el(f"s_add_u32 s38, s39, s{S_WQOFF}")
                    el(f"s_add_u32 m0, s{S_W1K}, {lds}")
                el(f"s_add_u32 s3, s38, {k*65536}")
                el(f"buffer_load_dwordx4 v{L_WD}, s[{S_WQ}:{S_WQ+3}], s3 offen {OPT['pol_w']}lds")
            elif kind == "wo":
                if k == 0:
                    el(f"s_add_u32 s39, s{S_T0}, {i>>1}")
                    el("s_sub_u32 s40, s39, 7")
                    el("s_cmp_ge_u32 s39, 7")
                    el("s_cselect_b32 s39, s40, s39")
                    el("s_lshl_b32 s39, s39, 7")
                    el(f"s_add_u32 s38, s39, s{S_W7168}")
                    el(f"s_add_u32 m0, s{S_W1K}, {lds}")
                el(f"s_add_u32 s3, s38, {(128*(i&1) + 32*k)*896}")
                el(f"buffer_load_dwordx4 v{L_OD}, s[{S_WO}:{S_WO+3}], s3 offen {OPT['pol_w']}lds")
            elif kind == "x":
                el(f"s_add_u32 s3, s{S_W896}, {(16*i + 4*k)*896}")
                el(f"buffer_load_dwordx4 v{L_XD+k}, s[{S_X}:{S_X+3}], s3 offen {OPT['pol_x']}lds")
            gl.vm(tag)
    pending = []
    def alloc():
        while sched["free"] and sched["next"] < len(order):
            u = order[sched["next"]]; sched["next"] += 1
            s = sched["free"].pop(0)
            sched["slot"][u] = s
            if u[0] not in ("qx", "st", "ox"): pending.append(u)
    def flush(n=None, upto=None):
        k = 0
        while pending and (n is None or k < n):
            if upto is not None and not any(u in pending for u in upto): break
            u = pending.pop(0); issue_unit(u, sched["slot"][u]); k += 1
    def slot_of(u): return sched["slot"][u] * SLOT
    def barrier(needs=(), frees=(), maxb=None):
        flush(upto=list(needs)) if needs else None
        gl.wait_vm([f"{k}{i}" for (k, i) in needs])
        g.wait_vm([f"{k}{i}" for (k, i) in needs])
        el("s_barrier")
        e("s_barrier")
        for u in frees: sched["free"].append(sched["slot"][u])
        alloc()
        flush(n=OPT["maxb"] if maxb is None else maxb)
    if DEBUG.get("tl"): el("s_memtime s[62:63]")
    alloc()
    if OPT["cissue"]:
        for u in [u for u in pending if u in cunits]:
            pending.remove(u); issue_unit(u, sched["slot"][u])
        flush(n=2)
    else:
        flush(n=5)
    if DEBUG.get("tl"): el("s_memtime s[64:65]")
    assert [sched["slot"][("x", i)] for i in range(4)] == [0, 1, 2, 3]

    T = V_T
    hi, p = T, T + 1
    e(f"v_lshrrev_b32 v{hi}, 5, v{V_LANE}")
    e(f"v_and_b32 v{p}, 31, v{V_LANE}")
    e(f"v_lshlrev_b32 v{V_XA}, 4, v{V_LANE}")
    e(f"v_and_b32 v{T+2}, 15, v{p}")
    e(f"v_xor_b32 v{T+2}, v{T+2}, v{hi}")
    e(f"v_lshlrev_b32 v{V_KA}, 4, v{T+2}")
    e(f"s_lshl_b32 s3, s{S_QI}, 15")
    e(f"v_lshl_add_u32 v{V_KA+1}, v{p}, 10, s3")
    rr, dck = T + 2, T + 3
    e(f"v_bfe_u32 v{rr}, v{V_LANE}, 2, 2")
    e(f"v_bfe_u32 v{T+4}, v{V_LANE}, 4, 1")
    e(f"v_and_b32 v{T+5}, 1, v{V_LANE}")
    e(f"v_bfe_u32 v{T+6}, v{V_LANE}, 1, 1")
    e(f"v_lshlrev_b32 v{T+4}, 2, v{T+4}")
    e(f"v_lshlrev_b32 v{T+5}, 1, v{T+5}")
    e(f"v_or3_b32 v{dck}, v{T+4}, v{T+5}, v{T+6}")
    e(f"v_lshlrev_b32 v{dck}, 3, v{dck}")
    e(f"v_lshl_add_u32 v{T+4}, v{hi}, 3, v{rr}")
    e(f"v_lshl_add_u32 v{T+5}, v{T+4}, 9, v{dck}")
    e(f"v_lshl_add_u32 v{T+5}, v{rr}, 6, v{T+5}")
    e(f"s_lshl_b32 s48, s{S_J}, 8")
    e(f"v_add_u32 v{T+6}, s48, v{T+5}")
    e("s_xor_b32 s48, s48, 256")
    e(f"v_add_u32 v{T+7}, s48, v{T+5}")
    for t in range(4):
        e(f"v_xor_b32 v{V_VA+t}, {t<<6}, v{T+6}")
        e(f"v_xor_b32 v{V_VA+4+t}, {t<<6}, v{T+7}")
        e(f"v_xor_b32 v{V_WA+t}, {t<<6}, v{T+6}")
    e(f"v_lshl_add_u32 v{T+5}, v{T+4}, 7, v{dck}")
    e(f"v_lshrrev_b32 v{T+6}, 1, v{rr}")
    e(f"v_xor_b32 v{T+6}, s{S_J}, v{T+6}")
    e(f"v_lshl_add_u32 v{V_OA}, v{T+6}, 6, v{T+5}")
    stamp(g, "start")
    if DEBUG.get("tl"):
        gl.wait_vm(["x0"])
        el("s_memtime s[66:67]")
        gl.wait_vm(["x3"])
        el("s_memtime s[68:69]")
    barrier(needs=[("x", i) for i in range(4)])
    if DEBUG.get("t1"): stamp(g, "xbar")
    e(f"s_lshl_b32 s37, s{S_C0}, 1")
    for kk in range(28):
        e(f"s_add_u32 s3, s37, {kk}")
        e("s_sub_u32 s48, s3, 28")
        e("s_cmp_ge_u32 s3, 28")
        e("s_cselect_b32 s3, s48, s3")
        e("s_lshl_b32 s3, s3, 5")
        e(f"v_xor_b32 v{V_KA+2+(kk&3)}, s3, v{V_KA}")
        e(f"v_add_u32 v{V_KA+2+(kk&3)}, v{V_KA+2+(kk&3)}, v{V_KA+1}")
        e(f"ds_read_b128 {vr(BIGA+4*kk)}, v{V_KA+2+(kk&3)}")
        if kk % 12 == 11: e("s_waitcnt lgkmcnt(0)")
    e("s_waitcnt lgkmcnt(0)")
    e(f"v_and_b32 v{T+2}, 0x13, v{p}")
    e(f"v_and_b32 v{T+3}, 8, v{p}")
    e(f"v_lshrrev_b32 v{T+3}, 1, v{T+3}")
    e(f"v_and_b32 v{T+4}, 4, v{p}")
    e(f"v_lshlrev_b32 v{T+4}, 1, v{T+4}")
    e(f"v_or3_b32 v{T+2}, v{T+2}, v{T+3}, v{T+4}")
    e(f"v_and_b32 v{T+3}, 15, v{T+2}")
    e(f"v_xor_b32 v{T+3}, v{T+3}, v{hi}")
    e(f"v_lshlrev_b32 v{T+3}, 4, v{T+3}")
    e(f"v_lshl_add_u32 v{T+2}, v{T+2}, 9, v{T+3}")
    for k in range(8):
        e(f"v_xor_b32 v{V_KA+k}, {k<<5}, v{T+2}")

    bias = {"k": (0, 0), "v": (0, 0), "w": 0, "o": 0}
    def rebase_j(key, regs, b0, b1):
        o0, o1 = bias[key]
        d0, d1 = b0 - o0, b1 - o1
        if d0 == 0 and d1 == 0: return
        e(f"s_mov_b32 s49, {d1 & 0xffffffff}")
        e(f"s_cmp_eq_u32 s{S_J}, 0")
        e(f"s_cselect_b32 s3, {d0 & 0xffffffff}, s49")
        for r in regs: e(f"v_add_u32 v{r}, s3, v{r}")
        bias[key] = (b0, b1)
    def rebase(key, regs, lo, hi_):
        if lo - bias[key] < 0 or hi_ - bias[key] > 65535:
            d = lo - bias[key]
            e(f"s_mov_b32 s3, {d & 0xffffffff}")
            for r in regs: e(f"v_add_u32 v{r}, s3, v{r}")
            bias[key] = lo

    fb = {"n": 0}
    def run_steps(steps):
        n = len(steps)
        base = fb["n"]
        queue = []
        def do_reads(i):
            st = steps[i]
            if st.get("sync"): st["sync"]()
            buf = FB + 4 * ((base + i) % NB)
            for s in st["reads"](buf):
                e(s); g.ldsop(f"r{base+i}")
        for i in range(min(DEPTH, n)): do_reads(i)
        for i in range(n):
            if i + DEPTH < n: do_reads(i + DEPTH)
            g.wait_lds(f"r{base+i}")
            e(steps[i]["mfma"](FB + 4 * ((base + i) % NB)))
            if steps[i].get("post"): queue.extend(steps[i]["post"]())
            if queue:
                for s in queue.pop(0): e(s)
        while queue:
            for s in queue.pop(0): e(s)
        fb["n"] = base + n
    def mfma(acc, a, b, first=False):
        return f"v_mfma_f32_32x32x16_bf16 {vr(acc,16)}, {vr(a)}, {vr(b)}, " + ("0" if first else vr(acc,16))

    steps = []
    for c in range(14):
        for kk2 in range(2):
            for t in range(4):
                kk = 2 * c + kk2
                st = {}
                def reads(buf, c=c, kk2=kk2, t=t):
                    off = slot_of(("wq", c)) + kk2 * 8192 - bias["w"]
                    return [f"ds_read_b64_tr_b16 v[{buf}:{buf+1}], v{V_WA+t} offset:{off}",
                            f"ds_read_b64_tr_b16 v[{buf+2}:{buf+3}], v{V_WA+t} offset:{off+2048}"]
                st["reads"] = reads
                st["mfma"] = (lambda buf, t=t, kk=kk: mfma(QACC + 16 * t, buf, BIGA + 4 * kk, kk == 0))
                if kk2 == 0 and t == 0:
                    def sync(c=c):
                        fr = [("x", i) for i in range(4)] if c == 0 else ([("wq", c - 2)] if c >= 2 else [])
                        if DEBUG.get("t1") and c in (0, 1, 2, 3, 4, 6, 8, 10, 12): stamp(g, f"pre{c}")
                        barrier(needs=[("wq", c)], frees=fr)
                        if DEBUG.get("t1") and c in (0, 1, 2, 3, 4, 6, 8, 10, 12): stamp(g, f"bar{c}")
                        sb = slot_of(("wq", c))
                        rebase("w", range(V_WA, V_WA + 4), sb, sb + 8192 + 2048)
                    st["sync"] = sync
                steps.append(st)
    run_steps(steps)
    stamp(g, "p1end")
    e("s_nop 15")
    e("s_nop 3")
    for t in range(4):
        for a in range(2):
            for q in range(4):
                src = QACC + 16 * t + 8 * a + 2 * q
                e(f"v_cvt_pk_bf16_f32 v{BIGA + (2*t+a)*4 + q}, v{src}, v{src+1}")
    def xch_addr(u0, u1):
        e(f"s_mov_b32 s49, {slot_of(u1)}")
        e(f"s_cmp_eq_u32 s{S_QI}, 0")
        e(f"s_cselect_b32 s3, {slot_of(u0)}, s49")
        e(f"s_lshl_b32 s48, s{S_J}, 13")
        e("s_add_u32 s48, s48, s3")
        e(f"v_add_u32 v{T}, s48, v{V_XA}")
        e(f"v_add_u32 v{T+1}, s3, v{V_XA}")
    xch_addr(("qx", 0), ("qx", 1))
    for f in range(8):
        e(f"ds_write_b128 v{T}, {vr(BIGA+4*f)} offset:{f*1024}")
    e("s_waitcnt lgkmcnt(0)")
    barrier(frees=[("wq", 12), ("wq", 13)], maxb=0)
    for kk in range(16):
        e(f"ds_read_b128 {vr(BIGA+4*kk)}, v{T+1} offset:{kk*1024}")
    e("s_waitcnt lgkmcnt(0)")
    stamp(g, "qx_end")
    MT = [24, 25, 26, 27, 28, 29, 31, 23]
    LT = [18, 19, 20, 21, 0, 38, 39, 37]
    TT = 32
    def tile_softmax(t):
        a0 = BIGC + 16 * t
        o = []
        for i in range(8):
            a = a0 + 2 * i
            o.append(f"v_cvt_pk_bf16_f32 v{TT + (i & 1)}, v{a}, v{a+1}")
            o.append(f"v_lshlrev_b32 v{a}, 16, v{TT + (i & 1)}")
            o.append(f"v_and_b32 v{a+1}, 0xffff0000, v{TT + (i & 1)}")
        m = MT[t]
        o.append(f"v_max_f32 v{m}, v{a0}, v{a0+1}")
        for i in range(1, 8):
            o.append(f"v_max3_f32 v{m}, v{m}, v{a0+2*i}, v{a0+2*i+1}")
        o.append(f"v_mul_f32 v{TT+2}, s{S_NC}, v{m}")
        o.append(f"v_mov_b32 v{TT+3}, v{TT+2}")
        for i in range(8):
            a = a0 + 2 * i
            o.append(f"v_pk_fma_f32 v[{a}:{a+1}], v[{a}:{a+1}], s[{S_C2}:{S_C2+1}], v[{TT+2}:{TT+3}]")
        for i in range(16):
            o.append(f"v_exp_f32 v{a0+i}, v{a0+i}")
        o.append(f"v_pk_add_f32 v[{TT}:{TT+1}], v[{a0}:{a0+1}], v[{a0+2}:{a0+3}]")
        for i in range(2, 8):
            o.append(f"v_pk_add_f32 v[{TT}:{TT+1}], v[{TT}:{TT+1}], v[{a0+2*i}:{a0+2*i+1}]")
        o.append(f"v_add_f32 v{LT[t]}, v{TT}, v{TT+1}")
        return o
    steps = []
    for s in range(8):
        for kk in range(16):
            st = {}
            st["reads"] = (lambda buf, kk=kk: [f"ds_read_b128 {vr(buf)}, v{V_KA+(kk&7)} offset:{(kk>>3)*256}"])
            st["mfma"] = (lambda buf, s=s, kk=kk: mfma(BIGC + 16 * s, buf, BIGA + 4 * kk, kk == 0))
            if kk == 0:
                def sync(s=s):
                    fr = [("qx", 0), ("qx", 1)] if s == 0 else ([("k", 2*s-4), ("k", 2*s-3)] if s >= 2 else [])
                    barrier(needs=[("k", 2*s), ("k", 2*s+1)], frees=fr)
                    rebase_j("k", range(V_KA, V_KA + 8), slot_of(("k", 2*s)), slot_of(("k", 2*s+1)))
                st["sync"] = sync
            if s >= 1 and kk == 4:
                def post(s=s):
                    o = tile_softmax(s - 1)
                    return [o[i:i+6] for i in range(0, len(o), 6)]
                st["post"] = post
            steps.append(st)
    run_steps(steps)
    g.wait_lds_all()
    barrier(frees=[("k", 12), ("k", 13), ("k", 14), ("k", 15)], maxb=99)
    e("s_nop 7")
    stamp(g, "p2end")
    S = BIGC
    for x in tile_softmax(7): e(x)
    T2 = 32
    e(f"v_max3_f32 v{T2}, v{MT[0]}, v{MT[1]}, v{MT[2]}")
    e(f"v_max3_f32 v{T2}, v{T2}, v{MT[3]}, v{MT[4]}")
    e(f"v_max3_f32 v{T2}, v{T2}, v{MT[5]}, v{MT[6]}")
    e(f"v_max_f32 v{T2}, v{T2}, v{MT[7]}")
    e(f"v_mov_b32 v{T2+1}, v{T2}")
    e("s_nop 1")
    e(f"v_permlane32_swap_b32 v{T2}, v{T2+1}")
    e("s_nop 1")
    e(f"v_max_f32 v{T2}, v{T2}, v{T2+1}")
    for t in range(8):
        e(f"v_sub_f32 v{MT[t]}, v{MT[t]}, v{T2}")
    for t in range(8):
        e(f"v_mul_f32 v{MT[t]}, s{S_C}, v{MT[t]}")
    for t in range(8):
        e(f"v_exp_f32 v{MT[t]}, v{MT[t]}")
    e("s_nop 0")
    e(f"v_mul_f32 v{T2+2}, v{MT[0]}, v{LT[0]}")
    for t in range(1, 8):
        e(f"v_fma_f32 v{T2+2}, v{MT[t]}, v{LT[t]}, v{T2+2}")
    e(f"v_mov_b32 v{T2+3}, v{T2+2}")
    e("s_nop 1")
    e(f"v_permlane32_swap_b32 v{T2+2}, v{T2+3}")
    e("s_nop 1")
    e(f"v_add_f32 v{T2+2}, v{T2+2}, v{T2+3}")
    MLOC, LLOC = T2, T2 + 2
    MISC = slot_of(("st", 0))
    e(f"v_and_b32 v{T2+3}, 31, v{V_LANE}")
    e(f"v_lshlrev_b32 v{T2+3}, 3, v{T2+3}")
    e(f"s_lshl_b32 s3, s{S_W}, 8")
    e(f"s_add_u32 s48, s3, {MISC}")
    e("s_xor_b32 s3, s3, 256")
    e(f"s_add_u32 s3, s3, {MISC}")
    e(f"v_add_u32 v{T2+4}, s48, v{T2+3}")
    e(f"v_add_u32 v{T2+5}, s3, v{T2+3}")
    e(f"ds_write_b32 v{T2+4}, v{MLOC}")
    e(f"ds_write_b32 v{T2+4}, v{LLOC} offset:4")
    e("s_waitcnt lgkmcnt(0)")
    barrier(maxb=0)
    e(f"ds_read_b64 v[{T2+6}:{T2+7}], v{T2+5}")
    e("s_waitcnt lgkmcnt(0)")
    e(f"v_max_f32 v{T2+3}, v{MLOC}, v{T2+6}")
    e(f"v_sub_f32 v{T2+4}, v{MLOC}, v{T2+3}")
    e(f"v_sub_f32 v{T2+5}, v{T2+6}, v{T2+3}")
    e(f"v_mul_f32 v{T2+4}, s{S_C}, v{T2+4}")
    e(f"v_mul_f32 v{T2+5}, s{S_C}, v{T2+5}")
    e(f"v_exp_f32 v{T2+4}, v{T2+4}")
    e(f"v_exp_f32 v{T2+5}, v{T2+5}")
    e("s_nop 0")
    e(f"v_mul_f32 v{T2+3}, v{LLOC}, v{T2+4}")
    e(f"v_fma_f32 v{T2+3}, v{T2+7}, v{T2+5}, v{T2+3}")
    e(f"v_rcp_f32 v{T2+3}, v{T2+3}")
    e("s_nop 0")
    e(f"v_mul_f32 v{T2+3}, v{T2+3}, v{T2+4}")
    for t in range(8):
        e(f"v_mul_f32 v{T2+4}, v{T2+3}, v{MT[t]}")
        e(f"v_mul_f32 v{T2+5}, v{T2+3}, v{MT[t]}")
        for i in range(8):
            a = S + 16 * t + 2 * i
            e(f"v_pk_mul_f32 v[{a}:{a+1}], v[{a}:{a+1}], v[{T2+4}:{T2+5}]")
        for i in range(8):
            a = S + 16 * t + 2 * i
            e(f"v_cvt_pk_bf16_f32 v{BIGA+8*t+i}, v{a}, v{a+1}")
    stamp(g, "sm_end")
    steps = []
    for s in range(8):
        for kk2 in range(2):
            for t in range(8):
                st = {}
                st["reads"] = (lambda buf, kk2=kk2, t=t: [
                    f"ds_read_b64_tr_b16 v[{buf}:{buf+1}], v{V_VA+t} offset:{kk2*8192}",
                    f"ds_read_b64_tr_b16 v[{buf+2}:{buf+3}], v{V_VA+t} offset:{kk2*8192+2048}"])
                st["mfma"] = (lambda buf, t=t, s=s, kk2=kk2: mfma(BIGC + 16 * t, buf, BIGA + 8 * s + 4 * kk2, s == 0 and kk2 == 0))
                if kk2 == 0 and t == 0:
                    def sync(s=s):
                        fr = [("st", 0)] if s == 0 else ([("v", 2*s-4), ("v", 2*s-3)] if s >= 2 else [])
                        barrier(needs=[("v", 2*s), ("v", 2*s+1)], frees=fr)
                        rebase_j("v", range(V_VA, V_VA + 8), slot_of(("v", 2*s)), slot_of(("v", 2*s+1)))
                    st["sync"] = sync
                steps.append(st)
    run_steps(steps)
    stamp(g, "p3end")
    g.wait_lds_all()
    e("s_nop 15")
    barrier(maxb=0)
    xs = [slot_of(("v", 12 + i)) for i in range(4)]
    e(f"s_mov_b32 s48, {xs[1]}")
    e(f"s_mov_b32 s49, {xs[3]}")
    e(f"s_cmp_eq_u32 s{S_J}, 0")
    e(f"s_cselect_b32 s37, {xs[0]}, s48")
    e(f"s_cselect_b32 s38, {xs[2]}, s49")
    e(f"s_cselect_b32 s39, s48, {xs[0]}")
    e(f"s_cselect_b32 s40, s49, {xs[2]}")
    e(f"s_cmp_eq_u32 s{S_QI}, 0")
    e("s_cselect_b32 s37, s37, s38")
    e("s_cselect_b32 s39, s39, s40")
    e(f"v_add_u32 v{T+2}, s37, v{V_XA}")
    e(f"v_add_u32 v{T+3}, s39, v{V_XA}")
    for i in range(16):
        e(f"ds_write_b128 v{T+2}, {vr(BIGC+64+4*i)} offset:{i*1024}")
    xch_addr(("ox", 0), ("ox", 1))
    e("s_waitcnt lgkmcnt(0)")
    barrier(maxb=0)
    for i in range(16):
        e(f"ds_read_b128 {vr(BIGC+64+4*i)}, v{T+3} offset:{i*1024}")
    for i in range(16):
        e(f"s_waitcnt lgkmcnt({15-i})")
        for r in range(4):
            e(f"v_add_f32 v{BIGC+4*i+r}, v{BIGC+4*i+r}, v{BIGC+64+4*i+r}")
    for t in range(4):
        for a in range(2):
            for q in range(4):
                src = BIGC + 16 * t + 8 * a + 2 * q
                e(f"v_cvt_pk_bf16_f32 v{BIGA + (2*t+a)*4 + q}, v{src}, v{src+1}")
    for f in range(8):
        e(f"ds_write_b128 v{T}, {vr(BIGA+4*f)} offset:{f*1024}")
    e("s_waitcnt lgkmcnt(0)")
    barrier(frees=[("v", 12), ("v", 13), ("v", 14), ("v", 15)], maxb=0)
    for kk in range(16):
        e(f"ds_read_b128 {vr(BIGA+4*kk)}, v{T+1} offset:{kk*1024}")
    e("s_waitcnt lgkmcnt(0)")
    stamp(g, "ox_end")
    def store_tile(tp):
        res = []
        if OPT["pbf16"]:
            for a in range(2):
                o = []
                for q in range(4):
                    src = BIGC + 16 * tp + 8 * a + 2 * q
                    o.append(f"v_cvt_pk_bf16_f32 v{BIGC + 16*tp + 8*a + q}, v{src}, v{src+1}")
                o.append(f"s_add_u32 s3, s{S_T0}, {tp}")
                o.append("s_sub_u32 s48, s3, 7")
                o.append("s_cmp_ge_u32 s3, 7")
                o.append("s_cselect_b32 s3, s48, s3")
                o.append("s_lshl_b32 s3, s3, 11")
                o.append(f"buffer_store_dwordx4 {vr(BIGC+16*tp+8*a)}, v{V_XA}, s[{S_WS}:{S_WS+3}], s3 offen offset:{a*1024} {OPT['pol_st']}")
                res.append(o)
            return res
        for gq in range(4):
            i = 4 * tp + gq
            res.append([f"s_mov_b32 s3, {tp*4096}",
                        f"buffer_store_dwordx4 {vr(BIGC+4*i)}, v{V_XA}, s[{S_WS}:{S_WS+3}], s3 offen offset:{gq*1024} {OPT['pol_st']}"])
        return res
    steps = []
    for tp in range(7):
        for c in range(16):
            def reads(buf, tp=tp, c=c):
                sb = slot_of(("wo", 2 * tp + (c >> 3)))
                rebase("o", [V_OA], sb, sb + 16384)
                off = sb + (c & 7) * 2048 - bias["o"]
                return [f"ds_read_b64_tr_b16 v[{buf}:{buf+1}], v{V_OA} offset:{off}",
                        f"ds_read_b64_tr_b16 v[{buf+2}:{buf+3}], v{V_OA} offset:{off+512}"]
            st = {"reads": reads, "mfma": (lambda buf, tp=tp, c=c: mfma(BIGC + 16 * tp, buf, BIGA + 4 * c, c == 0))}
            if c == 0:
                def sync(tp=tp):
                    fr = [("ox", 0), ("ox", 1)] if tp == 0 else ([("wo", 2*tp-4), ("wo", 2*tp-3)] if tp >= 2 else [])
                    if DEBUG.get("t4"): stamp(g, f"pre{tp}")
                    barrier(needs=[("wo", 2*tp), ("wo", 2*tp+1)], frees=fr)
                    if DEBUG.get("t4"): stamp(g, f"bar{tp}")
                st["sync"] = sync
            if tp >= 1 and c == 2:
                st["post"] = (lambda tp=tp: store_tile(tp - 1))
            steps.append(st)
    run_steps(steps)
    e("s_nop 15")
    e("s_nop 3")
    for d in store_tile(6):
        for s in d: e(s)
    stamp(g, "p4end")
    if DEBUG.get("t"): e("s_waitcnt vmcnt(0)")
    stamp(g, "end")
    stamp_dump(g)
    g.lab("attn_end")
    e("s_endpgm")
    if DEBUG.get("tl"):
        el("s_waitcnt lgkmcnt(0)")
        for i in range(5): el(f"v_mov_b32 v{64+i}, s{60+2*i}")
        el("s_lshl_b32 s3, s2, 2")
        el(f"s_add_u32 s3, s3, s{S_W}")
        el("s_lshl_b32 s3, s3, 7")
        el(f"s_add_u32 s3, s3, {(200<<20) + 64}")
        el("v_mov_b32 v100, 0")
        for i in range(5): el(f"buffer_store_dword v{64+i}, v100, s[52:55], s3 offen offset:{4*i}")
    el("s_endpgm")
    assert sched["next"] == len(order)
    return "\n".join(g.L) + "\n" + "\n".join(gl.L)

def gen_reduce_bf16(g):
    e = g.e
    g.lab("reduce_kernel")
    e("s_cmp_ge_u32 s2, 224")
    e("s_cbranch_scc1 reduce_end")
    e("s_load_dwordx2 s[4:5], s[0:1], 40")
    e("s_load_dwordx2 s[6:7], s[0:1], 56")
    e("v_and_b32 v1, 63, v0")
    e("v_lshrrev_b32 v2, 6, v0")
    e("s_nop 0")
    e("v_readfirstlane_b32 s3, v2")
    e("s_lshl_b32 s8, s2, 2")
    e("s_add_u32 s8, s8, s3")
    e("s_and_b32 s9, s8, 1")
    e("s_lshr_b32 s10, s8, 1")
    e("s_mul_i32 s11, s10, 9363")
    e("s_lshr_b32 s11, s11, 16")
    e("s_mul_i32 s12, s11, 7")
    e("s_sub_u32 s12, s10, s12")
    e("s_waitcnt lgkmcnt(0)")
    e("s_mov_b32 s16, s6")
    e("s_and_b32 s17, s7, 0xffff")
    e(f"s_mov_b32 s18, {16*16*4*14336}")
    e("s_mov_b32 s19, 0x20000")
    e("s_mov_b32 s20, s4")
    e("s_and_b32 s21, s5, 0xffff")
    e(f"s_mov_b32 s22, {8*128*448*2}")
    e("s_mov_b32 s23, 0x20000")
    e("s_lshl_b32 s13, s8, 10")
    e("v_lshlrev_b32 v3, 4, v1")
    for h in range(16):
        e(f"buffer_load_dwordx4 v[{8+4*h}:{11+4*h}], v3, s[16:19], s13 offen {OPT['pol_rd']}")
        if h < 15: e(f"s_add_u32 s13, s13, {64*14336}")
    e("s_lshr_b32 s24, s11, 1")
    e("s_lshl_b32 s24, s24, 5")
    e("s_and_b32 s25, s11, 1")
    e("s_lshl_b32 s26, s12, 1")
    e("s_add_u32 s26, s26, s25")
    e("s_lshl_b32 s26, s26, 5")
    e("s_lshl_b32 s27, s9, 4")
    e("s_add_u32 s26, s26, s27")
    e("s_mul_i32 s24, s24, 896")
    e("s_lshl_b32 s26, s26, 1")
    e("s_add_u32 s24, s24, s26")
    e("v_and_b32 v4, 31, v1")
    e("v_mul_u32_u24 v4, 896, v4")
    e("v_lshrrev_b32 v5, 5, v1")
    e("v_lshl_add_u32 v4, v5, 4, v4")
    A = 80
    for h in range(16):
        e(f"s_waitcnt vmcnt({15-h})")
        for k in range(4):
            src = 8 + 4 * h + k
            if h == 0:
                e(f"v_lshlrev_b32 v{A+2*k}, 16, v{src}")
                e(f"v_and_b32 v{A+2*k+1}, 0xffff0000, v{src}")
            else:
                e(f"v_lshlrev_b32 v{A+8}, 16, v{src}")
                e(f"v_and_b32 v{A+9}, 0xffff0000, v{src}")
                e(f"v_add_f32 v{A+2*k}, v{A+2*k}, v{A+8}")
                e(f"v_add_f32 v{A+2*k+1}, v{A+2*k+1}, v{A+9}")
    for k in range(4): e(f"v_cvt_pk_bf16_f32 v{A+12+k}, v{A+2*k}, v{A+2*k+1}")
    e(f"buffer_store_dwordx4 v[{A+12}:{A+15}], v4, s[20:23], s24 offen")
    if DEBUG.get("dbg2"):
        e("s_cmp_eq_u32 s2, 0")
        e("s_cbranch_scc0 reduce_end")
        e("s_load_dwordx2 s[28:29], s[0:1], 48")
        e("s_waitcnt lgkmcnt(0)")
        e("s_and_b32 s29, s29, 0xffff")
        e("s_mov_b32 s30, 256")
        e("s_mov_b32 s31, 0x20000")
        e("s_mov_b32 s32, s6")
        e("s_and_b32 s33, s7, 0xffff")
        e("s_mov_b32 s34, 0x10000000")
        e("s_mov_b32 s35, 0x20000")
        e("v_lshlrev_b32 v6, 2, v0")
        e(f"s_mov_b32 s3, {(200<<20) + 400*128}")
        e("buffer_load_dword v7, v6, s[32:35], s3 offen")
        e("s_waitcnt vmcnt(0)")
        e("v_readfirstlane_b32 s3, v7")
        e("s_nop 3")
        e("v_subrev_u32 v7, s3, v7")
        e("buffer_store_dword v7, v6, s[28:31], 0 offen")
    g.lab("reduce_end")
    e("s_endpgm")

def gen_reduce(g):
    if OPT["pbf16"]: return gen_reduce_bf16(g)
    e = g.e
    g.lab("reduce_kernel")
    e("s_cmp_ge_u32 s2, 224")
    e("s_cbranch_scc1 reduce_end")
    e("s_load_dwordx2 s[4:5], s[0:1], 40")
    e("s_load_dwordx2 s[6:7], s[0:1], 56")
    e("v_and_b32 v1, 63, v0")
    e("v_lshrrev_b32 v2, 6, v0")
    e("s_nop 0")
    e("v_readfirstlane_b32 s3, v2")
    e("s_lshl_b32 s8, s2, 2")
    e("s_add_u32 s8, s8, s3")
    e("s_and_b32 s9, s8, 1")
    e("s_lshr_b32 s10, s8, 1")
    e("s_mul_i32 s11, s10, 9363")
    e("s_lshr_b32 s11, s11, 16")
    e("s_mul_i32 s12, s11, 7")
    e("s_sub_u32 s12, s10, s12")
    e("s_waitcnt lgkmcnt(0)")
    e("s_mov_b32 s16, s6")
    e("s_and_b32 s17, s7, 0xffff")
    e(f"s_mov_b32 s18, {16*16*4*28672}")
    e("s_mov_b32 s19, 0x20000")
    e("s_mov_b32 s20, s4")
    e("s_and_b32 s21, s5, 0xffff")
    e(f"s_mov_b32 s22, {8*128*448*2}")
    e("s_mov_b32 s23, 0x20000")
    e("s_mul_i32 s13, s11, 28672")
    e("s_lshl_b32 s14, s12, 2")
    e("s_lshl_b32 s15, s9, 1")
    e("s_add_u32 s14, s14, s15")
    e("s_lshl_b32 s14, s14, 10")
    e("s_add_u32 s13, s13, s14")
    e("v_lshlrev_b32 v3, 4, v1")
    for h in range(16):
        e(f"buffer_load_dwordx4 v[{8+8*h}:{11+8*h}], v3, s[16:19], s13 offen {OPT['pol_rd']}")
        e(f"buffer_load_dwordx4 v[{12+8*h}:{15+8*h}], v3, s[16:19], s13 offen offset:1024 {OPT['pol_rd']}")
        if h < 15: e(f"s_add_u32 s13, s13, {64*28672}")
    e("s_lshr_b32 s24, s11, 1")
    e("s_lshl_b32 s24, s24, 5")
    e("s_and_b32 s25, s11, 1")
    e("s_lshl_b32 s26, s12, 1")
    e("s_add_u32 s26, s26, s25")
    e("s_lshl_b32 s26, s26, 5")
    e("s_lshl_b32 s27, s9, 4")
    e("s_add_u32 s26, s26, s27")
    e("s_mul_i32 s24, s24, 896")
    e("s_lshl_b32 s26, s26, 1")
    e("s_add_u32 s24, s24, s26")
    e("v_and_b32 v4, 31, v1")
    e("v_mul_u32_u24 v4, 896, v4")
    e("v_lshrrev_b32 v5, 5, v1")
    e("v_lshl_add_u32 v4, v5, 4, v4")
    for h in range(1, 16):
        e(f"s_waitcnt vmcnt({2*(15-h)})")
        for k in range(8): e(f"v_add_f32 v{8+k}, v{8+k}, v{8+8*h+k}")
    for k in range(4): e(f"v_cvt_pk_bf16_f32 v{8+k}, v{8+2*k}, v{9+2*k}")
    e("buffer_store_dwordx4 v[8:11], v4, s[20:23], s24 offen")
    g.lab("reduce_end")
    e("s_endpgm")

def kd(name, vgpr, sgpr):
    return f""".p2align 6
.amdhsa_kernel {name}
  .amdhsa_next_free_vgpr {vgpr}
  .amdhsa_next_free_sgpr {sgpr}
  .amdhsa_accum_offset {vgpr}
  .amdhsa_group_segment_fixed_size 0
  .amdhsa_kernarg_size 64
  .amdhsa_user_sgpr_count 2
  .amdhsa_user_sgpr_kernarg_segment_ptr 1
  .amdhsa_system_sgpr_workgroup_id_x 1
.end_amdhsa_kernel
"""

def main():
    out = sys.argv[1]
    only = None
    for a in sys.argv[2:]:
        if "=" in a:
            k, v = a.split("=", 1)
            if k == "only": only = v
            elif k.startswith("pol"): OPT[k] = (v.replace("_", " ") + " ") if v else ""
            else: OPT[k] = int(v)
        else:
            DEBUG[a] = 1
    a = gen_attn()
    g2 = G(); gen_reduce(g2); r = "\n".join(g2.L)
    txt = HEADER
    if only != "reduce":
        txt += f"; @launch kernel=attn_kernel grid=(256,1,1) block=(512,1,1) lds={LDS_TOTAL}\n"
    if only != "attn":
        txt += "; @launch kernel=reduce_kernel grid=(224,1,1) block=(256,1,1) lds=0\n"
    txt += '.amdgcn_target "amdgcn-amd-amdhsa--gfx950"\n.text\n'
    txt += ".globl attn_kernel\n.p2align 8\n.type attn_kernel,@function\n" + a + "\n"
    txt += ".globl reduce_kernel\n.p2align 8\n.type reduce_kernel,@function\n" + r + "\n"
    txt += '.section .rodata,"a"\n' + kd("attn_kernel", 256, 100) + kd("reduce_kernel", 136, 40)
    open(out, "w").write(txt)
main()
```

```python
import sys

HEADER = """; Kernarg layout for this problem (64 bytes, ptrs only, base s[0:1]):
;   offset   0: d_in[0] x  shape=(8, 128, 448) dtype=bfloat16 strides=(114688, 896, 2) contiguous=True
;   offset   8: d_in[1] k_cache  shape=(8, 16, 512, 256) dtype=bfloat16 strides=(4194304, 262144, 512, 2) contiguous=True
;   offset  16: d_in[2] v_cache  shape=(8, 16, 512, 256) dtype=bfloat16 strides=(4194304, 262144, 512, 2) contiguous=True
;   offset  24: d_in[3] wq  shape=(448, 4096) dtype=bfloat16 strides=(8192, 2) contiguous=True
;   offset  32: d_in[4] wo  shape=(4096, 448) dtype=bfloat16 strides=(896, 2) contiguous=True
;   offset  56: d_ws      268435456 bytes workspace
"""
SLOT = 16384
NSLOT = 10
LDS_TOTAL = SLOT * NSLOT
DEBUG = {}
OPT = {"pol_kv": "nt ", "pol_w": "", "pol_x": "", "pol_st": "", "pol_rd": "", "depth": 5, "early_k": 1, "wq_first": 4, "tm": 6, "prio": 0, "pbf16": 1, "maxb": 2, "rot_o": 1, "rot_q": 1, "cissue": 1, "tlbw": 0, "rot_kv": 0, "kin": 0, "l2pf": 0, "pol_pf": ""}

class G:
    def __init__(self):
        self.L = []
        self.vml = []
        self.lds = []
    def e(self, s): self.L.append("    " + s)
    def lab(self, s): self.L.append(s + ":")
    def vm(self, tag): self.vml.append(tag)
    def wait_vm(self, tags):
        idx = [i for i, t in enumerate(self.vml) if t in tags]
        if not idx: return
        n = len(self.vml) - 1 - idx[-1]
        assert n <= 63
        self.e(f"s_waitcnt vmcnt({n})")
        self.vml = self.vml[len(self.vml) - n:] if n > 0 else []
    def ldsop(self, tag): self.lds.append(tag)
    def wait_lds(self, tag):
        idx = [i for i, t in enumerate(self.lds) if t == tag]
        if not idx: return
        n = len(self.lds) - 1 - idx[-1]
        assert n <= 15, n
        self.e(f"s_waitcnt lgkmcnt({n})")
        self.lds = self.lds[len(self.lds) - n:] if n > 0 else []
    def wait_lds_all(self):
        if self.lds: self.e("s_waitcnt lgkmcnt(0)")
        self.lds = []

def vr(a, n=4): return f"v[{a}:{a+n-1}]"

V_LANE = 1
V_KA = 2
V_VA = 10
V_WA = 18
V_OA = 22
V_XA = 30
V_T = 32
FB = 40
NB = 6
BIGA = 64
QACC = 176
BIGC = 128
L_KD = 2
L_VD = 4
L_WD = 5
L_OD = 6
L_XD = 8
C_XD = 64
C_KD = 68
C_T = 72
S_X, S_K, S_V, S_WQ, S_WO, S_WS = 4, 8, 12, 16, 20, 24
S_W, S_QI, S_J, S_H, S_B, S_QH, S_W1K, S_WL = 28, 29, 30, 31, 32, 33, 34, 35
S_W896 = 36
S_WQOFF = 51
S_W7168 = 37
S_C2 = 42
S_NC = 44
S_KVA = 95
S_KVB = 96
S_T0 = 97
S_C0 = 98
S_C = 50

STAMPS = []
def stamp(g, name):
    if not DEBUG.get("t"): return
    if len(STAMPS) >= 19: return
    if DEBUG.get("t4") and name in ("p1end", "qx_end", "p2end", "sm_end"): return
    i = len(STAMPS); STAMPS.append(name)
    g.e(f"s_memrealtime s[{56+2*i}:{57+2*i}]" if DEBUG.get("rt") else f"s_memtime s[{56+2*i}:{57+2*i}]")
def stamp_dump(g):
    if not DEBUG.get("t"): return
    e = g.e
    e("s_waitcnt lgkmcnt(0)")
    n = len(STAMPS)
    for i in range(n): e(f"v_mov_b32 v{64+i}, s{56+2*i}")
    if DEBUG.get("dbg"):
        for i in range(1, n): e(f"v_sub_u32 v{64+i}, v{64+i}, v64")
        e("s_load_dwordx2 s[52:53], s[0:1], 48")
        e("s_waitcnt lgkmcnt(0)")
        e("s_and_b32 s53, s53, 0xffff")
        e("s_mov_b32 s54, 256")
        e("s_mov_b32 s55, 0x20000")
        e("s_lshl_b32 s3, s2, 2")
        e(f"s_add_u32 s3, s3, s{S_W}")
        e("s_cmp_eq_u32 s3, 400")
        e("s_cbranch_scc0 attn_end")
        e("v_mov_b32 v100, 0")
        for i in range(1, n): e(f"buffer_store_dword v{64+i}, v100, s[52:55], 0 offen offset:{4*i}")
        print("stamps:", len(STAMPS), STAMPS)
        return
    e("s_lshl_b32 s3, s2, 2")
    e(f"s_add_u32 s3, s3, s{S_W}")
    e("s_lshl_b32 s3, s3, 7")
    e(f"s_add_u32 s3, s3, {200<<20}")
    e("v_mov_b32 v100, 0")
    for i in range(n): e(f"buffer_store_dword v{64+i}, v100, s[52:55], s3 offen offset:{4*i}")
    print("stamps:", len(STAMPS), STAMPS)

def gen_attn():
    g = G()
    gl = G()
    e = g.e
    el = gl.e
    DEPTH = OPT["depth"]
    g.lab("attn_kernel")
    e("s_cmp_ge_u32 s2, 256")
    e("s_cbranch_scc1 attn_end")
    e("s_load_dwordx8 s[36:43], s[0:1], 0")
    e("s_load_dwordx2 s[44:45], s[0:1], 32")
    e("s_load_dwordx2 s[46:47], s[0:1], 56")
    stamp(g, "entry")
    e(f"v_and_b32 v{V_LANE}, 63, v0")
    e(f"v_lshrrev_b32 v{V_T}, 6, v0")
    e("s_nop 0")
    e(f"v_readfirstlane_b32 s49, v{V_T}")
    e("s_and_b32 s3, s2, 7")
    e(f"s_lshr_b32 s{S_QH}, s2, 3")
    e(f"s_lshr_b32 s{S_B}, s{S_QH}, 2")
    e(f"s_lshr_b32 s{S_H}, s{S_QH}, 1")
    e(f"s_and_b32 s{S_H}, s{S_H}, 1")
    e(f"s_and_b32 s{S_QH}, s{S_QH}, 1")
    e("s_lshl_b32 s3, s3, 1")
    e(f"s_add_u32 s{S_H}, s{S_H}, s3")
    e(f"s_and_b32 s{S_W}, s49, 3")
    e(f"s_lshr_b32 s{S_QI}, s{S_W}, 1")
    e(f"s_and_b32 s{S_J}, s{S_W}, 1")
    e(f"s_lshl_b32 s{S_W1K}, s{S_W}, 10")
    e(f"s_mov_b32 s{S_WL}, s{S_J}")
    e(f"s_lshl_b32 s3, s{S_B}, 1")
    e(f"s_add_u32 s3, s3, s{S_QH}")
    e("s_mul_i32 s48, s3, 37")
    e("s_lshr_b32 s48, s48, 8")
    e("s_mul_i32 s48, s48, 7")
    e(f"s_sub_u32 s{S_T0}, s3, s48")
    if not OPT["rot_o"]: e(f"s_mov_b32 s{S_T0}, 0")
    e("s_sub_u32 s48, s3, 14")
    e("s_cmp_ge_u32 s3, 14")
    e(f"s_cselect_b32 s{S_C0}, s48, s3")
    if not OPT["rot_q"]: e(f"s_mov_b32 s{S_C0}, 0")
    e(f"s_lshl_b32 s3, s{S_QH}, 17")
    if not OPT["rot_kv"]: e("s_mov_b32 s3, 0")
    e(f"s_add_u32 s{S_KVA}, s{S_W1K}, s3")
    e(f"s_sub_u32 s{S_KVB}, s{S_W1K}, s3")
    e("s_cmp_ge_u32 s49, 4")
    e("s_waitcnt lgkmcnt(0)")
    e("s_cbranch_scc1 attn_loader")
    e(f"s_lshl_b32 s3, s{S_H}, 4")
    e(f"s_lshl_b32 s48, s{S_B}, 1")
    e("s_add_u32 s3, s3, s48")
    e(f"s_add_u32 s3, s3, s{S_QH}")
    e("s_lshl_b32 s3, s3, 2")
    e(f"s_add_u32 s3, s3, s{S_W}")
    WB = 14336 if OPT["pbf16"] else 28672
    e(f"s_mul_i32 s3, s3, {WB}")
    if DEBUG:
        e("s_mov_b32 s52, s46")
        e("s_and_b32 s53, s47, 0xffff")
        e("s_mov_b32 s54, 0x10000000")
        e("s_mov_b32 s55, 0x20000")
    e(f"s_add_u32 s{S_WS}, s46, s3")
    e(f"s_addc_u32 s{S_WS+1}, s47, 0")
    e(f"s_and_b32 s{S_WS+1}, s{S_WS+1}, 0xffff")
    e(f"s_mov_b32 s{S_WS+2}, {WB}")
    e(f"s_mov_b32 s{S_WS+3}, 0x20000")
    e(f"s_mov_b32 s{S_C}, 0x3db8aa3b")
    e(f"s_mov_b32 s{S_C2}, 0x3db8aa3b")
    e(f"s_mov_b32 s{S_NC}, 0xbdb8aa3b")
    e(f"s_mov_b32 s{S_C2+1}, 0x3db8aa3b")
    e(f"s_lshl_b32 s3, s{S_B}, 1")
    e(f"s_add_u32 s3, s3, s{S_QH}")
    e("s_mul_i32 s3, s3, 57344")
    e(f"s_add_u32 s{S_X}, s36, s3")
    e(f"s_addc_u32 s{S_X+1}, s37, 0")
    e(f"s_and_b32 s{S_X+1}, s{S_X+1}, 0xffff")
    e(f"s_mov_b32 s{S_X+2}, 57344")
    e(f"s_mov_b32 s{S_X+3}, 0x20000")
    e(f"s_lshl_b32 s3, s{S_B}, 4")
    e(f"s_add_u32 s3, s3, s{S_H}")
    e("s_lshl_b32 s3, s3, 18")
    e(f"s_add_u32 s{S_K}, s38, s3")
    e(f"s_addc_u32 s{S_K+1}, s39, 0")
    e(f"s_and_b32 s{S_K+1}, s{S_K+1}, 0xffff")
    e(f"s_mov_b32 s{S_K+2}, 262144")
    e(f"s_mov_b32 s{S_K+3}, 0x20000")
    e(f"s_mul_i32 s{S_W896}, s{S_W}, 896")
    e(f"v_mov_b32 v{C_T+2}, 0x40000000")
    for k in range(4):
        e(f"s_add_u32 s3, s{S_W}, {4*k}")
        e(f"v_xor_b32 v{C_T}, s3, v{V_LANE}")
        e(f"v_lshlrev_b32 v{C_T+1}, 4, v{C_T}")
        e(f"v_cmp_gt_u32 vcc, 56, v{C_T}")
        e("s_nop 1")
        e(f"v_cndmask_b32 v{C_XD+k}, v{C_T+2}, v{C_T+1}, vcc")
    e(f"v_lshrrev_b32 v{C_T}, 5, v{V_LANE}")
    e(f"v_and_b32 v{C_T+1}, 31, v{V_LANE}")
    e(f"v_xor_b32 v{C_T+1}, v{C_T+1}, v{C_T}")
    e(f"v_lshlrev_b32 v{C_T+1}, 4, v{C_T+1}")
    e(f"v_lshl_add_u32 v{C_T+1}, v{C_T}, 9, v{C_T+1}")
    e(f"s_lshl_b32 s3, s{S_W}, 5")
    e(f"v_xor_b32 v{C_KD}, s3, v{C_T+1}")
    e(f"v_xor_b32 v{C_KD+1}, 0x80, v{C_KD}")
    gl.lab("attn_loader")
    if DEBUG.get("tl"):
        el("s_memtime s[60:61]")
        el("s_mov_b32 s52, s46")
        el("s_and_b32 s53, s47, 0xffff")
        el("s_mov_b32 s54, 0x10000000")
        el("s_mov_b32 s55, 0x20000")
    if OPT["prio"]: el(f"s_setprio {OPT['prio']}")
    el(f"s_lshl_b32 s3, s{S_B}, 1")
    el(f"s_add_u32 s3, s3, s{S_QH}")
    el("s_mul_i32 s3, s3, 57344")
    el(f"s_add_u32 s{S_X}, s36, s3")
    el(f"s_addc_u32 s{S_X+1}, s37, 0")
    el(f"s_and_b32 s{S_X+1}, s{S_X+1}, 0xffff")
    el(f"s_mov_b32 s{S_X+2}, 57344")
    el(f"s_mov_b32 s{S_X+3}, 0x20000")
    el(f"s_mov_b32 s{S_WQ}, s42")
    el(f"s_and_b32 s{S_WQ+1}, s43, 0xffff")
    el(f"s_mov_b32 s{S_WQ+2}, {448*8192}")
    el(f"s_mov_b32 s{S_WQ+3}, 0x20000")
    el(f"s_lshl_b32 s3, s{S_B}, 4")
    el(f"s_add_u32 s3, s3, s{S_H}")
    el("s_lshl_b32 s3, s3, 18")
    el(f"s_add_u32 s{S_K}, s38, s3")
    el(f"s_addc_u32 s{S_K+1}, s39, 0")
    el(f"s_and_b32 s{S_K+1}, s{S_K+1}, 0xffff")
    el(f"s_mov_b32 s{S_K+2}, 262144")
    el(f"s_mov_b32 s{S_K+3}, 0x20000")
    el(f"s_add_u32 s{S_V}, s40, s3")
    el(f"s_addc_u32 s{S_V+1}, s41, 0")
    el(f"s_and_b32 s{S_V+1}, s{S_V+1}, 0xffff")
    el(f"s_mov_b32 s{S_V+2}, 262144")
    el(f"s_mov_b32 s{S_V+3}, 0x20000")
    el(f"s_mul_i32 s3, s{S_H}, {256*896}")
    el(f"s_add_u32 s{S_WO}, s44, s3")
    el(f"s_addc_u32 s{S_WO+1}, s45, 0")
    el(f"s_and_b32 s{S_WO+1}, s{S_WO+1}, 0xffff")
    el(f"s_mov_b32 s{S_WO+2}, {256*896}")
    el(f"s_mov_b32 s{S_WO+3}, 0x20000")
    el(f"s_lshl_b32 s{S_WQOFF}, s{S_H}, 9")
    el(f"s_lshl_b32 s3, s{S_W}, 14")
    el(f"s_add_u32 s{S_WQOFF}, s{S_WQOFF}, s3")
    el(f"s_mul_i32 s{S_W896}, s{S_W}, 896")
    T = 16
    hi, p = T, T + 1
    el(f"v_lshrrev_b32 v{hi}, 5, v{V_LANE}")
    el(f"v_and_b32 v{p}, 31, v{V_LANE}")
    el(f"v_mov_b32 v{T+4}, 0x40000000")
    for k in range(4):
        el(f"s_add_u32 s3, s{S_W}, {4*k}")
        el(f"v_xor_b32 v{T+2}, s3, v{V_LANE}")
        el(f"v_lshlrev_b32 v{T+3}, 4, v{T+2}")
        el(f"v_cmp_gt_u32 vcc, 56, v{T+2}")
        el("s_nop 1")
        el(f"v_cndmask_b32 v{L_XD+k}, v{T+4}, v{T+3}, vcc")
    el(f"s_lshl_b32 s3, s{S_WL}, 1")
    el(f"v_add_u32 v{T+2}, s3, v{hi}")
    el(f"v_lshlrev_b32 v{T+2}, 2, v{T+2}")
    el(f"v_xor_b32 v{T+2}, v{p}, v{T+2}")
    el(f"v_lshlrev_b32 v{T+2}, 4, v{T+2}")
    el(f"v_lshl_add_u32 v{L_VD}, v{hi}, 9, v{T+2}")
    el(f"v_lshl_add_u32 v{L_WD}, v{hi}, 13, v{T+2}")
    el(f"v_xor_b32 v{T+2}, v{p}, v{hi}")
    el(f"v_lshlrev_b32 v{T+2}, 4, v{T+2}")
    el(f"v_lshl_add_u32 v{T+3}, v{hi}, 9, v{T+2}")
    el(f"s_lshl_b32 s3, s{S_W}, 5")
    el(f"v_xor_b32 v{L_KD}, s3, v{T+3}")
    el(f"v_xor_b32 v{L_KD+1}, 0x80, v{L_KD}")
    el(f"v_lshrrev_b32 v{T+2}, 3, v{V_LANE}")
    el(f"v_mul_u32_u24 v{T+2}, 896, v{T+2}")
    el(f"v_lshrrev_b32 v{T+3}, 2, v{V_LANE}")
    el(f"v_lshrrev_b32 v{T+5}, 4, v{V_LANE}")
    el(f"v_xor_b32 v{T+3}, v{T+3}, v{T+5}")
    el(f"v_and_b32 v{T+3}, 1, v{T+3}")
    el(f"v_lshl_add_u32 v{T+2}, v{T+3}, 6, v{T+2}")
    el(f"v_and_b32 v{T+3}, 3, v{V_LANE}")
    el(f"v_lshl_add_u32 v{L_OD}, v{T+3}, 4, v{T+2}")
    el(f"s_mul_i32 s{S_W7168}, s{S_W}, 7168")

    if OPT["tlbw"]:
        el(f"v_lshlrev_b32 v{T+2}, 12, v{V_LANE}")
        el(f"s_cmp_eq_u32 s{S_W}, 0")
        el("s_cbranch_scc0 tlbw_1")
        el(f"buffer_load_dword v{T+6}, v{T+2}, s[{S_K}:{S_K+3}], 0 offen")
        el("s_branch tlbw_done")
        gl.lab("tlbw_1")
        el(f"s_cmp_eq_u32 s{S_W}, 1")
        el("s_cbranch_scc0 tlbw_2")
        el(f"buffer_load_dword v{T+6}, v{T+2}, s[{S_V}:{S_V+3}], 0 offen")
        el("s_branch tlbw_done")
        gl.lab("tlbw_2")
        el(f"s_cmp_eq_u32 s{S_W}, 2")
        el("s_cbranch_scc0 tlbw_done")
        el(f"buffer_load_dword v{T+6}, v{T+2}, s[{S_WO}:{S_WO+3}], 0 offen")
        gl.lab("tlbw_done")
        gl.vm("tlb")
    order = [("x", i) for i in range(4)]
    nwf = OPT["wq_first"]; ek = OPT["early_k"]
    for c in range(nwf): order.append(("wq", c))
    kq = [("k", i) for i in range(16)]
    for s in range(ek): order += [kq.pop(0), kq.pop(0)]
    nkin = OPT["kin"]
    for c in range(nwf, 14):
        order.append(("wq", c))
        if nkin > 0:
            order.append(kq.pop(0)); nkin -= 1
    order += [("qx", 0), ("qx", 1)]
    order += kq
    order.append(("st", 0))
    for s in range(8): order += [("v", 2*s), ("v", 2*s+1)]
    for c in range(14): order.append(("wo", c))
    sched = {"next": 0, "free": list(range(NSLOT)), "slot": {}}
    cunits = set([("x", i) for i in range(4)])
    def issue_unit(u, slot):
        kind, i = u
        tag = f"{kind}{i}"
        if kind in ("qx", "st", "ox"): return
        if u in cunits:
            for k in range(4):
                lds = slot * SLOT + k * 4096
                em, gg, xd = (e, g, C_XD) if k < 2 else (el, gl, L_XD)
                em(f"s_add_u32 m0, s{S_W1K}, {lds}")
                em(f"s_add_u32 s3, s{S_W896}, {(16*i + 4*k)*896}")
                em(f"buffer_load_dwordx4 v{xd+k}, s[{S_X}:{S_X+3}], s3 offen {OPT['pol_x']}lds")
                gg.vm(tag)
            return
        for k in range(4):
            lds = slot * SLOT + k * 4096
            el(f"s_add_u32 m0, s{S_W1K}, {lds}")
            if kind == "k":
                el(f"s_add_u32 s3, s{S_KVA if i < 8 else S_KVB}, {i*16384 + k*4096}")
                el(f"buffer_load_dwordx4 v{L_KD+(k&1)}, s[{S_K}:{S_K+3}], s3 offen {OPT['pol_kv']}lds")
            elif kind == "v":
                el(f"s_add_u32 s3, s{S_KVA if i < 8 else S_KVB}, {i*16384 + k*4096}")
                el(f"buffer_load_dwordx4 v{L_VD}, s[{S_V}:{S_V+3}], s3 offen {OPT['pol_kv']}lds")
            elif kind == "wq":
                if k == 0:
                    el(f"s_add_u32 s39, s{S_C0}, {i}")
                    el("s_sub_u32 s40, s39, 14")
                    el("s_cmp_ge_u32 s39, 14")
                    el("s_cselect_b32 s39, s40, s39")
                    el("s_lshl_b32 s39, s39, 18")
                    el(f"s_add_u32 s38, s39, s{S_WQOFF}")
                    el(f"s_add_u32 m0, s{S_W1K}, {lds}")
                el(f"s_add_u32 s3, s38, {k*65536}")
                el(f"buffer_load_dwordx4 v{L_WD}, s[{S_WQ}:{S_WQ+3}], s3 offen {OPT['pol_w']}lds")
            elif kind == "wo":
                if k == 0:
                    el(f"s_add_u32 s39, s{S_T0}, {i>>1}")
                    el("s_sub_u32 s40, s39, 7")
                    el("s_cmp_ge_u32 s39, 7")
                    el("s_cselect_b32 s39, s40, s39")
                    el("s_lshl_b32 s39, s39, 7")
                    el(f"s_add_u32 s38, s39, s{S_W7168}")
                    el(f"s_add_u32 m0, s{S_W1K}, {lds}")
                el(f"s_add_u32 s3, s38, {(128*(i&1) + 32*k)*896}")
                el(f"buffer_load_dwordx4 v{L_OD}, s[{S_WO}:{S_WO+3}], s3 offen {OPT['pol_w']}lds")
            elif kind == "x":
                el(f"s_add_u32 s3, s{S_W896}, {(16*i + 4*k)*896}")
                el(f"buffer_load_dwordx4 v{L_XD+k}, s[{S_X}:{S_X+3}], s3 offen {OPT['pol_x']}lds")
            gl.vm(tag)
    pending = []
    def alloc():
        while sched["free"] and sched["next"] < len(order):
            u = order[sched["next"]]; sched["next"] += 1
            s = sched["free"].pop(0)
            sched["slot"][u] = s
            if u[0] not in ("qx", "st", "ox"): pending.append(u)
    def flush(n=None, upto=None):
        k = 0
        while pending and (n is None or k < n):
            if upto is not None and not any(u in pending for u in upto): break
            u = pending.pop(0); issue_unit(u, sched["slot"][u]); k += 1
    def slot_of(u): return sched["slot"][u] * SLOT
    def barrier(needs=(), frees=(), maxb=None):
        flush(upto=list(needs)) if needs else None
        gl.wait_vm([f"{k}{i}" for (k, i) in needs])
        g.wait_vm([f"{k}{i}" for (k, i) in needs])
        el("s_barrier")
        e("s_barrier")
        for u in frees: sched["free"].append(sched["slot"][u])
        alloc()
        flush(n=OPT["maxb"] if maxb is None else maxb)
    if DEBUG.get("tl"): el("s_memtime s[62:63]")
    alloc()
    if OPT["cissue"]:
        for u in [u for u in pending if u in cunits]:
            pending.remove(u); issue_unit(u, sched["slot"][u])
        flush(n=2)
    else:
        flush(n=5)
    if DEBUG.get("tl"): el("s_memtime s[64:65]")
    assert [sched["slot"][("x", i)] for i in range(4)] == [0, 1, 2, 3]

    if OPT["l2pf"]:
        pf0 = OPT["l2pf"] * 16384
        tot = (262144 - pf0) // 8
        e(f"v_lshlrev_b32 v{C_T}, 6, v{V_LANE}")
        e(f"s_lshl_b32 s3, s{S_QH}, 2")
        e(f"s_add_u32 s3, s3, s{S_W}")
        e(f"s_mul_i32 s3, s3, {tot}")
        e(f"s_add_u32 s3, s3, {pf0}")
        for i in range(tot // 4096):
            e(f"buffer_load_dword v{C_T+1}, v{C_T}, s[{S_K}:{S_K+3}], s3 offen {OPT['pol_pf']}")
            e("s_add_u32 s3, s3, 4096")
            g.vm("pf")
    T = V_T
    hi, p = T, T + 1
    e(f"v_lshrrev_b32 v{hi}, 5, v{V_LANE}")
    e(f"v_and_b32 v{p}, 31, v{V_LANE}")
    e(f"v_lshlrev_b32 v{V_XA}, 4, v{V_LANE}")
    e(f"v_and_b32 v{T+2}, 15, v{p}")
    e(f"v_xor_b32 v{T+2}, v{T+2}, v{hi}")
    e(f"v_lshlrev_b32 v{V_KA}, 4, v{T+2}")
    e(f"s_lshl_b32 s3, s{S_QI}, 15")
    e(f"v_lshl_add_u32 v{V_KA+1}, v{p}, 10, s3")
    rr, dck = T + 2, T + 3
    e(f"v_bfe_u32 v{rr}, v{V_LANE}, 2, 2")
    e(f"v_bfe_u32 v{T+4}, v{V_LANE}, 4, 1")
    e(f"v_and_b32 v{T+5}, 1, v{V_LANE}")
    e(f"v_bfe_u32 v{T+6}, v{V_LANE}, 1, 1")
    e(f"v_lshlrev_b32 v{T+4}, 2, v{T+4}")
    e(f"v_lshlrev_b32 v{T+5}, 1, v{T+5}")
    e(f"v_or3_b32 v{dck}, v{T+4}, v{T+5}, v{T+6}")
    e(f"v_lshlrev_b32 v{dck}, 3, v{dck}")
    e(f"v_lshl_add_u32 v{T+4}, v{hi}, 3, v{rr}")
    e(f"v_lshl_add_u32 v{T+5}, v{T+4}, 9, v{dck}")
    e(f"v_lshl_add_u32 v{T+5}, v{rr}, 6, v{T+5}")
    e(f"s_lshl_b32 s48, s{S_J}, 8")
    e(f"v_add_u32 v{T+6}, s48, v{T+5}")
    e("s_xor_b32 s48, s48, 256")
    e(f"v_add_u32 v{T+7}, s48, v{T+5}")
    for t in range(4):
        e(f"v_xor_b32 v{V_VA+t}, {t<<6}, v{T+6}")
        e(f"v_xor_b32 v{V_VA+4+t}, {t<<6}, v{T+7}")
        e(f"v_xor_b32 v{V_WA+t}, {t<<6}, v{T+6}")
    e(f"v_lshl_add_u32 v{T+5}, v{T+4}, 7, v{dck}")
    e(f"v_lshrrev_b32 v{T+6}, 1, v{rr}")
    e(f"v_xor_b32 v{T+6}, s{S_J}, v{T+6}")
    e(f"v_lshl_add_u32 v{V_OA}, v{T+6}, 6, v{T+5}")
    e(f"s_lshl_b32 s37, s{S_C0}, 1")
    for kk in range(28):
        e(f"s_add_u32 s3, s37, {kk}")
        e("s_sub_u32 s48, s3, 28")
        e("s_cmp_ge_u32 s3, 28")
        e("s_cselect_b32 s3, s48, s3")
        e("s_lshl_b32 s3, s3, 5")
        e(f"v_xor_b32 v{QACC+kk}, s3, v{V_KA}")
        e(f"v_add_u32 v{QACC+kk}, v{QACC+kk}, v{V_KA+1}")
    stamp(g, "start")
    barrier(needs=[("x", i) for i in range(4)])
    if DEBUG.get("t1"): stamp(g, "xbar")
    for kk in range(28):
        e(f"ds_read_b128 {vr(BIGA+4*kk)}, v{QACC+kk}")
        if kk in (13, 25): e("s_waitcnt lgkmcnt(2)")
    e(f"v_and_b32 v{T+2}, 0x13, v{p}")
    e(f"v_and_b32 v{T+3}, 8, v{p}")
    e(f"v_lshrrev_b32 v{T+3}, 1, v{T+3}")
    e(f"v_and_b32 v{T+4}, 4, v{p}")
    e(f"v_lshlrev_b32 v{T+4}, 1, v{T+4}")
    e(f"v_or3_b32 v{T+2}, v{T+2}, v{T+3}, v{T+4}")
    e(f"v_and_b32 v{T+3}, 15, v{T+2}")
    e(f"v_xor_b32 v{T+3}, v{T+3}, v{hi}")
    e(f"v_lshlrev_b32 v{T+3}, 4, v{T+3}")
    e(f"v_lshl_add_u32 v{T+2}, v{T+2}, 9, v{T+3}")
    for k in range(8):
        e(f"v_xor_b32 v{V_KA+k}, {k<<5}, v{T+2}")
    e("s_waitcnt lgkmcnt(0)")

    bias = {"k": (0, 0), "v": (0, 0), "w": 0, "o": 0}
    def rebase_j(key, regs, b0, b1):
        o0, o1 = bias[key]
        d0, d1 = b0 - o0, b1 - o1
        if d0 == 0 and d1 == 0: return
        e(f"s_mov_b32 s49, {d1 & 0xffffffff}")
        e(f"s_cmp_eq_u32 s{S_J}, 0")
        e(f"s_cselect_b32 s3, {d0 & 0xffffffff}, s49")
        for r in regs: e(f"v_add_u32 v{r}, s3, v{r}")
        bias[key] = (b0, b1)
    def rebase(key, regs, lo, hi_):
        if lo - bias[key] < 0 or hi_ - bias[key] > 65535:
            d = lo - bias[key]
            e(f"s_mov_b32 s3, {d & 0xffffffff}")
            for r in regs: e(f"v_add_u32 v{r}, s3, v{r}")
            bias[key] = lo

    fb = {"n": 0}
    def run_steps(steps):
        n = len(steps)
        base = fb["n"]
        queue = []
        def do_reads(i):
            st = steps[i]
            if st.get("sync"): st["sync"]()
            buf = FB + 4 * ((base + i) % NB)
            for s in st["reads"](buf):
                e(s); g.ldsop(f"r{base+i}")
        for i in range(min(DEPTH, n)): do_reads(i)
        for i in range(n):
            if i + DEPTH < n: do_reads(i + DEPTH)
            g.wait_lds(f"r{base+i}")
            e(steps[i]["mfma"](FB + 4 * ((base + i) % NB)))
            if steps[i].get("post"): queue.extend(steps[i]["post"]())
            if queue:
                for s in queue.pop(0): e(s)
        while queue:
            for s in queue.pop(0): e(s)
        fb["n"] = base + n
    def mfma(acc, a, b, first=False):
        return f"v_mfma_f32_32x32x16_bf16 {vr(acc,16)}, {vr(a)}, {vr(b)}, " + ("0" if first else vr(acc,16))

    steps = []
    for c in range(14):
        for kk2 in range(2):
            for t in range(4):
                kk = 2 * c + kk2
                st = {}
                def reads(buf, c=c, kk2=kk2, t=t):
                    off = slot_of(("wq", c)) + kk2 * 8192 - bias["w"]
                    return [f"ds_read_b64_tr_b16 v[{buf}:{buf+1}], v{V_WA+t} offset:{off}",
                            f"ds_read_b64_tr_b16 v[{buf+2}:{buf+3}], v{V_WA+t} offset:{off+2048}"]
                st["reads"] = reads
                st["mfma"] = (lambda buf, t=t, kk=kk: mfma(QACC + 16 * t, buf, BIGA + 4 * kk, kk == 0))
                if kk2 == 0 and t == 0:
                    def sync(c=c):
                        fr = [("x", i) for i in range(4)] if c == 0 else ([("wq", c - 2)] if c >= 2 else [])
                        if DEBUG.get("t1") and c in (0, 1, 2, 3, 4, 6, 8, 10, 12): stamp(g, f"pre{c}")
                        barrier(needs=[("wq", c)], frees=fr)
                        if DEBUG.get("t1") and c in (0, 1, 2, 3, 4, 6, 8, 10, 12): stamp(g, f"bar{c}")
                        sb = slot_of(("wq", c))
                        rebase("w", range(V_WA, V_WA + 4), sb, sb + 8192 + 2048)
                    st["sync"] = sync
                steps.append(st)
    run_steps(steps)
    stamp(g, "p1end")
    e("s_nop 15")
    e("s_nop 3")
    for t in range(4):
        for a in range(2):
            for q in range(4):
                src = QACC + 16 * t + 8 * a + 2 * q
                e(f"v_cvt_pk_bf16_f32 v{BIGA + (2*t+a)*4 + q}, v{src}, v{src+1}")
    def xch_addr(u0, u1):
        e(f"s_mov_b32 s49, {slot_of(u1)}")
        e(f"s_cmp_eq_u32 s{S_QI}, 0")
        e(f"s_cselect_b32 s3, {slot_of(u0)}, s49")
        e(f"s_lshl_b32 s48, s{S_J}, 13")
        e("s_add_u32 s48, s48, s3")
        e(f"v_add_u32 v{T}, s48, v{V_XA}")
        e(f"v_add_u32 v{T+1}, s3, v{V_XA}")
    xch_addr(("qx", 0), ("qx", 1))
    for f in range(8):
        e(f"ds_write_b128 v{T}, {vr(BIGA+4*f)} offset:{f*1024}")
    e("s_waitcnt lgkmcnt(0)")
    barrier(frees=[("wq", 12), ("wq", 13)], maxb=0)
    for kk in range(16):
        e(f"ds_read_b128 {vr(BIGA+4*kk)}, v{T+1} offset:{kk*1024}")
    e("s_waitcnt lgkmcnt(0)")
    stamp(g, "qx_end")
    MT = [24, 25, 26, 27, 28, 29, 31, 23]
    LT = [18, 19, 20, 21, 0, 38, 39, 37]
    TT = 32
    def tile_softmax(t):
        a0 = BIGC + 16 * t
        o = []
        for i in range(8):
            a = a0 + 2 * i
            o.append(f"v_cvt_pk_bf16_f32 v{TT + (i & 1)}, v{a}, v{a+1}")
            o.append(f"v_lshlrev_b32 v{a}, 16, v{TT + (i & 1)}")
            o.append(f"v_and_b32 v{a+1}, 0xffff0000, v{TT + (i & 1)}")
        m = MT[t]
        o.append(f"v_max_f32 v{m}, v{a0}, v{a0+1}")
        for i in range(1, 8):
            o.append(f"v_max3_f32 v{m}, v{m}, v{a0+2*i}, v{a0+2*i+1}")
        o.append(f"v_mul_f32 v{TT+2}, s{S_NC}, v{m}")
        o.append(f"v_mov_b32 v{TT+3}, v{TT+2}")
        for i in range(8):
            a = a0 + 2 * i
            o.append(f"v_pk_fma_f32 v[{a}:{a+1}], v[{a}:{a+1}], s[{S_C2}:{S_C2+1}], v[{TT+2}:{TT+3}]")
        for i in range(16):
            o.append(f"v_exp_f32 v{a0+i}, v{a0+i}")
        o.append(f"v_pk_add_f32 v[{TT}:{TT+1}], v[{a0}:{a0+1}], v[{a0+2}:{a0+3}]")
        for i in range(2, 8):
            o.append(f"v_pk_add_f32 v[{TT}:{TT+1}], v[{TT}:{TT+1}], v[{a0+2*i}:{a0+2*i+1}]")
        o.append(f"v_add_f32 v{LT[t]}, v{TT}, v{TT+1}")
        return o
    steps = []
    for s in range(8):
        for kk in range(16):
            st = {}
            st["reads"] = (lambda buf, kk=kk: [f"ds_read_b128 {vr(buf)}, v{V_KA+(kk&7)} offset:{(kk>>3)*256}"])
            st["mfma"] = (lambda buf, s=s, kk=kk: mfma(BIGC + 16 * s, buf, BIGA + 4 * kk, kk == 0))
            if kk == 0:
                def sync(s=s):
                    fr = [("qx", 0), ("qx", 1)] if s == 0 else ([("k", 2*s-4), ("k", 2*s-3)] if s >= 2 else [])
                    barrier(needs=[("k", 2*s), ("k", 2*s+1)], frees=fr)
                    rebase_j("k", range(V_KA, V_KA + 8), slot_of(("k", 2*s)), slot_of(("k", 2*s+1)))
                st["sync"] = sync
            if s >= 1 and kk == 4:
                def post(s=s):
                    o = tile_softmax(s - 1)
                    return [o[i:i+6] for i in range(0, len(o), 6)]
                st["post"] = post
            steps.append(st)
    run_steps(steps)
    g.wait_lds_all()
    barrier(frees=[("k", 12), ("k", 13), ("k", 14), ("k", 15)], maxb=99)
    e("s_nop 15")
    stamp(g, "p2end")
    S = BIGC
    for x in tile_softmax(7): e(x)
    T2 = 32
    e(f"v_max3_f32 v{T2}, v{MT[0]}, v{MT[1]}, v{MT[2]}")
    e(f"v_max3_f32 v{T2}, v{T2}, v{MT[3]}, v{MT[4]}")
    e(f"v_max3_f32 v{T2}, v{T2}, v{MT[5]}, v{MT[6]}")
    e(f"v_max_f32 v{T2}, v{T2}, v{MT[7]}")
    e(f"v_mov_b32 v{T2+1}, v{T2}")
    e("s_nop 1")
    e(f"v_permlane32_swap_b32 v{T2}, v{T2+1}")
    e("s_nop 1")
    e(f"v_max_f32 v{T2}, v{T2}, v{T2+1}")
    for t in range(8):
        e(f"v_sub_f32 v{MT[t]}, v{MT[t]}, v{T2}")
    for t in range(8):
        e(f"v_mul_f32 v{MT[t]}, s{S_C}, v{MT[t]}")
    for t in range(8):
        e(f"v_exp_f32 v{MT[t]}, v{MT[t]}")
    e("s_nop 0")
    e(f"v_mul_f32 v{T2+2}, v{MT[0]}, v{LT[0]}")
    for t in range(1, 8):
        e(f"v_fma_f32 v{T2+2}, v{MT[t]}, v{LT[t]}, v{T2+2}")
    e(f"v_mov_b32 v{T2+3}, v{T2+2}")
    e("s_nop 1")
    e(f"v_permlane32_swap_b32 v{T2+2}, v{T2+3}")
    e("s_nop 1")
    e(f"v_add_f32 v{T2+2}, v{T2+2}, v{T2+3}")
    MLOC, LLOC = T2, T2 + 2
    MISC = slot_of(("st", 0))
    e(f"v_and_b32 v{T2+3}, 31, v{V_LANE}")
    e(f"v_lshlrev_b32 v{T2+3}, 3, v{T2+3}")
    e(f"s_lshl_b32 s3, s{S_W}, 8")
    e(f"s_add_u32 s48, s3, {MISC}")
    e("s_xor_b32 s3, s3, 256")
    e(f"s_add_u32 s3, s3, {MISC}")
    e(f"v_add_u32 v{T2+4}, s48, v{T2+3}")
    e(f"v_add_u32 v{T2+5}, s3, v{T2+3}")
    e(f"ds_write_b32 v{T2+4}, v{MLOC}")
    e(f"ds_write_b32 v{T2+4}, v{LLOC} offset:4")
    e("s_waitcnt lgkmcnt(0)")
    barrier(maxb=0)
    e(f"ds_read_b64 v[{T2+6}:{T2+7}], v{T2+5}")
    e("s_waitcnt lgkmcnt(0)")
    e(f"v_max_f32 v{T2+3}, v{MLOC}, v{T2+6}")
    e(f"v_sub_f32 v{T2+4}, v{MLOC}, v{T2+3}")
    e(f"v_sub_f32 v{T2+5}, v{T2+6}, v{T2+3}")
    e(f"v_mul_f32 v{T2+4}, s{S_C}, v{T2+4}")
    e(f"v_mul_f32 v{T2+5}, s{S_C}, v{T2+5}")
    e(f"v_exp_f32 v{T2+4}, v{T2+4}")
    e(f"v_exp_f32 v{T2+5}, v{T2+5}")
    e("s_nop 0")
    e(f"v_mul_f32 v{T2+3}, v{LLOC}, v{T2+4}")
    e(f"v_fma_f32 v{T2+3}, v{T2+7}, v{T2+5}, v{T2+3}")
    e(f"v_rcp_f32 v{T2+3}, v{T2+3}")
    e("s_nop 0")
    e(f"v_mul_f32 v{T2+3}, v{T2+3}, v{T2+4}")
    for t in range(8):
        e(f"v_mul_f32 v{T2+4}, v{T2+3}, v{MT[t]}")
        e(f"v_mul_f32 v{T2+5}, v{T2+3}, v{MT[t]}")
        for i in range(8):
            a = S + 16 * t + 2 * i
            e(f"v_pk_mul_f32 v[{a}:{a+1}], v[{a}:{a+1}], v[{T2+4}:{T2+5}]")
        for i in range(8):
            a = S + 16 * t + 2 * i
            e(f"v_cvt_pk_bf16_f32 v{BIGA+8*t+i}, v{a}, v{a+1}")
    stamp(g, "sm_end")
    steps = []
    for s in range(8):
        for kk2 in range(2):
            for t in range(8):
                st = {}
                st["reads"] = (lambda buf, kk2=kk2, t=t: [
                    f"ds_read_b64_tr_b16 v[{buf}:{buf+1}], v{V_VA+t} offset:{kk2*8192}",
                    f"ds_read_b64_tr_b16 v[{buf+2}:{buf+3}], v{V_VA+t} offset:{kk2*8192+2048}"])
                st["mfma"] = (lambda buf, t=t, s=s, kk2=kk2: mfma(BIGC + 16 * t, buf, BIGA + 8 * s + 4 * kk2, s == 0 and kk2 == 0))
                if kk2 == 0 and t == 0:
                    def sync(s=s):
                        fr = [("st", 0)] if s == 0 else ([("v", 2*s-4), ("v", 2*s-3)] if s >= 2 else [])
                        barrier(needs=[("v", 2*s), ("v", 2*s+1)], frees=fr)
                        rebase_j("v", range(V_VA, V_VA + 8), slot_of(("v", 2*s)), slot_of(("v", 2*s+1)))
                    st["sync"] = sync
                steps.append(st)
    run_steps(steps)
    stamp(g, "p3end")
    g.wait_lds_all()
    e("s_nop 15")
    barrier(maxb=0)
    xs = [slot_of(("v", 12 + i)) for i in range(4)]
    e(f"s_mov_b32 s48, {xs[1]}")
    e(f"s_mov_b32 s49, {xs[3]}")
    e(f"s_cmp_eq_u32 s{S_J}, 0")
    e(f"s_cselect_b32 s37, {xs[0]}, s48")
    e(f"s_cselect_b32 s38, {xs[2]}, s49")
    e(f"s_cselect_b32 s39, s48, {xs[0]}")
    e(f"s_cselect_b32 s40, s49, {xs[2]}")
    e(f"s_cmp_eq_u32 s{S_QI}, 0")
    e("s_cselect_b32 s37, s37, s38")
    e("s_cselect_b32 s39, s39, s40")
    e(f"v_add_u32 v{T+2}, s37, v{V_XA}")
    e(f"v_add_u32 v{T+3}, s39, v{V_XA}")
    for i in range(16):
        e(f"ds_write_b128 v{T+2}, {vr(BIGC+64+4*i)} offset:{i*1024}")
    e("s_waitcnt lgkmcnt(0)")
    barrier(maxb=0)
    for i in range(16):
        e(f"ds_read_b128 {vr(BIGC+64+4*i)}, v{T+3} offset:{i*1024}")
    for i in range(16):
        e(f"s_waitcnt lgkmcnt({15-i})")
        for r in range(4):
            e(f"v_add_f32 v{BIGC+4*i+r}, v{BIGC+4*i+r}, v{BIGC+64+4*i+r}")
    for t in range(4):
        for a in range(2):
            for q in range(4):
                src = BIGC + 16 * t + 8 * a + 2 * q
                e(f"v_cvt_pk_bf16_f32 v{BIGA + (2*t+a)*4 + q}, v{src}, v{src+1}")
    for f in range(8):
        e(f"ds_write_b128 v{T+3}, {vr(BIGA+4*f)} offset:{f*1024}")
    e(f"s_cmp_eq_u32 s{S_J}, 0")
    e("s_cselect_b32 s48, s39, s37")
    e("s_cselect_b32 s49, s37, s39")
    e(f"v_add_u32 v{T}, s48, v{V_XA}")
    e(f"v_add_u32 v{T+1}, s49, v{V_XA}")
    e("s_waitcnt lgkmcnt(0)")
    barrier(maxb=0)
    for kk in range(16):
        e(f"ds_read_b128 {vr(BIGA+4*kk)}, v{T + (kk >> 3)} offset:{(kk&7)*1024}")
    e("s_waitcnt lgkmcnt(0)")
    stamp(g, "ox_end")
    def store_tile(tp):
        res = []
        if OPT["pbf16"]:
            for a in range(2):
                o = []
                for q in range(4):
                    src = BIGC + 16 * tp + 8 * a + 2 * q
                    o.append(f"v_cvt_pk_bf16_f32 v{BIGC + 16*tp + 8*a + q}, v{src}, v{src+1}")
                o.append(f"s_add_u32 s3, s{S_T0}, {tp}")
                o.append("s_sub_u32 s48, s3, 7")
                o.append("s_cmp_ge_u32 s3, 7")
                o.append("s_cselect_b32 s3, s48, s3")
                o.append("s_lshl_b32 s3, s3, 11")
                o.append(f"buffer_store_dwordx4 {vr(BIGC+16*tp+8*a)}, v{V_XA}, s[{S_WS}:{S_WS+3}], s3 offen offset:{a*1024} {OPT['pol_st']}")
                res.append(o)
            return res
        for gq in range(4):
            i = 4 * tp + gq
            res.append([f"s_mov_b32 s3, {tp*4096}",
                        f"buffer_store_dwordx4 {vr(BIGC+4*i)}, v{V_XA}, s[{S_WS}:{S_WS+3}], s3 offen offset:{gq*1024} {OPT['pol_st']}"])
        return res
    steps = []
    for tp in range(7):
        for c in range(16):
            def reads(buf, tp=tp, c=c):
                sb = slot_of(("wo", 2 * tp + (c >> 3)))
                rebase("o", [V_OA], sb, sb + 16384)
                off = sb + (c & 7) * 2048 - bias["o"]
                return [f"ds_read_b64_tr_b16 v[{buf}:{buf+1}], v{V_OA} offset:{off}",
                        f"ds_read_b64_tr_b16 v[{buf+2}:{buf+3}], v{V_OA} offset:{off+512}"]
            st = {"reads": reads, "mfma": (lambda buf, tp=tp, c=c: mfma(BIGC + 16 * tp, buf, BIGA + 4 * c, c == 0))}
            if c == 0:
                def sync(tp=tp):
                    fr = [("v", 12), ("v", 13), ("v", 14), ("v", 15)] if tp == 0 else ([("wo", 2*tp-4), ("wo", 2*tp-3)] if tp >= 2 else [])
                    if DEBUG.get("t4"): stamp(g, f"pre{tp}")
                    barrier(needs=[("wo", 2*tp), ("wo", 2*tp+1)], frees=fr)
                    if DEBUG.get("t4"): stamp(g, f"bar{tp}")
                st["sync"] = sync
            if tp >= 1 and c == 2:
                st["post"] = (lambda tp=tp: store_tile(tp - 1))
            steps.append(st)
    run_steps(steps)
    e("s_nop 15")
    e("s_nop 3")
    for d in store_tile(6):
        for s in d: e(s)
    stamp(g, "p4end")
    if DEBUG.get("t"): e("s_waitcnt vmcnt(0)")
    stamp(g, "end")
    stamp_dump(g)
    g.lab("attn_end")
    e("s_endpgm")
    if DEBUG.get("tl"):
        el("s_waitcnt lgkmcnt(0)")
        for i in range(5): el(f"v_mov_b32 v{64+i}, s{60+2*i}")
        el("s_lshl_b32 s3, s2, 2")
        el(f"s_add_u32 s3, s3, s{S_W}")
        el("s_lshl_b32 s3, s3, 7")
        el(f"s_add_u32 s3, s3, {(200<<20) + 64}")
        el("v_mov_b32 v100, 0")
        for i in range(5): el(f"buffer_store_dword v{64+i}, v100, s[52:55], s3 offen offset:{4*i}")
    el("s_endpgm")
    assert sched["next"] == len(order)
    return "\n".join(g.L) + "\n" + "\n".join(gl.L)

def gen_reduce_bf16(g):
    e = g.e
    g.lab("reduce_kernel")
    e("s_cmp_ge_u32 s2, 224")
    e("s_cbranch_scc1 reduce_end")
    e("s_load_dwordx2 s[4:5], s[0:1], 40")
    e("s_load_dwordx2 s[6:7], s[0:1], 56")
    e("v_and_b32 v1, 63, v0")
    e("v_lshrrev_b32 v2, 6, v0")
    e("s_nop 0")
    e("v_readfirstlane_b32 s3, v2")
    e("s_lshl_b32 s8, s2, 2")
    e("s_add_u32 s8, s8, s3")
    e("s_and_b32 s9, s8, 1")
    e("s_lshr_b32 s10, s8, 1")
    e("s_mul_i32 s11, s10, 9363")
    e("s_lshr_b32 s11, s11, 16")
    e("s_mul_i32 s12, s11, 7")
    e("s_sub_u32 s12, s10, s12")
    e("s_waitcnt lgkmcnt(0)")
    e("s_mov_b32 s16, s6")
    e("s_and_b32 s17, s7, 0xffff")
    e(f"s_mov_b32 s18, {16*16*4*14336}")
    e("s_mov_b32 s19, 0x20000")
    e("s_mov_b32 s20, s4")
    e("s_and_b32 s21, s5, 0xffff")
    e(f"s_mov_b32 s22, {8*128*448*2}")
    e("s_mov_b32 s23, 0x20000")
    e("s_lshl_b32 s13, s8, 10")
    e("v_lshlrev_b32 v3, 4, v1")
    for h in range(16):
        e(f"buffer_load_dwordx4 v[{8+4*h}:{11+4*h}], v3, s[16:19], s13 offen {OPT['pol_rd']}")
        if h < 15: e(f"s_add_u32 s13, s13, {64*14336}")
    e("s_lshr_b32 s24, s11, 1")
    e("s_lshl_b32 s24, s24, 5")
    e("s_and_b32 s25, s11, 1")
    e("s_lshl_b32 s26, s12, 1")
    e("s_add_u32 s26, s26, s25")
    e("s_lshl_b32 s26, s26, 5")
    e("s_lshl_b32 s27, s9, 4")
    e("s_add_u32 s26, s26, s27")
    e("s_mul_i32 s24, s24, 896")
    e("s_lshl_b32 s26, s26, 1")
    e("s_add_u32 s24, s24, s26")
    e("v_and_b32 v4, 31, v1")
    e("v_mul_u32_u24 v4, 896, v4")
    e("v_lshrrev_b32 v5, 5, v1")
    e("v_lshl_add_u32 v4, v5, 4, v4")
    A = 80
    for h in range(16):
        e(f"s_waitcnt vmcnt({15-h})")
        for k in range(4):
            src = 8 + 4 * h + k
            if h == 0:
                e(f"v_lshlrev_b32 v{A+2*k}, 16, v{src}")
                e(f"v_and_b32 v{A+2*k+1}, 0xffff0000, v{src}")
            else:
                e(f"v_lshlrev_b32 v{A+8}, 16, v{src}")
                e(f"v_and_b32 v{A+9}, 0xffff0000, v{src}")
                e(f"v_add_f32 v{A+2*k}, v{A+2*k}, v{A+8}")
                e(f"v_add_f32 v{A+2*k+1}, v{A+2*k+1}, v{A+9}")
    for k in range(4): e(f"v_cvt_pk_bf16_f32 v{A+12+k}, v{A+2*k}, v{A+2*k+1}")
    e(f"buffer_store_dwordx4 v[{A+12}:{A+15}], v4, s[20:23], s24 offen")
    if DEBUG.get("dbg2"):
        e("s_cmp_eq_u32 s2, 0")
        e("s_cbranch_scc0 reduce_end")
        e("s_load_dwordx2 s[28:29], s[0:1], 48")
        e("s_waitcnt lgkmcnt(0)")
        e("s_and_b32 s29, s29, 0xffff")
        e("s_mov_b32 s30, 256")
        e("s_mov_b32 s31, 0x20000")
        e("s_mov_b32 s32, s6")
        e("s_and_b32 s33, s7, 0xffff")
        e("s_mov_b32 s34, 0x10000000")
        e("s_mov_b32 s35, 0x20000")
        e("v_lshlrev_b32 v6, 2, v0")
        e(f"s_mov_b32 s3, {(200<<20) + 400*128}")
        e("buffer_load_dword v7, v6, s[32:35], s3 offen")
        e("s_waitcnt vmcnt(0)")
        e("v_readfirstlane_b32 s3, v7")
        e("s_nop 3")
        e("v_subrev_u32 v7, s3, v7")
        e("buffer_store_dword v7, v6, s[28:31], 0 offen")
    g.lab("reduce_end")
    e("s_endpgm")

def gen_reduce(g):
    if OPT["pbf16"]: return gen_reduce_bf16(g)
    e = g.e
    g.lab("reduce_kernel")
    e("s_cmp_ge_u32 s2, 224")
    e("s_cbranch_scc1 reduce_end")
    e("s_load_dwordx2 s[4:5], s[0:1], 40")
    e("s_load_dwordx2 s[6:7], s[0:1], 56")
    e("v_and_b32 v1, 63, v0")
    e("v_lshrrev_b32 v2, 6, v0")
    e("s_nop 0")
    e("v_readfirstlane_b32 s3, v2")
    e("s_lshl_b32 s8, s2, 2")
    e("s_add_u32 s8, s8, s3")
    e("s_and_b32 s9, s8, 1")
    e("s_lshr_b32 s10, s8, 1")
    e("s_mul_i32 s11, s10, 9363")
    e("s_lshr_b32 s11, s11, 16")
    e("s_mul_i32 s12, s11, 7")
    e("s_sub_u32 s12, s10, s12")
    e("s_waitcnt lgkmcnt(0)")
    e("s_mov_b32 s16, s6")
    e("s_and_b32 s17, s7, 0xffff")
    e(f"s_mov_b32 s18, {16*16*4*28672}")
    e("s_mov_b32 s19, 0x20000")
    e("s_mov_b32 s20, s4")
    e("s_and_b32 s21, s5, 0xffff")
    e(f"s_mov_b32 s22, {8*128*448*2}")
    e("s_mov_b32 s23, 0x20000")
    e("s_mul_i32 s13, s11, 28672")
    e("s_lshl_b32 s14, s12, 2")
    e("s_lshl_b32 s15, s9, 1")
    e("s_add_u32 s14, s14, s15")
    e("s_lshl_b32 s14, s14, 10")
    e("s_add_u32 s13, s13, s14")
    e("v_lshlrev_b32 v3, 4, v1")
    for h in range(16):
        e(f"buffer_load_dwordx4 v[{8+8*h}:{11+8*h}], v3, s[16:19], s13 offen {OPT['pol_rd']}")
        e(f"buffer_load_dwordx4 v[{12+8*h}:{15+8*h}], v3, s[16:19], s13 offen offset:1024 {OPT['pol_rd']}")
        if h < 15: e(f"s_add_u32 s13, s13, {64*28672}")
    e("s_lshr_b32 s24, s11, 1")
    e("s_lshl_b32 s24, s24, 5")
    e("s_and_b32 s25, s11, 1")
    e("s_lshl_b32 s26, s12, 1")
    e("s_add_u32 s26, s26, s25")
    e("s_lshl_b32 s26, s26, 5")
    e("s_lshl_b32 s27, s9, 4")
    e("s_add_u32 s26, s26, s27")
    e("s_mul_i32 s24, s24, 896")
    e("s_lshl_b32 s26, s26, 1")
    e("s_add_u32 s24, s24, s26")
    e("v_and_b32 v4, 31, v1")
    e("v_mul_u32_u24 v4, 896, v4")
    e("v_lshrrev_b32 v5, 5, v1")
    e("v_lshl_add_u32 v4, v5, 4, v4")
    for h in range(1, 16):
        e(f"s_waitcnt vmcnt({2*(15-h)})")
        for k in range(8): e(f"v_add_f32 v{8+k}, v{8+k}, v{8+8*h+k}")
    for k in range(4): e(f"v_cvt_pk_bf16_f32 v{8+k}, v{8+2*k}, v{9+2*k}")
    e("buffer_store_dwordx4 v[8:11], v4, s[20:23], s24 offen")
    g.lab("reduce_end")
    e("s_endpgm")

def kd(name, vgpr, sgpr):
    return f""".p2align 6
.amdhsa_kernel {name}
  .amdhsa_next_free_vgpr {vgpr}
  .amdhsa_next_free_sgpr {sgpr}
  .amdhsa_accum_offset {vgpr}
  .amdhsa_group_segment_fixed_size 0
  .amdhsa_kernarg_size 64
  .amdhsa_user_sgpr_count 2
  .amdhsa_user_sgpr_kernarg_segment_ptr 1
  .amdhsa_system_sgpr_workgroup_id_x 1
.end_amdhsa_kernel
"""

def main():
    out = sys.argv[1]
    only = None
    for a in sys.argv[2:]:
        if "=" in a:
            k, v = a.split("=", 1)
            if k == "only": only = v
            elif k.startswith("pol"): OPT[k] = (v.replace("_", " ") + " ") if v else ""
            else: OPT[k] = int(v)
        else:
            DEBUG[a] = 1
    a = gen_attn()
    g2 = G(); gen_reduce(g2); r = "\n".join(g2.L)
    txt = HEADER
    if only != "reduce":
        txt += f"; @launch kernel=attn_kernel grid=(256,1,1) block=(512,1,1) lds={LDS_TOTAL}\n"
    if only != "attn":
        txt += "; @launch kernel=reduce_kernel grid=(224,1,1) block=(256,1,1) lds=0\n"
    txt += '.amdgcn_target "amdgcn-amd-amdhsa--gfx950"\n.text\n'
    txt += ".globl attn_kernel\n.p2align 8\n.type attn_kernel,@function\n" + a + "\n"
    txt += ".globl reduce_kernel\n.p2align 8\n.type reduce_kernel,@function\n" + r + "\n"
    txt += '.section .rodata,"a"\n' + kd("attn_kernel", 256, 100) + kd("reduce_kernel", 136, 40)
    open(out, "w").write(txt)
main()
```

```python
import sys

HEADER = """; Kernarg layout for this problem (64 bytes, ptrs only, base s[0:1]):
;   offset   0: d_in[0] x  shape=(8, 128, 448) dtype=bfloat16 strides=(114688, 896, 2) contiguous=True
;   offset   8: d_in[1] k_cache  shape=(8, 16, 512, 256) dtype=bfloat16 strides=(4194304, 262144, 512, 2) contiguous=True
;   offset  16: d_in[2] v_cache  shape=(8, 16, 512, 256) dtype=bfloat16 strides=(4194304, 262144, 512, 2) contiguous=True
;   offset  24: d_in[3] wq  shape=(448, 4096) dtype=bfloat16 strides=(8192, 2) contiguous=True
;   offset  32: d_in[4] wo  shape=(4096, 448) dtype=bfloat16 strides=(896, 2) contiguous=True
;   offset  56: d_ws      268435456 bytes workspace
"""
SLOT = 16384
NSLOT = 10
LDS_TOTAL = SLOT * NSLOT
DEBUG = {}
OPT = {"pol_kv": "nt ", "pol_w": "", "pol_x": "", "pol_st": "", "pol_rd": "", "depth": 5, "early_k": 1, "wq_first": 4, "tm": 6, "prio": 0, "pbf16": 1, "maxb": 2, "rot_o": 1, "rot_q": 1, "cissue": 1, "tlbw": 0, "rot_kv": 0, "cpf": 0, "kin": 0, "l2pf": 0, "pol_pf": ""}

class G:
    def __init__(self):
        self.L = []
        self.vml = []
        self.lds = []
    def e(self, s): self.L.append("    " + s)
    def lab(self, s): self.L.append(s + ":")
    def vm(self, tag): self.vml.append(tag)
    def wait_vm(self, tags):
        idx = [i for i, t in enumerate(self.vml) if t in tags]
        if not idx: return
        n = len(self.vml) - 1 - idx[-1]
        assert n <= 63
        self.e(f"s_waitcnt vmcnt({n})")
        self.vml = self.vml[len(self.vml) - n:] if n > 0 else []
    def ldsop(self, tag): self.lds.append(tag)
    def wait_lds(self, tag):
        idx = [i for i, t in enumerate(self.lds) if t == tag]
        if not idx: return
        n = len(self.lds) - 1 - idx[-1]
        assert n <= 15, n
        self.e(f"s_waitcnt lgkmcnt({n})")
        self.lds = self.lds[len(self.lds) - n:] if n > 0 else []
    def wait_lds_all(self):
        if self.lds: self.e("s_waitcnt lgkmcnt(0)")
        self.lds = []

def vr(a, n=4): return f"v[{a}:{a+n-1}]"

V_LANE = 1
V_KA = 2
V_VA = 10
V_WA = 18
V_OA = 22
V_XA = 30
V_T = 32
FB = 40
NB = 6
BIGA = 64
QACC = 176
BIGC = 128
L_KD = 2
L_VD = 4
L_WD = 5
L_OD = 6
L_XD = 8
C_XD = 64
C_KD = 68
C_T = 72
S_X, S_K, S_V, S_WQ, S_WO, S_WS = 4, 8, 12, 16, 20, 24
S_W, S_QI, S_J, S_H, S_B, S_QH, S_W1K, S_WL = 28, 29, 30, 31, 32, 33, 34, 35
S_W896 = 36
S_WQOFF = 51
S_W7168 = 37
S_C2 = 42
S_NC = 44
S_KVA = 95
S_KVB = 96
S_T0 = 97
S_C0 = 98
S_C = 50

STAMPS = []
def stamp(g, name):
    if not DEBUG.get("t"): return
    if len(STAMPS) >= 19: return
    if DEBUG.get("t4") and name in ("p1end", "qx_end", "p2end", "sm_end"): return
    i = len(STAMPS); STAMPS.append(name)
    g.e(f"s_memrealtime s[{56+2*i}:{57+2*i}]" if DEBUG.get("rt") else f"s_memtime s[{56+2*i}:{57+2*i}]")
def stamp_dump(g):
    if not DEBUG.get("t"): return
    e = g.e
    e("s_waitcnt lgkmcnt(0)")
    n = len(STAMPS)
    for i in range(n): e(f"v_mov_b32 v{64+i}, s{56+2*i}")
    if DEBUG.get("dbg"):
        for i in range(1, n): e(f"v_sub_u32 v{64+i}, v{64+i}, v64")
        e("s_load_dwordx2 s[52:53], s[0:1], 48")
        e("s_waitcnt lgkmcnt(0)")
        e("s_and_b32 s53, s53, 0xffff")
        e("s_mov_b32 s54, 256")
        e("s_mov_b32 s55, 0x20000")
        e("s_lshl_b32 s3, s2, 2")
        e(f"s_add_u32 s3, s3, s{S_W}")
        e("s_cmp_eq_u32 s3, 400")
        e("s_cbranch_scc0 attn_end")
        e("v_mov_b32 v100, 0")
        for i in range(1, n): e(f"buffer_store_dword v{64+i}, v100, s[52:55], 0 offen offset:{4*i}")
        print("stamps:", len(STAMPS), STAMPS)
        return
    e("s_lshl_b32 s3, s2, 2")
    e(f"s_add_u32 s3, s3, s{S_W}")
    e("s_lshl_b32 s3, s3, 7")
    e(f"s_add_u32 s3, s3, {200<<20}")
    e("v_mov_b32 v100, 0")
    for i in range(n): e(f"buffer_store_dword v{64+i}, v100, s[52:55], s3 offen offset:{4*i}")
    print("stamps:", len(STAMPS), STAMPS)

def gen_attn():
    g = G()
    gl = G()
    e = g.e
    el = gl.e
    DEPTH = OPT["depth"]
    g.lab("attn_kernel")
    e("s_cmp_ge_u32 s2, 256")
    e("s_cbranch_scc1 attn_end")
    e("s_load_dwordx8 s[36:43], s[0:1], 0")
    e("s_load_dwordx2 s[44:45], s[0:1], 32")
    e("s_load_dwordx2 s[46:47], s[0:1], 56")
    stamp(g, "entry")
    e(f"v_and_b32 v{V_LANE}, 63, v0")
    e(f"v_lshrrev_b32 v{V_T}, 6, v0")
    e("s_nop 0")
    e(f"v_readfirstlane_b32 s49, v{V_T}")
    e("s_and_b32 s3, s2, 7")
    e(f"s_lshr_b32 s{S_QH}, s2, 3")
    e(f"s_lshr_b32 s{S_B}, s{S_QH}, 2")
    e(f"s_lshr_b32 s{S_H}, s{S_QH}, 1")
    e(f"s_and_b32 s{S_H}, s{S_H}, 1")
    e(f"s_and_b32 s{S_QH}, s{S_QH}, 1")
    e("s_lshl_b32 s3, s3, 1")
    e(f"s_add_u32 s{S_H}, s{S_H}, s3")
    e(f"s_and_b32 s{S_W}, s49, 3")
    e(f"s_lshr_b32 s{S_QI}, s{S_W}, 1")
    e(f"s_and_b32 s{S_J}, s{S_W}, 1")
    e(f"s_lshl_b32 s{S_W1K}, s{S_W}, 10")
    e(f"s_mov_b32 s{S_WL}, s{S_J}")
    e(f"s_lshl_b32 s3, s{S_B}, 1")
    e(f"s_add_u32 s3, s3, s{S_QH}")
    e("s_mul_i32 s48, s3, 37")
    e("s_lshr_b32 s48, s48, 8")
    e("s_mul_i32 s48, s48, 7")
    e(f"s_sub_u32 s{S_T0}, s3, s48")
    if not OPT["rot_o"]: e(f"s_mov_b32 s{S_T0}, 0")
    e("s_sub_u32 s48, s3, 14")
    e("s_cmp_ge_u32 s3, 14")
    e(f"s_cselect_b32 s{S_C0}, s48, s3")
    if not OPT["rot_q"]: e(f"s_mov_b32 s{S_C0}, 0")
    e(f"s_lshl_b32 s3, s{S_QH}, 17")
    if not OPT["rot_kv"]: e("s_mov_b32 s3, 0")
    e(f"s_add_u32 s{S_KVA}, s{S_W1K}, s3")
    e(f"s_sub_u32 s{S_KVB}, s{S_W1K}, s3")
    e("s_cmp_ge_u32 s49, 4")
    e("s_waitcnt lgkmcnt(0)")
    e("s_cbranch_scc1 attn_loader")
    e(f"s_lshl_b32 s3, s{S_H}, 4")
    e(f"s_lshl_b32 s48, s{S_B}, 1")
    e("s_add_u32 s3, s3, s48")
    e(f"s_add_u32 s3, s3, s{S_QH}")
    e("s_lshl_b32 s3, s3, 2")
    e(f"s_add_u32 s3, s3, s{S_W}")
    WB = 14336 if OPT["pbf16"] else 28672
    e(f"s_mul_i32 s3, s3, {WB}")
    if DEBUG:
        e("s_mov_b32 s52, s46")
        e("s_and_b32 s53, s47, 0xffff")
        e("s_mov_b32 s54, 0x10000000")
        e("s_mov_b32 s55, 0x20000")
    e(f"s_add_u32 s{S_WS}, s46, s3")
    e(f"s_addc_u32 s{S_WS+1}, s47, 0")
    e(f"s_and_b32 s{S_WS+1}, s{S_WS+1}, 0xffff")
    e(f"s_mov_b32 s{S_WS+2}, {WB}")
    e(f"s_mov_b32 s{S_WS+3}, 0x20000")
    e(f"s_mov_b32 s{S_C}, 0x3db8aa3b")
    e(f"s_mov_b32 s{S_C2}, 0x3db8aa3b")
    e(f"s_mov_b32 s{S_NC}, 0xbdb8aa3b")
    e(f"s_mov_b32 s{S_C2+1}, 0x3db8aa3b")
    e(f"s_lshl_b32 s3, s{S_B}, 1")
    e(f"s_add_u32 s3, s3, s{S_QH}")
    e("s_mul_i32 s3, s3, 57344")
    e(f"s_add_u32 s{S_X}, s36, s3")
    e(f"s_addc_u32 s{S_X+1}, s37, 0")
    e(f"s_and_b32 s{S_X+1}, s{S_X+1}, 0xffff")
    e(f"s_mov_b32 s{S_X+2}, 57344")
    e(f"s_mov_b32 s{S_X+3}, 0x20000")
    e(f"s_lshl_b32 s3, s{S_B}, 4")
    e(f"s_add_u32 s3, s3, s{S_H}")
    e("s_lshl_b32 s3, s3, 18")
    e(f"s_add_u32 s{S_K}, s38, s3")
    e(f"s_addc_u32 s{S_K+1}, s39, 0")
    e(f"s_and_b32 s{S_K+1}, s{S_K+1}, 0xffff")
    e(f"s_mov_b32 s{S_K+2}, 262144")
    e(f"s_mov_b32 s{S_K+3}, 0x20000")
    e(f"s_mul_i32 s{S_W896}, s{S_W}, 896")
    e(f"v_mov_b32 v{C_T+2}, 0x40000000")
    for k in range(4):
        e(f"s_add_u32 s3, s{S_W}, {4*k}")
        e(f"v_xor_b32 v{C_T}, s3, v{V_LANE}")
        e(f"v_lshlrev_b32 v{C_T+1}, 4, v{C_T}")
        e(f"v_cmp_gt_u32 vcc, 56, v{C_T}")
        e("s_nop 1")
        e(f"v_cndmask_b32 v{C_XD+k}, v{C_T+2}, v{C_T+1}, vcc")
    e(f"v_lshrrev_b32 v{C_T}, 5, v{V_LANE}")
    e(f"v_and_b32 v{C_T+1}, 31, v{V_LANE}")
    e(f"v_xor_b32 v{C_T+1}, v{C_T+1}, v{C_T}")
    e(f"v_lshlrev_b32 v{C_T+1}, 4, v{C_T+1}")
    e(f"v_lshl_add_u32 v{C_T+1}, v{C_T}, 9, v{C_T+1}")
    e(f"s_lshl_b32 s3, s{S_W}, 5")
    e(f"v_xor_b32 v{C_KD}, s3, v{C_T+1}")
    e(f"v_xor_b32 v{C_KD+1}, 0x80, v{C_KD}")
    gl.lab("attn_loader")
    if DEBUG.get("tl"):
        el("s_memtime s[60:61]")
        el("s_mov_b32 s52, s46")
        el("s_and_b32 s53, s47, 0xffff")
        el("s_mov_b32 s54, 0x10000000")
        el("s_mov_b32 s55, 0x20000")
    if OPT["prio"]: el(f"s_setprio {OPT['prio']}")
    el(f"s_lshl_b32 s3, s{S_B}, 1")
    el(f"s_add_u32 s3, s3, s{S_QH}")
    el("s_mul_i32 s3, s3, 57344")
    el(f"s_add_u32 s{S_X}, s36, s3")
    el(f"s_addc_u32 s{S_X+1}, s37, 0")
    el(f"s_and_b32 s{S_X+1}, s{S_X+1}, 0xffff")
    el(f"s_mov_b32 s{S_X+2}, 57344")
    el(f"s_mov_b32 s{S_X+3}, 0x20000")
    el(f"s_mov_b32 s{S_WQ}, s42")
    el(f"s_and_b32 s{S_WQ+1}, s43, 0xffff")
    el(f"s_mov_b32 s{S_WQ+2}, {448*8192}")
    el(f"s_mov_b32 s{S_WQ+3}, 0x20000")
    el(f"s_lshl_b32 s3, s{S_B}, 4")
    el(f"s_add_u32 s3, s3, s{S_H}")
    el("s_lshl_b32 s3, s3, 18")
    el(f"s_add_u32 s{S_K}, s38, s3")
    el(f"s_addc_u32 s{S_K+1}, s39, 0")
    el(f"s_and_b32 s{S_K+1}, s{S_K+1}, 0xffff")
    el(f"s_mov_b32 s{S_K+2}, 262144")
    el(f"s_mov_b32 s{S_K+3}, 0x20000")
    el(f"s_add_u32 s{S_V}, s40, s3")
    el(f"s_addc_u32 s{S_V+1}, s41, 0")
    el(f"s_and_b32 s{S_V+1}, s{S_V+1}, 0xffff")
    el(f"s_mov_b32 s{S_V+2}, 262144")
    el(f"s_mov_b32 s{S_V+3}, 0x20000")
    el(f"s_mul_i32 s3, s{S_H}, {256*896}")
    el(f"s_add_u32 s{S_WO}, s44, s3")
    el(f"s_addc_u32 s{S_WO+1}, s45, 0")
    el(f"s_and_b32 s{S_WO+1}, s{S_WO+1}, 0xffff")
    el(f"s_mov_b32 s{S_WO+2}, {256*896}")
    el(f"s_mov_b32 s{S_WO+3}, 0x20000")
    el(f"s_lshl_b32 s{S_WQOFF}, s{S_H}, 9")
    el(f"s_lshl_b32 s3, s{S_W}, 14")
    el(f"s_add_u32 s{S_WQOFF}, s{S_WQOFF}, s3")
    el(f"s_mul_i32 s{S_W896}, s{S_W}, 896")
    T = 16
    hi, p = T, T + 1
    el(f"v_lshrrev_b32 v{hi}, 5, v{V_LANE}")
    el(f"v_and_b32 v{p}, 31, v{V_LANE}")
    el(f"v_mov_b32 v{T+4}, 0x40000000")
    for k in range(4):
        el(f"s_add_u32 s3, s{S_W}, {4*k}")
        el(f"v_xor_b32 v{T+2}, s3, v{V_LANE}")
        el(f"v_lshlrev_b32 v{T+3}, 4, v{T+2}")
        el(f"v_cmp_gt_u32 vcc, 56, v{T+2}")
        el("s_nop 1")
        el(f"v_cndmask_b32 v{L_XD+k}, v{T+4}, v{T+3}, vcc")
    el(f"s_lshl_b32 s3, s{S_WL}, 1")
    el(f"v_add_u32 v{T+2}, s3, v{hi}")
    el(f"v_lshlrev_b32 v{T+2}, 2, v{T+2}")
    el(f"v_xor_b32 v{T+2}, v{p}, v{T+2}")
    el(f"v_lshlrev_b32 v{T+2}, 4, v{T+2}")
    el(f"v_lshl_add_u32 v{L_VD}, v{hi}, 9, v{T+2}")
    el(f"v_lshl_add_u32 v{L_WD}, v{hi}, 13, v{T+2}")
    el(f"v_xor_b32 v{T+2}, v{p}, v{hi}")
    el(f"v_lshlrev_b32 v{T+2}, 4, v{T+2}")
    el(f"v_lshl_add_u32 v{T+3}, v{hi}, 9, v{T+2}")
    el(f"s_lshl_b32 s3, s{S_W}, 5")
    el(f"v_xor_b32 v{L_KD}, s3, v{T+3}")
    el(f"v_xor_b32 v{L_KD+1}, 0x80, v{L_KD}")
    el(f"v_lshrrev_b32 v{T+2}, 3, v{V_LANE}")
    el(f"v_mul_u32_u24 v{T+2}, 896, v{T+2}")
    el(f"v_lshrrev_b32 v{T+3}, 2, v{V_LANE}")
    el(f"v_lshrrev_b32 v{T+5}, 4, v{V_LANE}")
    el(f"v_xor_b32 v{T+3}, v{T+3}, v{T+5}")
    el(f"v_and_b32 v{T+3}, 1, v{T+3}")
    el(f"v_lshl_add_u32 v{T+2}, v{T+3}, 6, v{T+2}")
    el(f"v_and_b32 v{T+3}, 3, v{V_LANE}")
    el(f"v_lshl_add_u32 v{L_OD}, v{T+3}, 4, v{T+2}")
    el(f"s_mul_i32 s{S_W7168}, s{S_W}, 7168")

    if OPT["cpf"]:
        el("s_getpc_b64 s[40:41]")
        gl.lab("cpf_here")
        el("s_sub_u32 s40, s40, cpf_here-attn_kernel")
        el("s_subb_u32 s41, s41, 0")
        el(f"v_lshlrev_b32 v{T+2}, 6, v{V_LANE}")
        el(f"s_mul_i32 s3, s{S_W}, {OPT['cpf']*4096}")
        el(f"v_add_u32 v{T+2}, s3, v{T+2}")
        for i in range(OPT["cpf"]):
            el(f"global_load_dword v{T+6}, v{T+2}, s[40:41]")
            el(f"v_add_u32 v{T+2}, 4096, v{T+2}")
            gl.vm("cpf")
    if OPT["tlbw"]:
        el(f"v_lshlrev_b32 v{T+2}, 12, v{V_LANE}")
        el(f"s_cmp_eq_u32 s{S_W}, 0")
        el("s_cbranch_scc0 tlbw_1")
        el(f"buffer_load_dword v{T+6}, v{T+2}, s[{S_K}:{S_K+3}], 0 offen")
        el("s_branch tlbw_done")
        gl.lab("tlbw_1")
        el(f"s_cmp_eq_u32 s{S_W}, 1")
        el("s_cbranch_scc0 tlbw_2")
        el(f"buffer_load_dword v{T+6}, v{T+2}, s[{S_V}:{S_V+3}], 0 offen")
        el("s_branch tlbw_done")
        gl.lab("tlbw_2")
        el(f"s_cmp_eq_u32 s{S_W}, 2")
        el("s_cbranch_scc0 tlbw_done")
        el(f"buffer_load_dword v{T+6}, v{T+2}, s[{S_WO}:{S_WO+3}], 0 offen")
        gl.lab("tlbw_done")
        gl.vm("tlb")
    order = [("x", i) for i in range(4)]
    nwf = OPT["wq_first"]; ek = OPT["early_k"]
    for c in range(nwf): order.append(("wq", c))
    kq = [("k", i) for i in range(16)]
    for s in range(ek): order += [kq.pop(0), kq.pop(0)]
    nkin = OPT["kin"]
    for c in range(nwf, 14):
        order.append(("wq", c))
        if nkin > 0:
            order.append(kq.pop(0)); nkin -= 1
    order += [("qx", 0), ("qx", 1)]
    order += kq
    order.append(("st", 0))
    for s in range(8): order += [("v", 2*s), ("v", 2*s+1)]
    for c in range(14): order.append(("wo", c))
    sched = {"next": 0, "free": list(range(NSLOT)), "slot": {}}
    cunits = set([("x", i) for i in range(4)])
    def issue_unit(u, slot):
        kind, i = u
        tag = f"{kind}{i}"
        if kind in ("qx", "st", "ox"): return
        if u in cunits:
            for k in range(4):
                lds = slot * SLOT + k * 4096
                em, gg, xd = (e, g, C_XD) if k < 2 else (el, gl, L_XD)
                em(f"s_add_u32 m0, s{S_W1K}, {lds}")
                em(f"s_add_u32 s3, s{S_W896}, {(16*i + 4*k)*896}")
                em(f"buffer_load_dwordx4 v{xd+k}, s[{S_X}:{S_X+3}], s3 offen {OPT['pol_x']}lds")
                gg.vm(tag)
            return
        for k in range(4):
            lds = slot * SLOT + k * 4096
            el(f"s_add_u32 m0, s{S_W1K}, {lds}")
            if kind == "k":
                el(f"s_add_u32 s3, s{S_KVA if i < 8 else S_KVB}, {i*16384 + k*4096}")
                el(f"buffer_load_dwordx4 v{L_KD+(k&1)}, s[{S_K}:{S_K+3}], s3 offen {OPT['pol_kv']}lds")
            elif kind == "v":
                el(f"s_add_u32 s3, s{S_KVA if i < 8 else S_KVB}, {i*16384 + k*4096}")
                el(f"buffer_load_dwordx4 v{L_VD}, s[{S_V}:{S_V+3}], s3 offen {OPT['pol_kv']}lds")
            elif kind == "wq":
                if k == 0:
                    el(f"s_add_u32 s39, s{S_C0}, {i}")
                    el("s_sub_u32 s40, s39, 14")
                    el("s_cmp_ge_u32 s39, 14")
                    el("s_cselect_b32 s39, s40, s39")
                    el("s_lshl_b32 s39, s39, 18")
                    el(f"s_add_u32 s38, s39, s{S_WQOFF}")
                    el(f"s_add_u32 m0, s{S_W1K}, {lds}")
                el(f"s_add_u32 s3, s38, {k*65536}")
                el(f"buffer_load_dwordx4 v{L_WD}, s[{S_WQ}:{S_WQ+3}], s3 offen {OPT['pol_w']}lds")
            elif kind == "wo":
                if k == 0:
                    el(f"s_add_u32 s39, s{S_T0}, {i>>1}")
                    el("s_sub_u32 s40, s39, 7")
                    el("s_cmp_ge_u32 s39, 7")
                    el("s_cselect_b32 s39, s40, s39")
                    el("s_lshl_b32 s39, s39, 7")
                    el(f"s_add_u32 s38, s39, s{S_W7168}")
                    el(f"s_add_u32 m0, s{S_W1K}, {lds}")
                el(f"s_add_u32 s3, s38, {(128*(i&1) + 32*k)*896}")
                el(f"buffer_load_dwordx4 v{L_OD}, s[{S_WO}:{S_WO+3}], s3 offen {OPT['pol_w']}lds")
            elif kind == "x":
                el(f"s_add_u32 s3, s{S_W896}, {(16*i + 4*k)*896}")
                el(f"buffer_load_dwordx4 v{L_XD+k}, s[{S_X}:{S_X+3}], s3 offen {OPT['pol_x']}lds")
            gl.vm(tag)
    pending = []
    def alloc():
        while sched["free"] and sched["next"] < len(order):
            u = order[sched["next"]]; sched["next"] += 1
            s = sched["free"].pop(0)
            sched["slot"][u] = s
            if u[0] not in ("qx", "st", "ox"): pending.append(u)
    def flush(n=None, upto=None):
        k = 0
        while pending and (n is None or k < n):
            if upto is not None and not any(u in pending for u in upto): break
            u = pending.pop(0); issue_unit(u, sched["slot"][u]); k += 1
    def slot_of(u): return sched["slot"][u] * SLOT
    def barrier(needs=(), frees=(), maxb=None):
        flush(upto=list(needs)) if needs else None
        gl.wait_vm([f"{k}{i}" for (k, i) in needs])
        g.wait_vm([f"{k}{i}" for (k, i) in needs])
        el("s_barrier")
        e("s_barrier")
        for u in frees: sched["free"].append(sched["slot"][u])
        alloc()
        flush(n=OPT["maxb"] if maxb is None else maxb)
    if DEBUG.get("tl"): el("s_memtime s[62:63]")
    alloc()
    if OPT["cissue"]:
        for u in [u for u in pending if u in cunits]:
            pending.remove(u); issue_unit(u, sched["slot"][u])
        flush(n=2)
    else:
        flush(n=5)
    if DEBUG.get("tl"): el("s_memtime s[64:65]")
    assert [sched["slot"][("x", i)] for i in range(4)] == [0, 1, 2, 3]

    if OPT["l2pf"]:
        pf0 = OPT["l2pf"] * 16384
        tot = (262144 - pf0) // 8
        e(f"v_lshlrev_b32 v{C_T}, 6, v{V_LANE}")
        e(f"s_lshl_b32 s3, s{S_QH}, 2")
        e(f"s_add_u32 s3, s3, s{S_W}")
        e(f"s_mul_i32 s3, s3, {tot}")
        e(f"s_add_u32 s3, s3, {pf0}")
        for i in range(tot // 4096):
            e(f"buffer_load_dword v{C_T+1}, v{C_T}, s[{S_K}:{S_K+3}], s3 offen {OPT['pol_pf']}")
            e("s_add_u32 s3, s3, 4096")
            g.vm("pf")
    T = V_T
    hi, p = T, T + 1
    e(f"v_lshrrev_b32 v{hi}, 5, v{V_LANE}")
    e(f"v_and_b32 v{p}, 31, v{V_LANE}")
    e(f"v_lshlrev_b32 v{V_XA}, 4, v{V_LANE}")
    e(f"v_and_b32 v{T+2}, 15, v{p}")
    e(f"v_xor_b32 v{T+2}, v{T+2}, v{hi}")
    e(f"v_lshlrev_b32 v{V_KA}, 4, v{T+2}")
    e(f"s_lshl_b32 s3, s{S_QI}, 15")
    e(f"v_lshl_add_u32 v{V_KA+1}, v{p}, 10, s3")
    rr, dck = T + 2, T + 3
    e(f"v_bfe_u32 v{rr}, v{V_LANE}, 2, 2")
    e(f"v_bfe_u32 v{T+4}, v{V_LANE}, 4, 1")
    e(f"v_and_b32 v{T+5}, 1, v{V_LANE}")
    e(f"v_bfe_u32 v{T+6}, v{V_LANE}, 1, 1")
    e(f"v_lshlrev_b32 v{T+4}, 2, v{T+4}")
    e(f"v_lshlrev_b32 v{T+5}, 1, v{T+5}")
    e(f"v_or3_b32 v{dck}, v{T+4}, v{T+5}, v{T+6}")
    e(f"v_lshlrev_b32 v{dck}, 3, v{dck}")
    e(f"v_lshl_add_u32 v{T+4}, v{hi}, 3, v{rr}")
    e(f"v_lshl_add_u32 v{T+5}, v{T+4}, 9, v{dck}")
    e(f"v_lshl_add_u32 v{T+5}, v{rr}, 6, v{T+5}")
    e(f"s_lshl_b32 s48, s{S_J}, 8")
    e(f"v_add_u32 v{T+6}, s48, v{T+5}")
    e("s_xor_b32 s48, s48, 256")
    e(f"v_add_u32 v{T+7}, s48, v{T+5}")
    for t in range(4):
        e(f"v_xor_b32 v{V_VA+t}, {t<<6}, v{T+6}")
        e(f"v_xor_b32 v{V_VA+4+t}, {t<<6}, v{T+7}")
        e(f"v_xor_b32 v{V_WA+t}, {t<<6}, v{T+6}")
    e(f"v_lshl_add_u32 v{T+5}, v{T+4}, 7, v{dck}")
    e(f"v_lshrrev_b32 v{T+6}, 1, v{rr}")
    e(f"v_xor_b32 v{T+6}, s{S_J}, v{T+6}")
    e(f"v_lshl_add_u32 v{V_OA}, v{T+6}, 6, v{T+5}")
    e(f"s_lshl_b32 s37, s{S_C0}, 1")
    for kk in range(28):
        e(f"s_add_u32 s3, s37, {kk}")
        e("s_sub_u32 s48, s3, 28")
        e("s_cmp_ge_u32 s3, 28")
        e("s_cselect_b32 s3, s48, s3")
        e("s_lshl_b32 s3, s3, 5")
        e(f"v_xor_b32 v{QACC+kk}, s3, v{V_KA}")
        e(f"v_add_u32 v{QACC+kk}, v{QACC+kk}, v{V_KA+1}")
    stamp(g, "start")
    barrier(needs=[("x", i) for i in range(4)])
    if DEBUG.get("t1"): stamp(g, "xbar")
    for kk in range(28):
        e(f"ds_read_b128 {vr(BIGA+4*kk)}, v{QACC+kk}")
        if kk in (13, 25): e("s_waitcnt lgkmcnt(2)")
    e(f"v_and_b32 v{T+2}, 0x13, v{p}")
    e(f"v_and_b32 v{T+3}, 8, v{p}")
    e(f"v_lshrrev_b32 v{T+3}, 1, v{T+3}")
    e(f"v_and_b32 v{T+4}, 4, v{p}")
    e(f"v_lshlrev_b32 v{T+4}, 1, v{T+4}")
    e(f"v_or3_b32 v{T+2}, v{T+2}, v{T+3}, v{T+4}")
    e(f"v_and_b32 v{T+3}, 15, v{T+2}")
    e(f"v_xor_b32 v{T+3}, v{T+3}, v{hi}")
    e(f"v_lshlrev_b32 v{T+3}, 4, v{T+3}")
    e(f"v_lshl_add_u32 v{T+2}, v{T+2}, 9, v{T+3}")
    for k in range(8):
        e(f"v_xor_b32 v{V_KA+k}, {k<<5}, v{T+2}")
    e("s_waitcnt lgkmcnt(0)")

    bias = {"k": (0, 0), "v": (0, 0), "w": 0, "o": 0}
    def rebase_j(key, regs, b0, b1):
        o0, o1 = bias[key]
        d0, d1 = b0 - o0, b1 - o1
        if d0 == 0 and d1 == 0: return
        e(f"s_mov_b32 s49, {d1 & 0xffffffff}")
        e(f"s_cmp_eq_u32 s{S_J}, 0")
        e(f"s_cselect_b32 s3, {d0 & 0xffffffff}, s49")
        for r in regs: e(f"v_add_u32 v{r}, s3, v{r}")
        bias[key] = (b0, b1)
    def rebase(key, regs, lo, hi_):
        if lo - bias[key] < 0 or hi_ - bias[key] > 65535:
            d = lo - bias[key]
            e(f"s_mov_b32 s3, {d & 0xffffffff}")
            for r in regs: e(f"v_add_u32 v{r}, s3, v{r}")
            bias[key] = lo

    fb = {"n": 0}
    def run_steps(steps):
        n = len(steps)
        base = fb["n"]
        queue = []
        def do_reads(i):
            st = steps[i]
            if st.get("sync"): st["sync"]()
            buf = FB + 4 * ((base + i) % NB)
            for s in st["reads"](buf):
                e(s); g.ldsop(f"r{base+i}")
        for i in range(min(DEPTH, n)): do_reads(i)
        for i in range(n):
            if i + DEPTH < n: do_reads(i + DEPTH)
            g.wait_lds(f"r{base+i}")
            e(steps[i]["mfma"](FB + 4 * ((base + i) % NB)))
            if steps[i].get("post"): queue.extend(steps[i]["post"]())
            if queue:
                for s in queue.pop(0): e(s)
        while queue:
            for s in queue.pop(0): e(s)
        fb["n"] = base + n
    def mfma(acc, a, b, first=False):
        return f"v_mfma_f32_32x32x16_bf16 {vr(acc,16)}, {vr(a)}, {vr(b)}, " + ("0" if first else vr(acc,16))

    steps = []
    for c in range(14):
        for kk2 in range(2):
            for t in range(4):
                kk = 2 * c + kk2
                st = {}
                def reads(buf, c=c, kk2=kk2, t=t):
                    off = slot_of(("wq", c)) + kk2 * 8192 - bias["w"]
                    return [f"ds_read_b64_tr_b16 v[{buf}:{buf+1}], v{V_WA+t} offset:{off}",
                            f"ds_read_b64_tr_b16 v[{buf+2}:{buf+3}], v{V_WA+t} offset:{off+2048}"]
                st["reads"] = reads
                st["mfma"] = (lambda buf, t=t, kk=kk: mfma(QACC + 16 * t, buf, BIGA + 4 * kk, kk == 0))
                if kk2 == 0 and t == 0:
                    def sync(c=c):
                        fr = [("x", i) for i in range(4)] if c == 0 else ([("wq", c - 2)] if c >= 2 else [])
                        if DEBUG.get("t1") and c in (0, 1, 2, 3, 4, 6, 8, 10, 12): stamp(g, f"pre{c}")
                        barrier(needs=[("wq", c)], frees=fr)
                        if DEBUG.get("t1") and c in (0, 1, 2, 3, 4, 6, 8, 10, 12): stamp(g, f"bar{c}")
                        sb = slot_of(("wq", c))
                        rebase("w", range(V_WA, V_WA + 4), sb, sb + 8192 + 2048)
                    st["sync"] = sync
                steps.append(st)
    run_steps(steps)
    stamp(g, "p1end")
    e("s_nop 15")
    e("s_nop 3")
    for t in range(4):
        for a in range(2):
            for q in range(4):
                src = QACC + 16 * t + 8 * a + 2 * q
                e(f"v_cvt_pk_bf16_f32 v{BIGA + (2*t+a)*4 + q}, v{src}, v{src+1}")
    def xch_addr(u0, u1):
        e(f"s_mov_b32 s49, {slot_of(u1)}")
        e(f"s_cmp_eq_u32 s{S_QI}, 0")
        e(f"s_cselect_b32 s3, {slot_of(u0)}, s49")
        e(f"s_lshl_b32 s48, s{S_J}, 13")
        e("s_add_u32 s48, s48, s3")
        e(f"v_add_u32 v{T}, s48, v{V_XA}")
        e(f"v_add_u32 v{T+1}, s3, v{V_XA}")
    xch_addr(("qx", 0), ("qx", 1))
    for f in range(8):
        e(f"ds_write_b128 v{T}, {vr(BIGA+4*f)} offset:{f*1024}")
    e("s_waitcnt lgkmcnt(0)")
    barrier(frees=[("wq", 12), ("wq", 13)], maxb=0)
    for kk in range(16):
        e(f"ds_read_b128 {vr(BIGA+4*kk)}, v{T+1} offset:{kk*1024}")
    e("s_waitcnt lgkmcnt(0)")
    stamp(g, "qx_end")
    MT = [24, 25, 26, 27, 28, 29, 31, 23]
    LT = [18, 19, 20, 21, 0, 38, 39, 37]
    TT = 32
    def tile_softmax(t):
        a0 = BIGC + 16 * t
        o = []
        for i in range(8):
            a = a0 + 2 * i
            o.append(f"v_cvt_pk_bf16_f32 v{TT + (i & 1)}, v{a}, v{a+1}")
            o.append(f"v_lshlrev_b32 v{a}, 16, v{TT + (i & 1)}")
            o.append(f"v_and_b32 v{a+1}, 0xffff0000, v{TT + (i & 1)}")
        m = MT[t]
        o.append(f"v_max_f32 v{m}, v{a0}, v{a0+1}")
        for i in range(1, 8):
            o.append(f"v_max3_f32 v{m}, v{m}, v{a0+2*i}, v{a0+2*i+1}")
        o.append(f"v_mul_f32 v{TT+2}, s{S_NC}, v{m}")
        o.append(f"v_mov_b32 v{TT+3}, v{TT+2}")
        for i in range(8):
            a = a0 + 2 * i
            o.append(f"v_pk_fma_f32 v[{a}:{a+1}], v[{a}:{a+1}], s[{S_C2}:{S_C2+1}], v[{TT+2}:{TT+3}]")
        for i in range(16):
            o.append(f"v_exp_f32 v{a0+i}, v{a0+i}")
        o.append(f"v_pk_add_f32 v[{TT}:{TT+1}], v[{a0}:{a0+1}], v[{a0+2}:{a0+3}]")
        for i in range(2, 8):
            o.append(f"v_pk_add_f32 v[{TT}:{TT+1}], v[{TT}:{TT+1}], v[{a0+2*i}:{a0+2*i+1}]")
        o.append(f"v_add_f32 v{LT[t]}, v{TT}, v{TT+1}")
        return o
    steps = []
    for s in range(8):
        for kk in range(16):
            st = {}
            st["reads"] = (lambda buf, kk=kk: [f"ds_read_b128 {vr(buf)}, v{V_KA+(kk&7)} offset:{(kk>>3)*256}"])
            st["mfma"] = (lambda buf, s=s, kk=kk: mfma(BIGC + 16 * s, buf, BIGA + 4 * kk, kk == 0))
            if kk == 0:
                def sync(s=s):
                    fr = [("qx", 0), ("qx", 1)] if s == 0 else ([("k", 2*s-4), ("k", 2*s-3)] if s >= 2 else [])
                    barrier(needs=[("k", 2*s), ("k", 2*s+1)], frees=fr)
                    rebase_j("k", range(V_KA, V_KA + 8), slot_of(("k", 2*s)), slot_of(("k", 2*s+1)))
                st["sync"] = sync
            if s >= 1 and kk == 4:
                def post(s=s):
                    o = tile_softmax(s - 1)
                    return [o[i:i+6] for i in range(0, len(o), 6)]
                st["post"] = post
            steps.append(st)
    run_steps(steps)
    g.wait_lds_all()
    barrier(frees=[("k", 12), ("k", 13), ("k", 14), ("k", 15)], maxb=99)
    e("s_nop 15")
    stamp(g, "p2end")
    S = BIGC
    for x in tile_softmax(7): e(x)
    T2 = 32
    e(f"v_max3_f32 v{T2}, v{MT[0]}, v{MT[1]}, v{MT[2]}")
    e(f"v_max3_f32 v{T2}, v{T2}, v{MT[3]}, v{MT[4]}")
    e(f"v_max3_f32 v{T2}, v{T2}, v{MT[5]}, v{MT[6]}")
    e(f"v_max_f32 v{T2}, v{T2}, v{MT[7]}")
    e(f"v_mov_b32 v{T2+1}, v{T2}")
    e("s_nop 1")
    e(f"v_permlane32_swap_b32 v{T2}, v{T2+1}")
    e("s_nop 1")
    e(f"v_max_f32 v{T2}, v{T2}, v{T2+1}")
    for t in range(8):
        e(f"v_sub_f32 v{MT[t]}, v{MT[t]}, v{T2}")
    for t in range(8):
        e(f"v_mul_f32 v{MT[t]}, s{S_C}, v{MT[t]}")
    for t in range(8):
        e(f"v_exp_f32 v{MT[t]}, v{MT[t]}")
    e("s_nop 0")
    e(f"v_mul_f32 v{T2+2}, v{MT[0]}, v{LT[0]}")
    for t in range(1, 8):
        e(f"v_fma_f32 v{T2+2}, v{MT[t]}, v{LT[t]}, v{T2+2}")
    e(f"v_mov_b32 v{T2+3}, v{T2+2}")
    e("s_nop 1")
    e(f"v_permlane32_swap_b32 v{T2+2}, v{T2+3}")
    e("s_nop 1")
    e(f"v_add_f32 v{T2+2}, v{T2+2}, v{T2+3}")
    MLOC, LLOC = T2, T2 + 2
    MISC = slot_of(("st", 0))
    e(f"v_and_b32 v{T2+3}, 31, v{V_LANE}")
    e(f"v_lshlrev_b32 v{T2+3}, 3, v{T2+3}")
    e(f"s_lshl_b32 s3, s{S_W}, 8")
    e(f"s_add_u32 s48, s3, {MISC}")
    e("s_xor_b32 s3, s3, 256")
    e(f"s_add_u32 s3, s3, {MISC}")
    e(f"v_add_u32 v{T2+4}, s48, v{T2+3}")
    e(f"v_add_u32 v{T2+5}, s3, v{T2+3}")
    e(f"ds_write_b32 v{T2+4}, v{MLOC}")
    e(f"ds_write_b32 v{T2+4}, v{LLOC} offset:4")
    e("s_waitcnt lgkmcnt(0)")
    barrier(maxb=0)
    e(f"ds_read_b64 v[{T2+6}:{T2+7}], v{T2+5}")
    e("s_waitcnt lgkmcnt(0)")
    e(f"v_max_f32 v{T2+3}, v{MLOC}, v{T2+6}")
    e(f"v_sub_f32 v{T2+4}, v{MLOC}, v{T2+3}")
    e(f"v_sub_f32 v{T2+5}, v{T2+6}, v{T2+3}")
    e(f"v_mul_f32 v{T2+4}, s{S_C}, v{T2+4}")
    e(f"v_mul_f32 v{T2+5}, s{S_C}, v{T2+5}")
    e(f"v_exp_f32 v{T2+4}, v{T2+4}")
    e(f"v_exp_f32 v{T2+5}, v{T2+5}")
    e("s_nop 0")
    e(f"v_mul_f32 v{T2+3}, v{LLOC}, v{T2+4}")
    e(f"v_fma_f32 v{T2+3}, v{T2+7}, v{T2+5}, v{T2+3}")
    e(f"v_rcp_f32 v{T2+3}, v{T2+3}")
    e("s_nop 0")
    e(f"v_mul_f32 v{T2+3}, v{T2+3}, v{T2+4}")
    for t in range(8):
        e(f"v_mul_f32 v{T2+4}, v{T2+3}, v{MT[t]}")
        e(f"v_mul_f32 v{T2+5}, v{T2+3}, v{MT[t]}")
        for i in range(8):
            a = S + 16 * t + 2 * i
            e(f"v_pk_mul_f32 v[{a}:{a+1}], v[{a}:{a+1}], v[{T2+4}:{T2+5}]")
        for i in range(8):
            a = S + 16 * t + 2 * i
            e(f"v_cvt_pk_bf16_f32 v{BIGA+8*t+i}, v{a}, v{a+1}")
    stamp(g, "sm_end")
    steps = []
    for s in range(8):
        for kk2 in range(2):
            for t in range(8):
                st = {}
                st["reads"] = (lambda buf, kk2=kk2, t=t: [
                    f"ds_read_b64_tr_b16 v[{buf}:{buf+1}], v{V_VA+t} offset:{kk2*8192}",
                    f"ds_read_b64_tr_b16 v[{buf+2}:{buf+3}], v{V_VA+t} offset:{kk2*8192+2048}"])
                st["mfma"] = (lambda buf, t=t, s=s, kk2=kk2: mfma(BIGC + 16 * t, buf, BIGA + 8 * s + 4 * kk2, s == 0 and kk2 == 0))
                if kk2 == 0 and t == 0:
                    def sync(s=s):
                        fr = [("st", 0)] if s == 0 else ([("v", 2*s-4), ("v", 2*s-3)] if s >= 2 else [])
                        barrier(needs=[("v", 2*s), ("v", 2*s+1)], frees=fr)
                        rebase_j("v", range(V_VA, V_VA + 8), slot_of(("v", 2*s)), slot_of(("v", 2*s+1)))
                    st["sync"] = sync
                steps.append(st)
    run_steps(steps)
    stamp(g, "p3end")
    g.wait_lds_all()
    e("s_nop 15")
    barrier(maxb=0)
    xs = [slot_of(("v", 12 + i)) for i in range(4)]
    e(f"s_mov_b32 s48, {xs[1]}")
    e(f"s_mov_b32 s49, {xs[3]}")
    e(f"s_cmp_eq_u32 s{S_J}, 0")
    e(f"s_cselect_b32 s37, {xs[0]}, s48")
    e(f"s_cselect_b32 s38, {xs[2]}, s49")
    e(f"s_cselect_b32 s39, s48, {xs[0]}")
    e(f"s_cselect_b32 s40, s49, {xs[2]}")
    e(f"s_cmp_eq_u32 s{S_QI}, 0")
    e("s_cselect_b32 s37, s37, s38")
    e("s_cselect_b32 s39, s39, s40")
    e(f"v_add_u32 v{T+2}, s37, v{V_XA}")
    e(f"v_add_u32 v{T+3}, s39, v{V_XA}")
    for i in range(16):
        e(f"ds_write_b128 v{T+2}, {vr(BIGC+64+4*i)} offset:{i*1024}")
    e("s_waitcnt lgkmcnt(0)")
    barrier(maxb=0)
    for i in range(16):
        e(f"ds_read_b128 {vr(BIGC+64+4*i)}, v{T+3} offset:{i*1024}")
    for i in range(16):
        e(f"s_waitcnt lgkmcnt({15-i})")
        for r in range(4):
            e(f"v_add_f32 v{BIGC+4*i+r}, v{BIGC+4*i+r}, v{BIGC+64+4*i+r}")
    for t in range(4):
        for a in range(2):
            for q in range(4):
                src = BIGC + 16 * t + 8 * a + 2 * q
                e(f"v_cvt_pk_bf16_f32 v{BIGA + (2*t+a)*4 + q}, v{src}, v{src+1}")
    for f in range(8):
        e(f"ds_write_b128 v{T+3}, {vr(BIGA+4*f)} offset:{f*1024}")
    e(f"s_cmp_eq_u32 s{S_J}, 0")
    e("s_cselect_b32 s48, s39, s37")
    e("s_cselect_b32 s49, s37, s39")
    e(f"v_add_u32 v{T}, s48, v{V_XA}")
    e(f"v_add_u32 v{T+1}, s49, v{V_XA}")
    e("s_waitcnt lgkmcnt(0)")
    barrier(maxb=0)
    for kk in range(16):
        e(f"ds_read_b128 {vr(BIGA+4*kk)}, v{T + (kk >> 3)} offset:{(kk&7)*1024}")
    e("s_waitcnt lgkmcnt(0)")
    stamp(g, "ox_end")
    def store_tile(tp):
        res = []
        if OPT["pbf16"]:
            for a in range(2):
                o = []
                for q in range(4):
                    src = BIGC + 16 * tp + 8 * a + 2 * q
                    o.append(f"v_cvt_pk_bf16_f32 v{BIGC + 16*tp + 8*a + q}, v{src}, v{src+1}")
                o.append(f"s_add_u32 s3, s{S_T0}, {tp}")
                o.append("s_sub_u32 s48, s3, 7")
                o.append("s_cmp_ge_u32 s3, 7")
                o.append("s_cselect_b32 s3, s48, s3")
                o.append("s_lshl_b32 s3, s3, 11")
                o.append(f"buffer_store_dwordx4 {vr(BIGC+16*tp+8*a)}, v{V_XA}, s[{S_WS}:{S_WS+3}], s3 offen offset:{a*1024} {OPT['pol_st']}")
                res.append(o)
            return res
        for gq in range(4):
            i = 4 * tp + gq
            res.append([f"s_mov_b32 s3, {tp*4096}",
                        f"buffer_store_dwordx4 {vr(BIGC+4*i)}, v{V_XA}, s[{S_WS}:{S_WS+3}], s3 offen offset:{gq*1024} {OPT['pol_st']}"])
        return res
    steps = []
    for tp in range(7):
        for c in range(16):
            def reads(buf, tp=tp, c=c):
                sb = slot_of(("wo", 2 * tp + (c >> 3)))
                rebase("o", [V_OA], sb, sb + 16384)
                off = sb + (c & 7) * 2048 - bias["o"]
                return [f"ds_read_b64_tr_b16 v[{buf}:{buf+1}], v{V_OA} offset:{off}",
                        f"ds_read_b64_tr_b16 v[{buf+2}:{buf+3}], v{V_OA} offset:{off+512}"]
            st = {"reads": reads, "mfma": (lambda buf, tp=tp, c=c: mfma(BIGC + 16 * tp, buf, BIGA + 4 * c, c == 0))}
            if c == 0:
                def sync(tp=tp):
                    fr = [("v", 12), ("v", 13), ("v", 14), ("v", 15)] if tp == 0 else ([("wo", 2*tp-4), ("wo", 2*tp-3)] if tp >= 2 else [])
                    if DEBUG.get("t4"): stamp(g, f"pre{tp}")
                    barrier(needs=[("wo", 2*tp), ("wo", 2*tp+1)], frees=fr)
                    if DEBUG.get("t4"): stamp(g, f"bar{tp}")
                st["sync"] = sync
            if tp >= 1 and c == 2:
                st["post"] = (lambda tp=tp: store_tile(tp - 1))
            steps.append(st)
    run_steps(steps)
    e("s_nop 15")
    e("s_nop 3")
    for d in store_tile(6):
        for s in d: e(s)
    stamp(g, "p4end")
    if DEBUG.get("t"): e("s_waitcnt vmcnt(0)")
    stamp(g, "end")
    stamp_dump(g)
    g.lab("attn_end")
    e("s_endpgm")
    if DEBUG.get("tl"):
        el("s_waitcnt lgkmcnt(0)")
        for i in range(5): el(f"v_mov_b32 v{64+i}, s{60+2*i}")
        el("s_lshl_b32 s3, s2, 2")
        el(f"s_add_u32 s3, s3, s{S_W}")
        el("s_lshl_b32 s3, s3, 7")
        el(f"s_add_u32 s3, s3, {(200<<20) + 64}")
        el("v_mov_b32 v100, 0")
        for i in range(5): el(f"buffer_store_dword v{64+i}, v100, s[52:55], s3 offen offset:{4*i}")
    el("s_endpgm")
    assert sched["next"] == len(order)
    return "\n".join(g.L) + "\n" + "\n".join(gl.L)

def gen_reduce_bf16(g):
    e = g.e
    g.lab("reduce_kernel")
    e("s_cmp_ge_u32 s2, 224")
    e("s_cbranch_scc1 reduce_end")
    e("s_load_dwordx2 s[4:5], s[0:1], 40")
    e("s_load_dwordx2 s[6:7], s[0:1], 56")
    e("v_and_b32 v1, 63, v0")
    e("v_lshrrev_b32 v2, 6, v0")
    e("s_nop 0")
    e("v_readfirstlane_b32 s3, v2")
    e("s_lshl_b32 s8, s2, 2")
    e("s_add_u32 s8, s8, s3")
    e("s_and_b32 s9, s8, 1")
    e("s_lshr_b32 s10, s8, 1")
    e("s_mul_i32 s11, s10, 9363")
    e("s_lshr_b32 s11, s11, 16")
    e("s_mul_i32 s12, s11, 7")
    e("s_sub_u32 s12, s10, s12")
    e("s_waitcnt lgkmcnt(0)")
    e("s_mov_b32 s16, s6")
    e("s_and_b32 s17, s7, 0xffff")
    e(f"s_mov_b32 s18, {16*16*4*14336}")
    e("s_mov_b32 s19, 0x20000")
    e("s_mov_b32 s20, s4")
    e("s_and_b32 s21, s5, 0xffff")
    e(f"s_mov_b32 s22, {8*128*448*2}")
    e("s_mov_b32 s23, 0x20000")
    e("s_lshl_b32 s13, s8, 10")
    e("v_lshlrev_b32 v3, 4, v1")
    for h in range(16):
        e(f"buffer_load_dwordx4 v[{8+4*h}:{11+4*h}], v3, s[16:19], s13 offen {OPT['pol_rd']}")
        if h < 15: e(f"s_add_u32 s13, s13, {64*14336}")
    e("s_lshr_b32 s24, s11, 1")
    e("s_lshl_b32 s24, s24, 5")
    e("s_and_b32 s25, s11, 1")
    e("s_lshl_b32 s26, s12, 1")
    e("s_add_u32 s26, s26, s25")
    e("s_lshl_b32 s26, s26, 5")
    e("s_lshl_b32 s27, s9, 4")
    e("s_add_u32 s26, s26, s27")
    e("s_mul_i32 s24, s24, 896")
    e("s_lshl_b32 s26, s26, 1")
    e("s_add_u32 s24, s24, s26")
    e("v_and_b32 v4, 31, v1")
    e("v_mul_u32_u24 v4, 896, v4")
    e("v_lshrrev_b32 v5, 5, v1")
    e("v_lshl_add_u32 v4, v5, 4, v4")
    A = 80
    for h in range(16):
        e(f"s_waitcnt vmcnt({15-h})")
        for k in range(4):
            src = 8 + 4 * h + k
            if h == 0:
                e(f"v_lshlrev_b32 v{A+2*k}, 16, v{src}")
                e(f"v_and_b32 v{A+2*k+1}, 0xffff0000, v{src}")
            else:
                e(f"v_lshlrev_b32 v{A+8}, 16, v{src}")
                e(f"v_and_b32 v{A+9}, 0xffff0000, v{src}")
                e(f"v_add_f32 v{A+2*k}, v{A+2*k}, v{A+8}")
                e(f"v_add_f32 v{A+2*k+1}, v{A+2*k+1}, v{A+9}")
    for k in range(4): e(f"v_cvt_pk_bf16_f32 v{A+12+k}, v{A+2*k}, v{A+2*k+1}")
    e(f"buffer_store_dwordx4 v[{A+12}:{A+15}], v4, s[20:23], s24 offen")
    if DEBUG.get("dbg2"):
        e("s_cmp_eq_u32 s2, 0")
        e("s_cbranch_scc0 reduce_end")
        e("s_load_dwordx2 s[28:29], s[0:1], 48")
        e("s_waitcnt lgkmcnt(0)")
        e("s_and_b32 s29, s29, 0xffff")
        e("s_mov_b32 s30, 256")
        e("s_mov_b32 s31, 0x20000")
        e("s_mov_b32 s32, s6")
        e("s_and_b32 s33, s7, 0xffff")
        e("s_mov_b32 s34, 0x10000000")
        e("s_mov_b32 s35, 0x20000")
        e("v_lshlrev_b32 v6, 2, v0")
        e(f"s_mov_b32 s3, {(200<<20) + 400*128}")
        e("buffer_load_dword v7, v6, s[32:35], s3 offen")
        e("s_waitcnt vmcnt(0)")
        e("v_readfirstlane_b32 s3, v7")
        e("s_nop 3")
        e("v_subrev_u32 v7, s3, v7")
        e("buffer_store_dword v7, v6, s[28:31], 0 offen")
    g.lab("reduce_end")
    e("s_endpgm")

def gen_reduce(g):
    if OPT["pbf16"]: return gen_reduce_bf16(g)
    e = g.e
    g.lab("reduce_kernel")
    e("s_cmp_ge_u32 s2, 224")
    e("s_cbranch_scc1 reduce_end")
    e("s_load_dwordx2 s[4:5], s[0:1], 40")
    e("s_load_dwordx2 s[6:7], s[0:1], 56")
    e("v_and_b32 v1, 63, v0")
    e("v_lshrrev_b32 v2, 6, v0")
    e("s_nop 0")
    e("v_readfirstlane_b32 s3, v2")
    e("s_lshl_b32 s8, s2, 2")
    e("s_add_u32 s8, s8, s3")
    e("s_and_b32 s9, s8, 1")
    e("s_lshr_b32 s10, s8, 1")
    e("s_mul_i32 s11, s10, 9363")
    e("s_lshr_b32 s11, s11, 16")
    e("s_mul_i32 s12, s11, 7")
    e("s_sub_u32 s12, s10, s12")
    e("s_waitcnt lgkmcnt(0)")
    e("s_mov_b32 s16, s6")
    e("s_and_b32 s17, s7, 0xffff")
    e(f"s_mov_b32 s18, {16*16*4*28672}")
    e("s_mov_b32 s19, 0x20000")
    e("s_mov_b32 s20, s4")
    e("s_and_b32 s21, s5, 0xffff")
    e(f"s_mov_b32 s22, {8*128*448*2}")
    e("s_mov_b32 s23, 0x20000")
    e("s_mul_i32 s13, s11, 28672")
    e("s_lshl_b32 s14, s12, 2")
    e("s_lshl_b32 s15, s9, 1")
    e("s_add_u32 s14, s14, s15")
    e("s_lshl_b32 s14, s14, 10")
    e("s_add_u32 s13, s13, s14")
    e("v_lshlrev_b32 v3, 4, v1")
    for h in range(16):
        e(f"buffer_load_dwordx4 v[{8+8*h}:{11+8*h}], v3, s[16:19], s13 offen {OPT['pol_rd']}")
        e(f"buffer_load_dwordx4 v[{12+8*h}:{15+8*h}], v3, s[16:19], s13 offen offset:1024 {OPT['pol_rd']}")
        if h < 15: e(f"s_add_u32 s13, s13, {64*28672}")
    e("s_lshr_b32 s24, s11, 1")
    e("s_lshl_b32 s24, s24, 5")
    e("s_and_b32 s25, s11, 1")
    e("s_lshl_b32 s26, s12, 1")
    e("s_add_u32 s26, s26, s25")
    e("s_lshl_b32 s26, s26, 5")
    e("s_lshl_b32 s27, s9, 4")
    e("s_add_u32 s26, s26, s27")
    e("s_mul_i32 s24, s24, 896")
    e("s_lshl_b32 s26, s26, 1")
    e("s_add_u32 s24, s24, s26")
    e("v_and_b32 v4, 31, v1")
    e("v_mul_u32_u24 v4, 896, v4")
    e("v_lshrrev_b32 v5, 5, v1")
    e("v_lshl_add_u32 v4, v5, 4, v4")
    for h in range(1, 16):
        e(f"s_waitcnt vmcnt({2*(15-h)})")
        for k in range(8): e(f"v_add_f32 v{8+k}, v{8+k}, v{8+8*h+k}")
    for k in range(4): e(f"v_cvt_pk_bf16_f32 v{8+k}, v{8+2*k}, v{9+2*k}")
    e("buffer_store_dwordx4 v[8:11], v4, s[20:23], s24 offen")
    g.lab("reduce_end")
    e("s_endpgm")

def kd(name, vgpr, sgpr):
    return f""".p2align 6
.amdhsa_kernel {name}
  .amdhsa_next_free_vgpr {vgpr}
  .amdhsa_next_free_sgpr {sgpr}
  .amdhsa_accum_offset {vgpr}
  .amdhsa_group_segment_fixed_size 0
  .amdhsa_kernarg_size 64
  .amdhsa_user_sgpr_count 2
  .amdhsa_user_sgpr_kernarg_segment_ptr 1
  .amdhsa_system_sgpr_workgroup_id_x 1
.end_amdhsa_kernel
"""

def main():
    out = sys.argv[1]
    only = None
    for a in sys.argv[2:]:
        if "=" in a:
            k, v = a.split("=", 1)
            if k == "only": only = v
            elif k.startswith("pol"): OPT[k] = (v.replace("_", " ") + " ") if v else ""
            else: OPT[k] = int(v)
        else:
            DEBUG[a] = 1
    a = gen_attn()
    g2 = G(); gen_reduce(g2); r = "\n".join(g2.L)
    txt = HEADER
    if only != "reduce":
        txt += f"; @launch kernel=attn_kernel grid=(256,1,1) block=(512,1,1) lds={LDS_TOTAL}\n"
    if only != "attn":
        txt += "; @launch kernel=reduce_kernel grid=(224,1,1) block=(256,1,1) lds=0\n"
    txt += '.amdgcn_target "amdgcn-amd-amdhsa--gfx950"\n.text\n'
    txt += ".globl attn_kernel\n.p2align 8\n.type attn_kernel,@function\n" + a + "\n"
    txt += ".globl reduce_kernel\n.p2align 8\n.type reduce_kernel,@function\n" + r + "\n"
    txt += '.section .rodata,"a"\n' + kd("attn_kernel", 256, 100) + kd("reduce_kernel", 136, 40)
    open(out, "w").write(txt)
main()
```
